```python
import torch

def _softmax(x, axis=-1):
    return torch.softmax(x, dim=axis)
def _gelu(x):
    return torch.nn.functional.gelu(x, approximate="tanh")
def _silu(x):
    return torch.nn.functional.silu(x)
def _sigmoid(x):
    return torch.sigmoid(x)
def _layernorm(x, axis=-1, eps=1e-5):
    m = x.mean(dim=axis, keepdim=True)
    v = x.var(dim=axis, keepdim=True, unbiased=False)
    return (x - m) / torch.sqrt(v + eps)
def _scatter_add(tgt, idx, src, axis=0):
    return tgt.clone().index_add_(axis, idx, src)
def _segment_sum(src, seg, n):
    out = torch.zeros((n,) + src.shape[1:], dtype=src.dtype)
    return out.index_add_(0, seg, src)
def _pad(x, pw):
    flat = tuple(v for pair in reversed(pw) for v in pair)
    return torch.nn.functional.pad(x, flat)

kernel_name = 'recurrent_scan__sliding_block_cached__glu_gated_glu__decode'

def setup_inputs():

    _w = (lambda a: (lambda t: t.to(torch.bfloat16) if t.is_floating_point() else t)(torch.as_tensor(a)))
    def _A_setup():
        B, Sq, D = 2, 1, 512
        Hq, Hkv, Sk, Dh = 32, 8, 32768, 128
        assert Hq % Hkv == 0, (Hq, Hkv)
        return {
            "x": _w((lambda *s: torch.randn(*s, dtype=torch.bfloat16) * 0.05)(B, Sq, D)),
            "k_cache": _w((lambda *s: torch.randn(*s, dtype=torch.bfloat16) * 1.6)(B, Hkv, Sk, Dh)),
            "v_cache": _w((lambda *s: torch.randn(*s, dtype=torch.bfloat16) * 0.2)(B, Hkv, Sk, Dh)),
            "wq": _w((lambda *s: torch.randn(*s, dtype=torch.bfloat16) * 1.6)(D, Hq * Dh) * (D ** -0.5)),
            "wo": _w((lambda *s: torch.randn(*s, dtype=torch.bfloat16) * 0.2)(Hq * Dh, D) * ((Hq * Dh) ** -0.5)),
        }
    _A_in = _A_setup()

    def _B_setup():
        B, S, D, F = 2, 1, 512, 1792
        return {
            "x": _w((lambda *s: torch.randn(*s, dtype=torch.bfloat16) * 0.05)(B, S, D)),
            "w_gate": _w((lambda *s: torch.randn(*s, dtype=torch.bfloat16) * 1.6)(D, F)),
            "w_up": _w((lambda *s: torch.randn(*s, dtype=torch.bfloat16) * 0.1)(D, F)),
            "w_down": _w((lambda *s: torch.randn(*s, dtype=torch.bfloat16) * 0.1)(F, D)),
        }
    _B_in = _B_setup()

    return {
        "A_x": _A_in["x"],
        "A_k_cache": _A_in["k_cache"],
        "A_v_cache": _A_in["v_cache"],
        "A_wq": _A_in["wq"],
        "A_wo": _A_in["wo"],
        "B_x": _B_in["x"],
        "B_w_gate": _B_in["w_gate"],
        "B_w_up": _B_in["w_up"],
        "B_w_down": _B_in["w_down"],
    }

def reference(A_x, A_k_cache, A_v_cache, A_wq, A_wo, B_x, B_w_gate, B_w_up, B_w_down):
    def _A_ref(x, k_cache, v_cache, wq, wo):
        B, Sq, D = x.shape
        Hq, Dh = 32, 128
        Hkv, Sk = k_cache.shape[1], k_cache.shape[2]
        W = min(4096, max(256, Sk // 4))
        rep = Hq // Hkv
        q = (lambda x, *d: x.permute(*d))((x @ wq).reshape(B, Sq, Hq, Dh), 0, 2, 1, 3)
        k = (lambda x, n, axis: torch.repeat_interleave(x, n, dim=axis))(k_cache[:, :, Sk - W:, :], rep, axis=1)
        v = (lambda x, n, axis: torch.repeat_interleave(x, n, dim=axis))(v_cache[:, :, Sk - W:, :], rep, axis=1)
        scores = torch.einsum("bhqd,bhkd->bhqk", q, k) * (Dh ** -0.5)
        p = _softmax(scores, axis=-1)
        o = torch.einsum("bhqk,bhkd->bhqd", p, v)
        return (lambda x, *d: x.permute(*d))(o, 0, 2, 1, 3).reshape(B, Sq, Hq * Dh) @ wo

    def _B_ref(x, w_gate, w_up, w_down):
        g = torch.einsum("bsd,df->bsf", x, w_gate)
        u = torch.einsum("bsd,df->bsf", x, w_up)
        h = _sigmoid(g) * u
        return torch.einsum("bsf,fd->bsd", h, w_down)

    x = A_x
    xn = _layernorm(x, axis=-1)
    s = _A_ref(xn, A_k_cache, A_v_cache, A_wq, A_wo)
    g = _silu(_B_ref(xn, B_w_gate, B_w_up, B_w_down))
    return x + s * g
```

```python
import re

def regs_of(tok):
    tok = tok.strip()
    tok = re.sub(r'^-|^abs\(|\)$', '', tok)
    m = re.fullmatch(r'([vsa])(\d+)', tok)
    if m: return {(m.group(1), int(m.group(2)))}
    m = re.fullmatch(r'([vsa])\[(\d+):(\d+)\]', tok)
    if m: return {(m.group(1), i) for i in range(int(m.group(2)), int(m.group(3))+1)}
    if tok in ('vcc',): return {('s', 'vcc')}
    if tok in ('exec',): return {('s', 'exec')}
    if tok == 'm0': return {('s', 'm0')}
    return set()

TRANS = ('v_exp_f32', 'v_log_f32', 'v_rcp_f32', 'v_rsq_f32', 'v_sqrt_f32', 'v_sin_f32', 'v_cos_f32')

class Ins:
    def __init__(self, text):
        self.text = text
        t = text.split(';')[0].strip()
        self.label = t.endswith(':')
        self.directive = t.startswith('.')
        self.empty = (t == '')
        self.op = None; self.w = set(); self.r = set(); self.kind = None
        if self.label or self.directive or self.empty: return
        parts = t.split(None, 1)
        self.op = parts[0]
        ops = []
        mods = ''
        if len(parts) > 1:
            rest = parts[1]
            cur = ''; depth = 0
            for ch in rest:
                if ch == '[': depth += 1
                if ch == ']': depth -= 1
                if ch == ',' and depth == 0:
                    ops.append(cur.strip()); cur = ''
                else: cur += ch
            last = cur.strip().split(None, 1)
            if last:
                ops.append(last[0])
                if len(last) > 1: mods = last[1]
        self.ops = ops; self.mods = mods
        op = self.op
        R = lambda i: regs_of(ops[i]) if i < len(ops) else set()
        allr = lambda a: set().union(*[regs_of(o) for o in ops[a:]]) if len(ops) > a else set()
        self.dpp = any(k in mods for k in ('row_', 'quad_perm', 'wave_'))
        if op.startswith('v_mfma'):
            self.kind = 'mfma'; self.w = R(0); self.r = allr(1); self.srcc = R(3); self.srcab = R(1) | R(2)
            self.passes = 4 if '16x16x32' in op else 8
        elif op.startswith('v_cmp'):
            self.kind = 'valu'; self.w = R(0); self.r = allr(1)
        elif op.startswith('v_readfirstlane') or op.startswith('v_readlane'):
            self.kind = 'valu'; self.w = R(0); self.r = allr(1); self.lane_read = True
        elif op.startswith('v_permlane'):
            self.kind = 'valu'; self.w = R(0) | R(1); self.r = R(0) | R(1); self.perml = True
        elif op.startswith('v_'):
            self.kind = 'valu'; self.w = R(0); self.r = allr(1)
            if op.startswith('v_fmac') or op.startswith('v_writelane') or self.dpp: self.r |= R(0)
            if op.startswith('v_cndmask') and len(ops) == 3: self.r |= {('s', 'vcc')}
            if op.startswith('v_add_co') or op.startswith('v_addc_co'):
                self.w = R(0) | R(1); self.r = allr(2)
        elif op.startswith('buffer_load') or op.startswith('global_load'):
            self.kind = 'vmem'
            if 'lds' in mods.split() or '_lds_' in op:
                self.r = allr(0) | {('s', 'm0')}; self.ldsdma = True
            else:
                self.w = R(0); self.r = allr(1)
        elif op.startswith('buffer_store') or op.startswith('global_store'):
            self.kind = 'vmem'; self.r = allr(0)
            if 'x4' in op or 'x3' in op:
                self.wide_store = R(0) if op.startswith('buffer') else R(1)
        elif op.startswith('buffer_wbl2') or op.startswith('buffer_inv'):
            self.kind = 'vmem'
        elif op.startswith('ds_read') or op.startswith('ds_bpermute') or op.startswith('ds_swizzle'):
            self.kind = 'ds'; self.w = R(0); self.r = allr(1)
        elif op.startswith('ds_'):
            self.kind = 'ds'; self.r = allr(0)
        elif op.startswith('s_load') or op.startswith('s_memrealtime') or op.startswith('s_memtime'):
            self.kind = 'smem'; self.w = R(0); self.r = allr(1)
        elif op.startswith('s_cmp') or op.startswith('s_cbranch') or op in ('s_branch', 's_barrier', 's_endpgm', 's_waitcnt', 's_nop', 's_setprio', 's_sleep') or op.startswith('s_bitcmp'):
            self.kind = 'sctl'; self.r = allr(0)
        elif op.startswith('s_'):
            self.kind = 'salu'; self.w = R(0); self.r = allr(1)
            if 'saveexec' in op: self.w |= {('s', 'exec')}
        else:
            raise ValueError('unknown op ' + text)
    def states(self):
        if self.op == 's_nop': return int(self.ops[0]) + 1
        return 1

def need(p, c):
    n = 0
    vw = {x for x in p.w if x[0] in 'va'}
    sw = {x for x in p.w if x[0] == 's'}
    if p.kind == 'valu':
        if c.kind == 'mfma' and vw & c.r: n = max(n, 2)
        if c.kind == 'valu' and c.dpp and vw & c.r: n = max(n, 2)
        if getattr(c, 'perml', False) and vw & c.r: n = max(n, 2)
        if getattr(c, 'lane_read', False) and vw & c.r: n = max(n, 1)
        if re.sub(r'_e(32|64)$', '', p.op) in TRANS and c.kind in ('valu', 'mfma') and vw & c.r: n = max(n, 1)
        if c.kind == 'vmem' and sw & c.r: n = max(n, 5)
        if c.kind == 'valu' and sw & c.r: n = max(n, 2)
        if c.kind in ('salu', 'sctl') and (sw & c.r or (c.op.startswith('s_cbranch_vcc') and ('s', 'vcc') in sw)): n = max(n, 1)
        if getattr(c, 'lane_read', False) and sw & c.r: n = max(n, 4)
    if p.kind == 'mfma':
        raw = {4: 8, 8: 12}[p.passes]
        if c.kind == 'mfma':
            if p.w & c.srcab: n = max(n, raw)
            if p.w & c.srcc and p.w != c.srcc: n = max(n, {4: 6, 8: 10}[p.passes])
            if p.w & c.w and p.w != c.srcc: n = max(n, raw)
        elif c.kind in ('valu', 'vmem', 'ds'):
            if p.w & (c.r | c.w): n = max(n, raw)
            if c.kind == 'valu' and p.srcc & c.w: n = max(n, {4: 3, 8: 7}[p.passes])
    if p.kind == 'vmem' and getattr(p, 'wide_store', None):
        if c.kind in ('valu', 'mfma', 'ds', 'vmem') and p.wide_store & c.w: n = max(n, 2)
    if p.kind == 'salu' and ('s', 'm0') in p.w and getattr(c, 'ldsdma', False): n = max(n, 1)
    return n

class Asm:
    def __init__(self):
        self.lines = []
    def __call__(self, text):
        for l in text.split('\n'):
            if l.strip(): self.lines.append(l.strip())
    def pad(self):
        out = []; hist = []
        added = 0
        for l in self.lines:
            ins = Ins(l)
            if ins.label or ins.directive or ins.empty:
                out.append(l); continue
            req = 0
            for (p, d) in hist:
                req = max(req, need(p, ins) - d)
            if req > 0:
                out.append(f's_nop {req-1}'); added += 1
                hist = [(p, d + req) for (p, d) in hist]
            out.append(l)
            st = ins.states()
            hist = [(p, d + st) for (p, d) in hist if d + st < 24]
            if ins.op in ('s_branch', 's_endpgm'): hist = []
            elif ins.kind in ('valu', 'mfma', 'vmem', 'salu'): hist.append((ins, 0))
        self.padded = added
        return out
    def text(self):
        res = []
        for l in self.pad():
            if l.endswith(':') or l.startswith('.') or l.startswith(';'): res.append(l)
            else: res.append('    ' + l)
        return '\n'.join(res) + '\n'
```

```python
import sys
from asmlib import Asm

NAME = "recurrent_scan__sliding_block_cached__glu_gated_glu__decode_kernel"

K_L, V_L = 0, 65536
WQ_L, G_L, U_L = 98304, 114688, 122880
WO_L, DN_L = 131072, 147456
SM = 155648
FLAGS, MX, HB, OB, QB, XN, PB = SM, SM+64, SM+256, SM+640, SM+1280, SM+2560, SM+4864
HBS, OBS, QBS, XNS = 192, 320, 320, 1088
QA, GA, MA, OA, MIR, FR, DIAG = 0x10000, 0x30000, 0x70000, 0x80000, 0x100000, 0x200000, 0x400000
WS_BYTES = 0x800000
LOG2E = "0x3fb8aa3b"
OOB = 0x40000000

class Cfg:
    D = 6
    diag = False
    N0 = 400
    NMAX = 400000
    perm = "s"
    prefetch_code = True
    pretouch = True
    safe = True
    def __init__(self, **kw):
        for k, v in kw.items():
            assert hasattr(self, k), k
            setattr(self, k, v)

def gen(cfg):
    a = Asm()
    nst = [0]
    def stamp(i):
        if cfg.diag: a(f"s_memrealtime s[{64+2*i}:{65+2*i}]")
    def dump_stamps(n):
        if not cfg.diag: return
        a("s_waitcnt lgkmcnt(0)")
        a("s_mov_b64 exec, -1")
        a("v_mov_b32 v125, 0")
        for i in range(n):
            a(f"v_writelane_b32 v125, s{64+2*i}, {i}")
        a(f"s_mul_i32 s62, s2, {12*64}\ns_lshl_b32 s63, s3, 6\ns_add_u32 s62, s62, s63\ns_add_u32 s62, s62, {DIAG}")
        a("v_lshlrev_b32 v124, 2, v0\ns_mov_b64 exec, 0xffff")
        a("buffer_store_dword v125, v124, s[32:35], s62 offen")
    def srd_tail(r, n):
        a(f"s_mov_b32 s{r+2}, {n}\ns_mov_b32 s{r+3}, 0x20000")
    def ex(lo, hi=None):
        if hi is None: a(f"s_mov_b64 exec, {lo}")
        else: a(f"s_mov_b32 exec_lo, {lo}\ns_mov_b32 exec_hi, {hi}")
    def exmask16(m):
        v = m | (m << 16); ex(hex(v), hex(v))
    lab = [0]
    def L(p):
        lab[0] += 1
        return f"L{p}{lab[0]}"

    a(f"""
    s_cmp_ge_u32 s2, 256
    s_cbranch_scc1 L_exit
    v_lshrrev_b32 v1, 6, v0
    v_and_b32 v0, 63, v0
    s_and_b32 s49, s2, 7          ; h
    v_readfirstlane_b32 s3, v1    ; wave
    s_lshr_b32 s50, s2, 3         ; j
    s_and_b32 s51, s50, 7         ; cg
    s_lshr_b32 s52, s50, 3        ; rg
    s_lshr_b32 s53, s50, 4        ; b
    s_and_b32 s54, s50, 15        ; split
    s_cmp_ge_u32 s3, 4
    s_cbranch_scc1 L_compute
    """)
    a("""
    s_load_dwordx2 s[12:13], s[0:1], 24
    s_load_dwordx2 s[20:21], s[0:1], 48
    s_load_dwordx2 s[24:25], s[0:1], 56
    s_load_dwordx2 s[4:5], s[0:1], 8
    s_load_dwordx2 s[8:9], s[0:1], 16
    s_load_dwordx2 s[28:29], s[0:1], 64
    s_load_dwordx2 s[16:17], s[0:1], 32
    """)
    stamp(0)
    srd_tail(12, 4 << 20); srd_tail(20, 512*1792*2); srd_tail(24, 512*1792*2)
    srd_tail(4, 128 << 20); srd_tail(8, 128 << 20); srd_tail(28, 512*1792*2); srd_tail(16, 4 << 20)
    a(f"""
    v_lshrrev_b32 v1, 3, v0            ; r = l>>3
    v_bfe_u32 v2, v0, 1, 2             ; (l&7)>>1
    v_bfe_u32 v3, v0, 4, 2             ; (l>>4)&3
    v_xor_b32 v2, v2, v3
    v_lshlrev_b32 v2, 5, v2
    v_and_b32 v4, 1, v0
    v_lshl_add_u32 v2, v4, 4, v2
    v_lshl_add_u32 v10, v1, 13, v2
    v_mul_u32_u24 v5, 3584, v1
    v_add_u32 v11, v5, v2
    v_lshl_add_u32 v12, v1, 10, v2
    ; soffsets
    s_lshl_b32 s55, s52, 4
    s_add_u32 s55, s55, s3
    s_lshl_b32 s55, s55, 16
    s_lshl_b32 s56, s49, 10
    s_lshl_b32 s57, s51, 7
    s_add_u32 s55, s55, s56
    s_add_u32 s55, s55, s57
    s_lshl_b32 s58, s52, 3
    s_add_u32 s58, s58, s49            ; u
    s_cmp_ge_u32 s58, 28
    s_cselect_b32 s59, {OOB}, 0
    s_lshl_b32 s56, s51, 3
    s_add_u32 s56, s56, s3
    s_mul_i32 s56, s56, {8*3584}
    s_lshl_b32 s60, s58, 7
    s_add_u32 s56, s56, s60
    s_add_u32 s56, s56, s59
    s_lshl_b32 s61, s3, 10             ; lw*1024
    s_add_u32 m0, s61, {WQ_L}
    s_waitcnt lgkmcnt(0)
    """)
    n = [0]
    D = cfg.D
    miles = {}
    def flag(val):
        a(f"v_mov_b32 v21, {val}\ns_mov_b64 exec, 1\nds_write_b32 v20, v21\ns_mov_b64 exec, -1")
    def pre_issue():
        i = n[0]
        if i >= D:
            a(f"s_waitcnt vmcnt({D-1})")
    def post_issue():
        i = n[0]
        landed = i - D + 1 if i >= D else 0
        n[0] += 1
        if landed in miles:
            miles.pop(landed)()
    miles[8] = lambda: flag(1)
    miles[24] = lambda: flag(2)
    miles[28] = lambda: flag(3)
    miles[32] = lambda: flag(4)
    miles[36] = lambda: flag(5)
    def setup_rest():
        a(f"""
        v_lshrrev_b32 v1, 4, v0
        v_and_b32 v2, 15, v0
        v_xor_b32 v3, v2, v1
        v_lshlrev_b32 v3, 4, v3
        v_lshl_add_u32 v13, v1, 8, v3
        v_xor_b32 v14, 64, v13
        v_xor_b32 v15, 128, v13
        v_xor_b32 v16, 192, v13
        v_lshrrev_b32 v3, 1, v2
        v_xor_b32 v3, v3, v1
        v_lshlrev_b32 v3, 5, v3
        v_and_b32 v4, 1, v0
        v_lshl_add_u32 v3, v4, 4, v3
        v_lshl_add_u32 v17, v1, 8, v3
        v_xor_b32 v18, 128, v17
        s_lshl_b32 s62, s53, 3
        s_add_u32 s62, s62, s49
        s_lshl_b32 s62, s62, 23            ; (b*8+h) * 8MB
        s_lshl_b32 s63, s54, 16
        s_add_u32 s62, s62, s63
        s_add_u32 s62, s62, {28672*256}
        """)
        if cfg.perm == "s":
            a("s_xor_b32 s63, s3, s54")
        elif cfg.perm == "none":
            a("s_mov_b32 s63, s3")
        elif cfg.perm == "sh":
            a("s_add_u32 s63, s54, s49\ns_and_b32 s63, s63, 15\ns_xor_b32 s63, s63, s3")
        a(f"""
        s_lshl_b32 s63, s63, 12
        s_add_u32 s62, s62, s63
        s_lshl_b32 s63, s49, 2
        s_add_u32 s63, s63, s52
        s_lshl_b32 s63, s63, 4
        s_add_u32 s63, s63, s3
        s_lshl_b32 s63, s63, 13
        s_add_u32 s63, s63, s57
        s_lshl_b32 s60, s58, 3
        s_add_u32 s60, s60, s3
        s_lshl_b32 s60, s60, 13
        s_add_u32 s60, s60, s57
        s_add_u32 s60, s60, s59
        s_lshl_b32 s58, s3, 2
        s_add_u32 s58, s58, {FLAGS}
        v_mov_b32 v20, s58
        v_lshlrev_b32 v22, 2, v2
        v_add_u32 v22, {FLAGS}, v22
        s_lshl_b32 s58, s3, 12             ; lw*4096
        """)
    barrier_done = [False]
    def maybe_b0():
        if not barrier_done[0] and n[0] == min(D, 8):
            setup_rest()
            a("s_barrier")
            barrier_done[0] = True
    def wseg(srd, v, soff, step, cnt, ldsbase, first=False):
        for i in range(cnt):
            maybe_b0()
            if i == 0:
                if not first: a(f"s_add_u32 m0, s61, {ldsbase}")
                so = f"s{soff}"
            else:
                a(f"s_add_u32 m0, m0, 4096\ns_add_u32 s46, s{soff}, {i*step}")
                so = "s46"
            pre_issue()
            a(f"buffer_load_dwordx4 v{v}, s[{srd}:{srd+3}], {so} offen nt lds")
            post_issue()
    wseg(12, 10, 55, 32*8192, 4, WQ_L, first=True)
    wseg(20, 11, 56, 32*3584, 2, G_L)
    wseg(24, 11, 56, 32*3584, 2, U_L)
    maybe_b0()
    assert barrier_done[0]
    stamp(1)
    def kvseg(srd, regs, ldsbase, isv):
        for i in range(4):
            if isv and i == 2:
                w = L("war")
                if cfg.safe:
                    a(f"s_mov_b32 s90, 0\n{w}:\nds_read_b32 v23, v22\ns_add_u32 s90, s90, 1\ns_bitcmp1_b32 s90, 20\ns_cbranch_scc1 {w}x\ns_waitcnt lgkmcnt(0)\nv_cmp_gt_u32 vcc, 2, v23\ns_and_b64 vcc, vcc, 0xff0\ns_cbranch_vccnz {w}\n{w}x:\ns_waitcnt lgkmcnt(0)")
                else:
                    a(f"{w}:\nds_read_b32 v23, v22\ns_waitcnt lgkmcnt(0)\nv_cmp_gt_u32 vcc, 2, v23\ns_and_b64 vcc, vcc, 0xff0\ns_cbranch_vccnz {w}")
            a(f"s_add_u32 m0, s58, {ldsbase + i*16384}")
            if i == 0: so = "s62"
            else:
                a(f"s_xor_b32 s46, s62, {i*16384}"); so = "s46"
            for cc in range(4):
                pre_issue()
                a(f"buffer_load_dwordx4 v{regs[cc % len(regs)]}, s[{srd}:{srd+3}], {so} offen offset:{cc*1024} nt lds")
                post_issue()
    kvseg(4, [13, 14, 15, 16], K_L, False)
    kvseg(8, [17, 18], V_L, True)
    stamp(2)
    wseg(28, 12, 60, 32*1024, 2, DN_L)
    wseg(16, 12, 63, 32*1024, 4, WO_L)
    assert n[0] == 46
    for landed in sorted(miles):
        a(f"s_waitcnt vmcnt({46-landed})"); miles[landed]()
    a("s_waitcnt vmcnt(6)")
    stamp(3)
    a("s_barrier")
    a("s_waitcnt vmcnt(0)")
    stamp(4)
    if cfg.diag:
        a("s_load_dwordx2 s[32:33], s[0:1], 88"); srd_tail(32, WS_BYTES)
        dump_stamps(5)
    a("s_endpgm")

    a("L_compute:")
    a("""
    s_load_dwordx2 s[36:37], s[0:1], 0
    s_load_dwordx2 s[32:33], s[0:1], 88
    s_load_dwordx2 s[40:41], s[0:1], 72
    """)
    stamp(0)
    srd_tail(36, 2048); srd_tail(32, WS_BYTES); srd_tail(40, 2048)
    a(f"""
    s_sub_u32 s55, s3, 4
    v_and_b32 v1, 15, v0              ; J
    v_lshrrev_b32 v2, 4, v0           ; G
    v_lshlrev_b32 v4, 2, v1
    v_add_u32 v4, {FLAGS}, v4
    v_mov_b32 v5, 0
    v_lshlrev_b32 v7, 4, v0           ; l*16
    s_cmp_lg_u32 s55, 0
    s_cbranch_scc1 L_noinit
    ds_write_b32 v4, v5
L_noinit:
    s_lshl_b32 s56, s55, 2
    s_add_u32 s56, s56, {FLAGS+16}
    v_mov_b32 v6, s56
    v_mov_b32 v3, 0xffffff00
    s_waitcnt lgkmcnt(0)
    s_load_dword s44, s[32:33], 0
    s_cmp_ge_u32 s55, 2
    s_cbranch_scc1 L_nox
    s_lshl_b32 s56, s55, 10
    buffer_load_dwordx4 v[16:19], v7, s[36:39], s56 offen
L_nox:
    """)
    a(f"""
    v_and_b32 v120, 3, v0
    v_lshl_add_u32 v120, v120, 2, v2
    v_lshlrev_b32 v120, 1, v120
    s_cmp_lg_u32 s55, 4
    s_cbranch_scc1 L_noxr
    s_lshr_b32 s56, s2, 3             ; cg'
    s_lshl_b32 s56, s56, 6
    s_and_b32 s57, s2, 3
    s_lshl_b32 s57, s57, 4
    s_add_u32 s56, s56, s57
    s_bfe_u32 s57, s2, 0x10002
    s_lshl_b32 s57, s57, 9
    s_add_u32 s56, s56, s57
    s_lshl_b32 s61, s56, 1
    buffer_load_ushort v121, v120, s[36:39], s61 offen
L_noxr:
    """)
    if cfg.prefetch_code:
        a(f"""
        s_cmp_lg_u32 s55, 7
        s_cbranch_scc1 L_nopf
        s_getpc_b64 s[56:57]
L_pc:
        s_sub_u32 s56, s56, L_pc-{NAME}
        s_subb_u32 s57, s57, 0
        s_and_b32 s58, s50, 7
        s_lshl_b32 s58, s58, 10
        v_add_u32 v122, s58, v7
        v_cmp_gt_u32 vcc, L_codeend-{NAME}, v122
        s_and_saveexec_b64 s[58:59], vcc
        s_cbranch_execz L_nopf2
        global_load_dwordx4 v[116:119], v122, s[56:57]
L_nopf2:
        s_mov_b64 exec, -1
        v_add_u32 v122, 8192, v122
        v_cmp_gt_u32 vcc, L_codeend-{NAME}, v122
        s_and_saveexec_b64 s[58:59], vcc
        s_cbranch_execz L_nopf3
        global_load_dwordx4 v[112:115], v122, s[56:57]
L_nopf3:
        s_mov_b64 exec, -1
L_nopf:
        """)
    a("s_barrier")
    def cflag(val):
        a(f"v_mov_b32 v5, {val}\ns_mov_b64 exec, 1\nds_write_b32 v6, v5\ns_mov_b64 exec, -1")
    def wait(mask, val):
        w = L("w")
        if cfg.safe:
            a(f"s_mov_b32 s90, 0\n{w}:\nds_read_b32 v5, v4\ns_add_u32 s90, s90, 1\ns_bitcmp1_b32 s90, 20\ns_cbranch_scc1 {w}x\ns_waitcnt lgkmcnt(0)\nv_cmp_gt_u32 vcc, {val}, v5\ns_and_b64 vcc, vcc, {hex(mask)}\ns_cbranch_vccnz {w}\n{w}x:\ns_waitcnt lgkmcnt(0)")
        else:
            a(f"{w}:\nds_read_b32 v5, v4\ns_waitcnt lgkmcnt(0)\nv_cmp_gt_u32 vcc, {val}, v5\ns_and_b64 vcc, vcc, {hex(mask)}\ns_cbranch_vccnz {w}")
    def allreduce(x, t, op):
        for d in ("quad_perm:[1,0,3,2]", "quad_perm:[2,3,0,1]", "row_half_mirror", "row_mirror"):
            a(f"{op}_dpp v{x}, v{x}, v{x} {d} row_mask:0xf bank_mask:0xf")
        a(f"v_mov_b32 v{t}, v{x}\nv_permlane16_swap_b32 v{x}, v{t}\n{op} v{x}, v{x}, v{t}")
        a(f"v_mov_b32 v{t}, v{x}\nv_permlane32_swap_b32 v{x}, v{t}\n{op} v{x}, v{x}, v{t}")
    def unpack(src, dst, n):
        for i in range(n):
            a(f"v_lshlrev_b32 v{dst+2*i}, 16, v{src+i}\nv_and_b32 v{dst+2*i+1}, 0xffff0000, v{src+i}")
    def pack(src, dst, n):
        for i in range(n):
            a(f"v_cvt_pk_bf16_f32 v{dst+i}, v{src+2*i}, v{src+2*i+1}")
    def rbf(x, d=None):
        d = x if d is None else d
        a(f"v_cvt_pk_bf16_f32 v{d}, v{x}, v{x}\nv_lshlrev_b32 v{d}, 16, v{d}")
    def tag(src, dst):
        for i in range(4):
            a(f"v_and_or_b32 v{dst+i}, v{src+i}, v3, s{45+i}")

    a("s_cmp_ge_u32 s55, 2\ns_cbranch_scc1 L_noln")
    a("s_waitcnt vmcnt(0)")
    stamp(1)
    unpack(16, 20, 4)
    a("""
    v_add_f32 v28, v20, v21
    v_add_f32 v29, v22, v23
    v_add_f32 v30, v24, v25
    v_add_f32 v31, v26, v27
    v_add_f32 v28, v28, v29
    v_add_f32 v30, v30, v31
    v_add_f32 v28, v28, v30
    """)
    allreduce(28, 29, "v_add_f32")
    a("v_mul_f32 v28, 0x3b000000, v28")
    for i in range(8): a(f"v_sub_f32 v{32+i}, v{20+i}, v28")
    a("v_mul_f32 v29, v32, v32\nv_mul_f32 v30, v33, v33")
    for i in range(2, 8, 2): a(f"v_fmac_f32 v29, v{32+i}, v{32+i}\nv_fmac_f32 v30, v{33+i}, v{33+i}")
    a("v_add_f32 v29, v29, v30")
    rbf(28)
    for i in range(8): a(f"v_sub_f32 v{32+i}, v{20+i}, v28")
    allreduce(29, 30, "v_add_f32")
    pack(32, 16, 4)
    a("v_mul_f32 v29, 0x3b000000, v29")
    rbf(29)
    a("v_add_f32 v29, 0x3727c5ac, v29")
    rbf(29)
    a("v_sqrt_f32 v29, v29")
    unpack(16, 32, 4)
    rbf(29)
    a("v_rcp_f32 v29, v29")
    for i in range(8): a(f"v_mul_f32 v{32+i}, v{32+i}, v29")
    pack(32, 16, 4)
    a(f"s_mul_i32 s56, s55, {XNS}\ns_add_u32 s56, s56, {XN}\nv_add_u32 v8, s56, v7\nds_write_b128 v8, v[16:19]")
    cflag(1)
    a("L_noln:")
    a(f"""
    s_waitcnt lgkmcnt(0)
    s_and_b32 s45, s44, 0x7f7f7f7f
    s_add_u32 s45, s45, 0x01010101
    s_and_b32 s44, s44, 0x80808080
    s_xor_b32 s44, s44, s45           ; T
    s_and_b32 s45, s44, 0xff
    s_bfe_u32 s46, s44, 0x80008
    s_bfe_u32 s47, s44, 0x80010
    s_lshr_b32 s48, s44, 24
    s_and_b32 s56, s55, 3             ; mt
    v_lshrrev_b32 v8, 2, v1
    v_lshl_add_u32 v8, v2, 2, v8      ; r
    v_bfe_u32 v9, v8, 1, 2
    v_xor_b32 v9, s56, v9
    v_lshlrev_b32 v9, 5, v9
    v_and_b32 v10, 3, v1
    v_lshl_add_u32 v9, v10, 3, v9
    v_lshl_add_u32 v11, v10, 3, 0     ; (i&3)*8
    v_lshl_add_u32 v15, v8, 7, v9     ; vT
    v_and_b32 v10, 1, v1
    v_mul_u32_u24 v12, {XNS}, v10
    v_lshl_add_u32 v12, v2, 3, v12    ; (j&1)*XNS + g*8
    s_cmp_ge_u32 s55, 4
    s_cbranch_scc1 L_gu
    """)
    a(f"""
    v_add_u32 v9, {WQ_L}, v15
    s_lshl_b32 s57, s52, 8
    s_add_u32 s57, s57, {XN}
    v_add_u32 v12, s57, v12
    v_lshlrev_b32 v13, 13, v1
    v_lshl_add_u32 v13, v2, 4, v13    ; b*8192 + g*16
    s_lshl_b32 s57, s49, 14
    s_lshl_b32 s58, s52, 11
    s_add_u32 s57, s57, s58
    s_lshl_b32 s58, s51, 8
    s_add_u32 s57, s57, s58
    s_lshl_b32 s58, s56, 6
    s_add_u32 s57, s57, s58
    s_add_u32 s57, s57, {QA}
    s_add_u32 s58, s57, {MIR}
    """)
    wait(0x30, 1)
    for k in range(4): a(f"ds_read2_b64 v[{32+4*k}:{35+4*k}], v12 offset0:{8*k} offset1:{8*k+4}")
    wait(0xf, 1)
    stamp(2)
    for k in range(4):
        for t in range(2): a(f"ds_read_b64_tr_b16 v[{16+4*k+2*t}:{17+4*k+2*t}], v9 offset:{k*4096+t*2048}")
    cflag(2)
    a("s_waitcnt lgkmcnt(0)")
    for k in range(4):
        a(f"v_mfma_f32_16x16x32_bf16 v[48:51], v[{16+4*k}:{19+4*k}], v[{32+4*k}:{35+4*k}], {'0' if k==0 else 'v[48:51]'}")
    tag(48, 52)
    exmask16(0x3)
    a("buffer_store_dwordx4 v[52:55], v13, s[32:35], s57 offen\nbuffer_store_dwordx4 v[52:55], v13, s[32:35], s58 offen sc1")
    a("s_mov_b64 exec, -1\ns_branch L_pub1")
    a("L_gu:")
    a(f"""
    v_add_u32 v9, {G_L}, v15
    s_lshl_b32 s57, s51, 7
    s_add_u32 s57, s57, {XN}
    v_add_u32 v12, s57, v12
    v_lshlrev_b32 v13, 8, v1
    v_lshl_add_u32 v13, v2, 4, v13    ; j*256 + g*16
    s_lshl_b32 s57, s49, 2
    s_add_u32 s57, s57, s52
    s_lshl_b32 s57, s57, 13
    s_lshl_b32 s58, s51, 10
    s_add_u32 s57, s57, s58
    s_lshl_b32 s58, s56, 6
    s_add_u32 s57, s57, s58
    s_add_u32 s57, s57, {GA}
    s_add_u32 s58, s57, {MIR}
    v_and_b32 v10, 2, v1
    v_cmp_ne_u32 s[60:61], 0, v10
    """)
    wait(0x30, 1)
    for k in range(2): a(f"ds_read2_b64 v[{32+4*k}:{35+4*k}], v12 offset0:{8*k} offset1:{8*k+4}")
    wait(0xf, 1)
    stamp(2)
    for m in range(2):
        for k in range(2):
            for t in range(2): a(f"ds_read_b64_tr_b16 v[{16+8*m+4*k+2*t}:{17+8*m+4*k+2*t}], v9 offset:{m*8192+k*4096+t*2048}")
    cflag(2)
    a("s_waitcnt lgkmcnt(0)")
    for k in range(2):
        a(f"v_mfma_f32_16x16x32_bf16 v[48:51], v[{16+4*k}:{19+4*k}], v[{32+4*k}:{35+4*k}], {'0' if k==0 else 'v[48:51]'}")
        a(f"v_mfma_f32_16x16x32_bf16 v[56:59], v[{24+4*k}:{27+4*k}], v[{32+4*k}:{35+4*k}], {'0' if k==0 else 'v[56:59]'}")
    for i in range(4): a(f"v_cndmask_b32 v{48+i}, v{48+i}, v{56+i}, s[60:61]")
    tag(48, 52)
    exmask16(0xf)
    a("buffer_store_dwordx4 v[52:55], v13, s[32:35], s57 offen\nbuffer_store_dwordx4 v[52:55], v13, s[32:35], s58 offen sc1")
    a("s_mov_b64 exec, -1")
    a("L_pub1:")
    stamp(3)

    def poll(loads, soffs, vcnt=0, on_switch=None):
        top, done, nosw = L("p"), L("pd"), L("pn")
        a("s_mov_b32 s59, 0")
        a(f"{top}:")
        for (r, va, si, imm) in loads:
            a(f"buffer_load_dwordx4 v[{r}:{r+3}], v{va}, s[32:35], s{soffs[si]} offen offset:{imm} sc1")
        a(f"s_add_u32 s59, s59, 1\ns_cmp_lg_u32 s59, {cfg.N0}\ns_cbranch_scc1 {nosw}")
        if on_switch: on_switch()
        for s in soffs: a(f"s_add_u32 s{s}, s{s}, {MIR}")
        a(f"{nosw}:\ns_waitcnt vmcnt(0)")
        check([r for (r, _, _, _) in loads])
        a(f"s_cbranch_vccz {done}\ns_cmp_lt_u32 s59, {cfg.NMAX}\ns_cbranch_scc1 {top}\n{done}:")
    def check(regs):
        for k, r in enumerate(regs):
            for i in range(4): a(f"v_xor_b32 v{r+i}, s{45+i}, v{r+i}")
            if k == 0: a(f"v_or3_b32 v5, v{r}, v{r+1}, v{r+2}\nv_or_b32 v5, v5, v{r+3}")
            else: a(f"v_or3_b32 v5, v5, v{r}, v{r+1}\nv_or3_b32 v5, v5, v{r+2}, v{r+3}")
        a("v_and_b32 v5, 0xff, v5\nv_cmp_ne_u32 vcc, 0, v5")

    a("s_cmp_ge_u32 s55, 2\ns_cbranch_scc1 L_noq")
    a(f"""
    s_lshl_b32 s56, s55, 10
    v_add_u32 v13, s56, v7
    s_lshl_b32 s57, s49, 14
    s_lshl_b32 s58, s53, 13
    s_add_u32 s57, s57, s58
    s_add_u32 s57, s57, {QA}
    s_add_u32 s58, s57, 4096
    s_lshl_b32 s56, s55, 1
    v_lshrrev_b32 v14, 5, v0
    v_add_u32 v14, s56, v14
    v_mul_u32_u24 v14, {QBS}, v14
    v_and_b32 v10, 31, v0
    v_lshl_add_u32 v14, v10, 3, v14
    v_add_u32 v14, {QB}, v14
    """)
    poll([(16, 13, 0, 0), (20, 13, 0, 2048), (24, 13, 1, 0), (28, 13, 1, 2048)], [57, 58])
    for i in range(4): a(f"v_add_f32 v{16+i}, v{16+i}, v{20+i}\nv_add_f32 v{24+i}, v{24+i}, v{28+i}")
    for i in range(4): a(f"v_add_f32 v{16+i}, v{16+i}, v{24+i}")
    pack(16, 20, 2)
    a("ds_write_b64 v14, v[20:21]")
    cflag(3)
    a("s_branch L_gdone")
    a("L_noq:\ns_cmp_lg_u32 s55, 2\ns_cbranch_scc1 L_gdone")
    a(f"""
    s_lshl_b32 s57, s49, 2
    s_add_u32 s57, s57, s52
    s_lshl_b32 s57, s57, 13
    s_add_u32 s57, s57, {GA}
    s_add_u32 s58, s57, 4096
    v_mul_u32_u24 v14, {HBS}, v2
    v_lshl_add_u32 v14, v1, 3, v14
    v_add_u32 v14, {HB}, v14
    """)
    poll([(16+4*k, 7, k//4, (k % 4)*1024) for k in range(8)], [57, 58])
    for i in range(4):
        a(f"v_add_f32 v{16+i}, v{16+i}, v{20+i}\nv_add_f32 v{24+i}, v{24+i}, v{28+i}\nv_add_f32 v{32+i}, v{32+i}, v{36+i}\nv_add_f32 v{40+i}, v{40+i}, v{44+i}")
    for i in range(4): a(f"v_add_f32 v{16+i}, v{16+i}, v{24+i}\nv_add_f32 v{32+i}, v{32+i}, v{40+i}")
    for i in range(4): a(f"v_add_f32 v{16+i}, v{16+i}, v{32+i}")
    pack(16, 20, 2)
    a("v_mov_b32 v22, v20\nv_mov_b32 v23, v21\nv_permlane32_swap_b32 v20, v22\nv_permlane32_swap_b32 v21, v23")
    unpack(20, 24, 2)
    unpack(22, 28, 2)
    for i in range(4): a(f"v_mul_f32 v{24+i}, 0xbfb8aa3b, v{24+i}")
    for i in range(4): a(f"v_exp_f32 v{24+i}, v{24+i}")
    for i in range(4): a(f"v_add_f32 v{24+i}, 1.0, v{24+i}")
    for i in range(4): a(f"v_rcp_f32 v{24+i}, v{24+i}")
    pack(24, 20, 2)
    unpack(20, 24, 2)
    for i in range(4): a(f"v_mul_f32 v{24+i}, v{24+i}, v{28+i}")
    pack(24, 20, 2)
    a("s_mov_b64 exec, 0xffffffff\nds_write_b64 v14, v[20:21]\ns_mov_b64 exec, -1")
    a("L_gdone:")
    stamp(4)

    a(f"""
    v_and_b32 v10, 3, v1
    v_mul_u32_u24 v9, {QBS}, v10
    v_lshl_add_u32 v9, v2, 4, v9
    v_add_u32 v9, {QB}, v9
    s_lshl_b32 s56, s55, 13
    v_xor_b32 v12, v1, v2
    v_lshlrev_b32 v12, 4, v12
    v_lshl_add_u32 v12, v1, 8, v12
    v_add_u32 v12, s56, v12
    v_xor_b32 v13, 64, v12
    v_xor_b32 v14, 128, v12
    v_xor_b32 v64, 192, v12
    """)
    wait(0x30, 3)
    for st in range(4): a(f"ds_read_b128 v[{16+4*st}:{19+4*st}], v9 offset:{64*st}")
    wait(0xf, 2)
    stamp(5)
    ka = [12, 13, 14, 64]
    for tt in range(2):
        for st in range(4):
            r = 32 + 16*tt + 4*st
            a(f"ds_read_b128 v[{r}:{r+3}], v{ka[st]} offset:{tt*4096}")
    a(f"""
    v_lshlrev_b32 v9, 5, v10
    v_add_u32 v9, {MX}, v9
    s_lshl_b32 s56, s55, 2
    v_add_u32 v12, s56, v9
    s_waitcnt lgkmcnt(0)
    """)
    for st in range(4):
        for tt in range(2):
            r = 32 + 16*tt + 4*st; d = 64 + 4*tt
            a(f"v_mfma_f32_16x16x32_bf16 v[{d}:{d+3}], v[{r}:{r+3}], v[{16+4*st}:{19+4*st}], {'0' if st==0 else f'v[{d}:{d+3}]'}")
    a(f"""
    s_lshl_b32 s56, s55, 8
    v_lshlrev_b32 v13, 6, v2
    v_lshl_add_u32 v13, v10, 4, v13
    v_add_u32 v13, {PB}, v13
    v_add_u32 v14, s56, v13
    """)
    pack(64, 32, 4)
    unpack(32, 36, 4)
    for i in range(8): a(f"v_mul_f32 v{36+i}, 0x3db504f3, v{36+i}")
    pack(36, 32, 4)
    unpack(32, 36, 4)
    a("""
    v_max3_f32 v52, v36, v37, v38
    v_max3_f32 v53, v39, v40, v41
    v_max3_f32 v52, v52, v42, v43
    v_max_f32 v52, v52, v53
    v_mov_b32 v53, v52
    v_permlane16_swap_b32 v52, v53
    v_max_f32 v52, v52, v53
    v_mov_b32 v53, v52
    v_permlane32_swap_b32 v52, v53
    v_max_f32 v52, v52, v53
    s_mov_b64 exec, 15
    ds_write_b32 v12, v52
    """)
    a("v_mov_b32 v5, 4\ns_mov_b64 exec, 1\nds_write_b32 v6, v5\ns_mov_b64 exec, -1")
    wait(0xff0, 4)
    a(f"""
    ds_read_b128 v[44:47], v9
    ds_read_b128 v[48:51], v9 offset:16
    s_mov_b32 s56, {LOG2E}
    s_waitcnt lgkmcnt(0)
    v_max3_f32 v52, v44, v45, v46
    v_max3_f32 v53, v47, v48, v49
    v_max3_f32 v52, v52, v50, v51
    v_max_f32 v52, v52, v53           ; m
    v_mul_f32 v53, s56, v52
    """)
    for i in range(8): a(f"v_fma_f32 v{36+i}, v{36+i}, s56, -v53")
    for i in range(8): a(f"v_exp_f32 v{36+i}, v{36+i}")
    pack(36, 32, 4)
    exmask16(0xf)
    a("ds_write_b128 v14, v[32:35]")
    a("v_mov_b32 v5, 5\ns_mov_b64 exec, 1\nds_write_b32 v6, v5\ns_mov_b64 exec, -1")
    a(f"""
    v_and_b32 v9, 7, v8
    v_xor_b32 v9, s55, v9
    v_lshlrev_b32 v9, 5, v9
    v_add_u32 v9, v9, v11
    v_lshl_add_u32 v9, v8, 8, v9
    v_add_u32 v9, {V_L}, v9
    v_lshlrev_b32 v12, 14, v1
    v_lshl_add_u32 v12, v2, 4, v12    ; o publish: head*16384 + g*16
    s_lshl_b32 s56, s49, 16
    s_lshl_b32 s57, s50, 9
    s_add_u32 s56, s56, s57
    s_lshl_b32 s57, s55, 6
    s_add_u32 s56, s56, s57
    s_add_u32 s56, s56, {OA}          ; o publish soffset (near)
    s_add_u32 s63, s56, {MIR}
    """)
    if cfg.pretouch:
        exmask16(0xf)
        a("buffer_load_dword v123, v12, s[32:35], s56 offen\ns_mov_b64 exec, -1")
    wait(0xff0, 5)
    for kb in range(8): a(f"ds_read_b128 v[{16+4*kb}:{19+4*kb}], v13 offset:{kb*256}")
    a("s_waitcnt lgkmcnt(0)")
    stamp(6)
    a("s_cmp_lg_u32 s55, 3\ns_cbranch_scc1 L_nol")
    for i in range(4): a(f"v_mov_b32 v{56+i}, 0x3f803f80")
    for kb in range(8):
        a(f"v_mfma_f32_16x16x32_bf16 v[60:63], v[56:59], v[{16+4*kb}:{19+4*kb}], {'0' if kb==0 else 'v[60:63]'}")
    a(f"""
    v_lshlrev_b32 v13, 9, v0
    s_lshl_b32 s57, s49, 11
    s_lshl_b32 s58, s50, 4
    s_add_u32 s57, s57, s58
    s_add_u32 s57, s57, {MA}
    s_add_u32 s58, s57, {MIR}
    v_mov_b32 v56, v52
    v_mov_b32 v57, v60
    v_mov_b32 v58, 0
    v_mov_b32 v59, 0
    """)
    tag(56, 60)
    a("s_mov_b64 exec, 15\nbuffer_store_dwordx4 v[60:63], v13, s[32:35], s57 offen\nbuffer_store_dwordx4 v[60:63], v13, s[32:35], s58 offen sc1\ns_mov_b64 exec, -1")
    a("L_nol:")
    a(f"""
    v_lshrrev_b32 v10, 3, v0          ; ss
    v_and_b32 v14, 7, v0              ; gi
    v_lshlrev_b32 v13, 4, v10
    v_lshlrev_b32 v10, 9, v10
    v_lshl_add_u32 v10, v14, 4, v10
    s_lshr_b32 s60, s55, 2            ; b'
    s_and_b32 s61, s55, 3             ; dq
    s_lshl_b32 s57, s49, 2
    s_add_u32 s57, s57, s52           ; 4h+rg
    s_lshl_b32 s58, s57, 1
    s_add_u32 s58, s58, s60           ; (4h+rg)*2 + b'
    s_lshl_b32 s57, s58, 8
    s_add_u32 s57, s57, {MA}
    s_lshl_b32 s58, s58, 13
    s_lshl_b32 s62, s61, 7
    s_add_u32 s58, s58, s62
    s_add_u32 s58, s58, {OA}          ; o soffset
    s_add_u32 s62, s58, 4096
    s_mul_i32 s60, s60, {OBS}
    s_lshl_b32 s61, s61, 6
    s_add_u32 s60, s60, s61
    s_add_u32 s60, s60, {OB}
    v_lshlrev_b32 v14, 3, v14
    v_lshl_add_u32 v14, v2, 1, v14
    v_add_u32 v14, s60, v14
    """)
    def pv(m):
        for kk in range(2):
            kb = 2*m + kk
            for t in range(2):
                r = 64 + 4*kk + 2*t
                a(f"ds_read_b64_tr_b16 v[{r}:{r+1}], v9 offset:{kb*8192+t*4096}")
        for kk in range(2):
            kb = 2*m + kk
            a(f"s_waitcnt lgkmcnt({2 if kk == 0 and not cfg.diag else 0})")
            a(f"v_mfma_f32_16x16x32_bf16 v[72:75], v[{64+4*kk}:{67+4*kk}], v[{16+4*kb}:{19+4*kb}], {'0' if kb==0 else 'v[72:75]'}")
    for m in range(3):
        wait(0xf, 3+m)
        pv(m)
    a("buffer_load_dwordx4 v[80:83], v13, s[32:35], s57 offen sc1\nbuffer_load_dwordx4 v[84:87], v13, s[32:35], s57 offen offset:128 sc1")
    stamp(7)
    a("s_barrier")
    stamp(8)
    pv(3)
    tag(72, 76)
    exmask16(0xf)
    a("buffer_store_dwordx4 v[76:79], v12, s[32:35], s56 offen\ns_mov_b64 exec, -1")
    a("s_waitcnt vmcnt(1)")
    check([80, 84])
    a("s_mov_b32 s61, 0\ns_cbranch_vccz L_mlok")
    def far_o():
        a("s_cmp_lg_u32 s61, 0\ns_cbranch_scc1 L_fo%d" % lab[0])
        exmask16(0xf)
        a("buffer_store_dwordx4 v[76:79], v12, s[32:35], s63 offen sc1\ns_mov_b64 exec, -1\ns_mov_b32 s61, 1\nL_fo%d:" % lab[0])
    poll([(80, 13, 0, 0), (84, 13, 0, 128)], [57], on_switch=far_o)
    a("L_mlok:")
    a(f"""
    s_mov_b32 s60, {LOG2E}
    v_max_f32 v88, v80, v84
    v_max_f32_dpp v88, v88, v88 row_ror:8 row_mask:0xf bank_mask:0xf
    v_mov_b32 v89, v88
    v_permlane16_swap_b32 v88, v89
    v_max_f32 v88, v88, v89
    v_mov_b32 v89, v88
    v_permlane32_swap_b32 v88, v89
    v_max_f32 v88, v88, v89
    v_sub_f32 v80, v80, v88
    v_sub_f32 v84, v84, v88
    v_mul_f32 v80, s60, v80
    v_mul_f32 v84, s60, v84
    v_exp_f32 v80, v80
    v_exp_f32 v84, v84
    v_mul_f32 v88, v80, v81
    v_fmac_f32 v88, v84, v85
    v_add_f32_dpp v88, v88, v88 row_ror:8 row_mask:0xf bank_mask:0xf
    v_mov_b32 v89, v88
    v_permlane16_swap_b32 v88, v89
    v_add_f32 v88, v88, v89
    v_mov_b32 v89, v88
    v_permlane32_swap_b32 v88, v89
    v_add_f32 v88, v88, v89
    v_rcp_f32 v88, v88
    v_mul_f32 v80, v80, v88
    v_mul_f32 v84, v84, v88
    """)
    poll([(16, 10, 0, 0), (20, 10, 1, 0)], [58, 62], on_switch=far_o)
    stamp(9)
    for i in range(4): a(f"v_mul_f32 v{16+i}, v{16+i}, v80")
    for i in range(4): a(f"v_fmac_f32 v{16+i}, v{20+i}, v84")
    def reduce_scatter(r):
        a(f"""
        v_permlane32_swap_b32 v{r}, v{r+2}
        v_permlane32_swap_b32 v{r+1}, v{r+3}
        v_add_f32 v{r}, v{r}, v{r+2}
        v_add_f32 v{r+1}, v{r+1}, v{r+3}
        v_permlane16_swap_b32 v{r}, v{r+1}
        v_add_f32 v{r}, v{r}, v{r+1}
        v_add_f32_dpp v{r}, v{r}, v{r} row_ror:8 row_mask:0xf bank_mask:0xf
        """)
    reduce_scatter(16)
    a("v_cvt_pk_bf16_f32 v16, v16, v16\nds_write_b16 v14, v16")
    a("s_cmp_lg_u32 s61, 0\ns_cbranch_scc1 L_fdone")
    exmask16(0xf)
    a("buffer_store_dwordx4 v[76:79], v12, s[32:35], s63 offen sc1\ns_mov_b64 exec, -1\nL_fdone:")
    a(f"""
    v_and_b32 v10, 1, v1
    v_mul_u32_u24 v12, {OBS}, v10
    v_lshl_add_u32 v12, v2, 3, v12
    v_add_u32 v12, {OB}, v12
    v_mul_u32_u24 v13, {HBS}, v10
    v_lshl_add_u32 v13, v2, 3, v13
    v_add_u32 v13, {HB}, v13
    v_add_u32 v9, {WO_L}, v15
    v_lshlrev_b32 v14, 14, v10
    v_bfe_u32 v10, v1, 1, 1
    v_lshl_add_u32 v14, v10, 6, v14
    v_lshl_add_u32 v14, v2, 4, v14    ; b*16384 + kind*64 + g*16
    v_cmp_ne_u32 s[60:61], 0, v10
    s_lshl_b32 s56, s51, 15
    s_lshl_b32 s57, s55, 12
    s_add_u32 s56, s56, s57
    s_lshl_b32 s57, s49, 2
    s_add_u32 s57, s57, s52
    s_lshl_b32 s57, s57, 7
    s_add_u32 s56, s56, s57
    s_add_u32 s56, s56, {FR}
    s_waitcnt lgkmcnt(0)
    s_barrier
    """)
    stamp(10)
    a("s_cmp_ge_u32 s55, 4\ns_cbranch_scc1 L_final")
    for k in range(4): a(f"ds_read2_b64 v[{40+4*k}:{43+4*k}], v12 offset0:{8*k} offset1:{8*k+4}")
    for k in range(4):
        for t in range(2): a(f"ds_read_b64_tr_b16 v[{16+4*k+2*t}:{17+4*k+2*t}], v9 offset:{k*4096+t*2048}")
    for k in range(2): a(f"ds_read2_b64 v[{56+4*k}:{59+4*k}], v13 offset0:{8*k} offset1:{8*k+4}")
    for k in range(2):
        for t in range(2): a(f"ds_read_b64_tr_b16 v[{32+4*k+2*t}:{33+4*k+2*t}], v9 offset:{16384+k*4096+t*2048}")
    a(f"s_waitcnt lgkmcnt({0 if cfg.diag else 6})")
    for k in range(4):
        a(f"v_mfma_f32_16x16x32_bf16 v[64:67], v[{16+4*k}:{19+4*k}], v[{40+4*k}:{43+4*k}], {'0' if k==0 else 'v[64:67]'}")
    a("s_waitcnt lgkmcnt(0)")
    for k in range(2):
        a(f"v_mfma_f32_16x16x32_bf16 v[68:71], v[{32+4*k}:{35+4*k}], v[{56+4*k}:{59+4*k}], {'0' if k==0 else 'v[68:71]'}")
    for i in range(4): a(f"v_cndmask_b32 v{64+i}, v{64+i}, v{68+i}, s[60:61]")
    tag(64, 68)
    exmask16(0xf)
    a("buffer_store_dwordx4 v[68:71], v14, s[32:35], s56 offen sc1")
    stamp(11)
    dump_stamps(12)
    a("s_endpgm")
    a("L_final:\ns_cmp_lg_u32 s55, 4\ns_cbranch_scc1 L_fin_exit\ns_cmp_ge_u32 s2, 64\ns_cbranch_scc1 L_fin_exit")
    a(f"s_lshl_b32 s57, s2, 12\ns_add_u32 s57, s57, {FR}\ns_mov_b32 s59, 0")
    a("L_fp:")
    for k in range(4): a(f"buffer_load_dwordx4 v[{16+4*k}:{19+4*k}], v7, s[32:35], s57 offen offset:{k*1024} sc1")
    a("s_add_u32 s59, s59, 1\ns_waitcnt vmcnt(0)")
    check([16, 20, 24, 28])
    a(f"s_cbranch_vccz L_fok\ns_cmp_lt_u32 s59, {cfg.NMAX}\ns_cbranch_scc1 L_fp\nL_fok:")
    stamp(11)
    for i in range(4): a(f"v_add_f32 v{16+i}, v{16+i}, v{20+i}\nv_add_f32 v{24+i}, v{24+i}, v{28+i}")
    for i in range(4): a(f"v_add_f32 v{16+i}, v{16+i}, v{24+i}")
    reduce_scatter(16)
    a(f"""
    v_mov_b32_dpp v17, v16 row_ror:4 row_mask:0xf bank_mask:0xf
    """)
    rbf(16); rbf(17)
    a(f"""
    v_mul_f32 v18, 0xbfb8aa3b, v17
    v_exp_f32 v18, v18
    v_lshlrev_b32 v121, 16, v121
    v_add_f32 v18, 1.0, v18
    v_rcp_f32 v18, v18
    s_lshr_b32 s56, s2, 3
    v_mul_f32 v17, v17, v18
    """)
    rbf(17)
    a("v_mul_f32 v16, v16, v17")
    rbf(16)
    a("v_add_f32 v16, v121, v16\nv_cvt_pk_bf16_f32 v16, v16, v16")
    a(f"""
    s_lshl_b32 s56, s56, 6
    s_and_b32 s57, s2, 3
    s_lshl_b32 s57, s57, 4
    s_add_u32 s56, s56, s57
    s_bfe_u32 s57, s2, 0x10002
    s_lshl_b32 s57, s57, 9
    s_add_u32 s56, s56, s57
    s_lshl_b32 s61, s56, 1
    """)
    exmask16(0xf)
    a("buffer_store_short v16, v120, s[40:43], s61 offen")
    a("s_cmp_lg_u32 s2, 0\ns_cbranch_scc1 L_fin_exit\nv_mov_b32 v16, s44\nv_mov_b32 v17, 0\ns_mov_b64 exec, 1\nbuffer_store_dword v16, v17, s[32:35], 0 offen sc1")
    a("L_fin_exit:")
    stamp(12)
    dump_stamps(13)
    a("L_exit:\ns_endpgm\nL_codeend:")
    body = a.text()
    head = f"""; Fused decode step: layernorm -> (q projection, sliding-window GQA attention, o projection) gated by a GLU branch.
; @launch grid=(256,1,1) block=(768,1,1) lds=163840
.amdgcn_target "amdgcn-amd-amdhsa--gfx950"
.text
.globl {NAME}
.p2align 8
.type {NAME},@function
{NAME}:
"""
    tail = f"""
.section .rodata,"a"
.p2align 6
.amdhsa_kernel {NAME}
  .amdhsa_next_free_vgpr 128
  .amdhsa_next_free_sgpr 96
  .amdhsa_accum_offset 128
  .amdhsa_group_segment_fixed_size 0
  .amdhsa_kernarg_size 96
  .amdhsa_user_sgpr_count 2
  .amdhsa_user_sgpr_kernarg_segment_ptr 1
  .amdhsa_system_sgpr_workgroup_id_x 1
  .amdhsa_float_denorm_mode_32 3
.end_amdhsa_kernel
"""
    return head + body + tail

if __name__ == "__main__":
    kw = {}
    out = "recurrent_scan__sliding_block_cached__glu_gated_glu__decode.s"
    for arg in sys.argv[1:]:
        if arg.startswith("out="): out = arg[4:]; continue
        k, v = arg.split("=")
        try: v = eval(v)
        except Exception: pass
        kw[k] = v
    open(out, "w").write(gen(Cfg(**kw)))
    print("wrote", out)
```

```python
import sys
from asmlib import Asm

NAME = "recurrent_scan__sliding_block_cached__glu_gated_glu__decode_kernel"

K_L, V_L = 0, 65536
WQ_L, G_L, U_L = 98304, 114688, 122880
WO_L, DN_L = 131072, 147456
SM = 155648
FLAGS, MX, HB, OB, QB, XN, PB = SM, SM+64, SM+256, SM+640, SM+1280, SM+2560, SM+4864
HBS, OBS, QBS, XNS = 192, 320, 320, 1088
QA, GA, MA, OA, MIR, FR, DIAG = 0x10000, 0x30000, 0x70000, 0x80000, 0x100000, 0x200000, 0x400000
WS_BYTES = 0x800000
LOG2E = "0x3fb8aa3b"
OOB = 0x40000000
M_WQ, M_GU, M_K, M_V1, M_V2, M_V3, M_END = 1, 2, 3, 4, 5, 6, 7
C_XN, C_TILE, C_Q, C_MAX, C_P, C_PUB, C_H = 1, 2, 3, 4, 5, 6, 7

class Cfg:
    D = 6
    D0 = None
    diag = False
    N0 = 400
    NMAX = 400000
    perm = "s"
    pf = 'c'
    safe = True
    pol = 'nt'
    prio = 2
    kvmap = 'contig'
    fmode = 'plain'
    near_pol = ''
    preout = False
    pre1 = False
    pretouch = False
    fst = 'sc1'
    fld = 'sc1'
    preF = 'start'
    preFpol = 'sc1'
    fr = FR
    streamonly = False
    amp = None
    def __init__(self, **kw):
        for k, v in kw.items():
            assert hasattr(self, k), k
            setattr(self, k, v)

def gen(cfg):
    a = Asm()
    incompute = [False]
    def stamp(i):
        if cfg.diag == 2 and incompute[0] and 1 <= i <= 6: return
        if cfg.diag: a(f"s_memrealtime s[{64+2*i}:{65+2*i}]")
    def tstamp(i):
        if cfg.diag == 2: a(f"s_memrealtime s[{64+2*i}:{65+2*i}]")
    def dump_stamps(n):
        if not cfg.diag or cfg.amp: return
        a("s_waitcnt lgkmcnt(0)")
        a("s_mov_b64 exec, -1")
        a("v_mov_b32 v125, 0")
        for i in range(n):
            a(f"v_writelane_b32 v125, s{64+2*i}, {i}")
        a(f"s_mul_i32 s62, s2, {12*64}\ns_lshl_b32 s63, s3, 6\ns_add_u32 s62, s62, s63\ns_add_u32 s62, s62, {DIAG}")
        a("v_lshlrev_b32 v124, 2, v0\ns_mov_b64 exec, 0xffff")
        a("buffer_store_dword v125, v124, s[32:35], s62 offen")
    def srd_tail(r, n):
        a(f"s_mov_b32 s{r+2}, {n}\ns_mov_b32 s{r+3}, 0x20000")
    def exmask16(m):
        v = hex(m | (m << 16)); a(f"s_mov_b32 exec_lo, {v}\ns_mov_b32 exec_hi, {v}")
    lab = [0]
    def L(p):
        lab[0] += 1
        return f"L{p}{lab[0]}"
    def spin(vdst, vaddr, mask, val, body=None):
        w = L("w")
        if cfg.safe: a("s_mov_b32 s94, 0")
        a(f"{w}:\nds_read_b32 v{vdst}, v{vaddr}")
        if cfg.safe: a(f"s_add_u32 s94, s94, 1\ns_bitcmp1_b32 s94, 20\ns_cbranch_scc1 {w}x")
        a("s_waitcnt lgkmcnt(0)")
        if body: body()
        a(f"v_cmp_gt_u32 vcc, {val}, v{vdst}")
        if mask is not None: a(f"s_and_b64 vcc, vcc, {hex(mask)}")
        a(f"s_cbranch_vccnz {w}")
        if cfg.safe: a(f"{w}x:\ns_waitcnt lgkmcnt(0)")
    NP = cfg.near_pol
    def code_prefetch(vt, v16, dst):
        a(f"""
        s_getpc_b64 s[60:61]
L_pc:
        s_sub_u32 s60, s60, L_pc-{NAME}
        s_subb_u32 s61, s61, 0
        s_lshl_b32 s58, s51, 10
        v_add_u32 v{vt}, s58, v{v16}
        v_cmp_gt_u32 vcc, L_codeend-{NAME}, v{vt}
        s_and_saveexec_b64 s[58:59], vcc
        s_cbranch_execz L_nopf2
        global_load_dwordx4 v[{dst}:{dst+3}], v{vt}, s[60:61]
L_nopf2:
        s_mov_b64 exec, -1
        v_add_u32 v{vt}, 8192, v{vt}
        v_cmp_gt_u32 vcc, L_codeend-{NAME}, v{vt}
        s_and_saveexec_b64 s[58:59], vcc
        s_cbranch_execz L_nopf3
        global_load_dwordx4 v[{dst+4}:{dst+7}], v{vt}, s[60:61]
L_nopf3:
        s_mov_b64 exec, -1
        """)

    a(f"""
    s_cmp_ge_u32 s2, 256
    s_cbranch_scc1 L_exit
    v_lshrrev_b32 v1, 6, v0
    v_and_b32 v0, 63, v0
    v_lshlrev_b32 v4, 2, v0
    v_readfirstlane_b32 s3, v1    ; wave
    v_add_u32 v4, {FLAGS}, v4
    v_mov_b32 v5, 0
    s_and_b32 s49, s2, 7          ; h
    s_lshr_b32 s50, s2, 3         ; j
    s_cmp_lg_u32 s3, 0
    s_cbranch_scc1 L_noinit
    s_mov_b64 exec, 0xffff
    ds_write_b32 v4, v5           ; progress flags start at zero
    s_mov_b64 exec, -1
L_noinit:
    s_and_b32 s51, s50, 7         ; cg
    s_lshr_b32 s52, s50, 3        ; rg
    s_lshr_b32 s53, s50, 4        ; b
    s_and_b32 s54, s50, 15        ; split
    s_cmp_ge_u32 s3, 4
    s_cbranch_scc1 L_compute
    """)
    a("""
    s_load_dwordx2 s[12:13], s[0:1], 24
    s_load_dwordx2 s[20:21], s[0:1], 48
    s_load_dwordx2 s[24:25], s[0:1], 56
    s_load_dwordx2 s[4:5], s[0:1], 8
    s_load_dwordx2 s[8:9], s[0:1], 16
    s_load_dwordx2 s[28:29], s[0:1], 64
    s_load_dwordx2 s[16:17], s[0:1], 32
    """)
    stamp(0)
    if cfg.pf == 'l':
        a("s_cmp_lg_u32 s3, 3\ns_cbranch_scc1 L_nopf\nv_lshlrev_b32 v30, 4, v0")
        code_prefetch(31, 30, 32)
        a("L_nopf:")
    srd_tail(12, 4 << 20); srd_tail(20, 512*1792*2); srd_tail(24, 512*1792*2)
    srd_tail(4, 128 << 20); srd_tail(8, 128 << 20); srd_tail(28, 512*1792*2); srd_tail(16, 4 << 20)
    a(f"""
    v_lshrrev_b32 v1, 3, v0            ; r = l>>3
    v_bfe_u32 v2, v0, 1, 2             ; (l&7)>>1
    v_bfe_u32 v3, v0, 4, 2             ; (l>>4)&3
    v_xor_b32 v2, v2, v3
    v_lshlrev_b32 v2, 5, v2
    v_and_b32 v4, 1, v0
    v_lshl_add_u32 v2, v4, 4, v2
    v_lshl_add_u32 v10, v1, 13, v2     ; wq: row stride 8192
    v_mul_u32_u24 v5, 3584, v1
    v_add_u32 v11, v5, v2              ; gate/up: row stride 3584
    v_lshl_add_u32 v12, v1, 10, v2     ; wo/down: row stride 1024
    s_lshl_b32 s55, s52, 4
    s_add_u32 s55, s55, s3
    s_lshl_b32 s55, s55, 16
    s_lshl_b32 s56, s49, 10
    s_lshl_b32 s57, s51, 7
    s_add_u32 s55, s55, s56
    s_add_u32 s55, s55, s57
    s_lshl_b32 s58, s52, 3
    s_add_u32 s58, s58, s49            ; u
    s_cmp_ge_u32 s58, 28
    s_cselect_b32 s59, {OOB}, 0
    s_lshl_b32 s56, s51, 3
    s_add_u32 s56, s56, s3
    s_mul_i32 s56, s56, {8*3584}
    s_lshl_b32 s60, s58, 7
    s_add_u32 s56, s56, s60
    s_add_u32 s56, s56, s59
    s_lshl_b32 s61, s3, 10             ; lw*1024
    s_add_u32 m0, s61, {WQ_L}
    s_waitcnt lgkmcnt(0)
    """)
    stamp(6)
    n = [0]
    D = cfg.D
    D0 = cfg.D0 or D
    landed = [0]
    miles = {}
    def flag(val):
        a(f"v_mov_b32 v21, {val}\ns_mov_b64 exec, 1\nds_write_b32 v20, v21\ns_mov_b64 exec, -1")
    def pre_issue():
        i = n[0]
        if i >= D0:
            want = i - D + 1
            if want > landed[0]:
                a(f"s_waitcnt vmcnt({i - want})")
                landed[0] = want
    def post_issue():
        n[0] += 1
        for k in sorted(miles):
            if k <= landed[0]: miles.pop(k)()
    miles[1] = lambda: stamp(7)
    miles[4] = lambda: flag(M_WQ)
    miles[8] = lambda: flag(M_GU)
    miles[24] = lambda: (flag(M_K), stamp(5))
    miles[28] = lambda: flag(M_V1)
    miles[32] = lambda: flag(M_V2)
    miles[36] = lambda: flag(M_V3)
    def setup_rest():
        a(f"""
        v_lshrrev_b32 v1, 4, v0
        v_and_b32 v2, 15, v0
        v_xor_b32 v3, v2, v1
        v_lshlrev_b32 v3, 4, v3
        v_lshl_add_u32 v13, v1, 8, v3
        v_xor_b32 v14, 64, v13
        v_xor_b32 v15, 128, v13
        v_xor_b32 v16, 192, v13
        v_lshrrev_b32 v3, 1, v2
        v_xor_b32 v3, v3, v1
        v_lshlrev_b32 v3, 5, v3
        v_and_b32 v4, 1, v0
        v_lshl_add_u32 v3, v4, 4, v3
        v_lshl_add_u32 v17, v1, 8, v3
        v_xor_b32 v18, 128, v17
        s_lshl_b32 s62, s53, 3
        s_add_u32 s62, s62, s49
        s_lshl_b32 s62, s62, 23            ; (b*8+h) * 8MB
        s_add_u32 s62, s62, {28672*256}
        """)
        contig = cfg.kvmap == 'contig'
        a(f"s_lshl_b32 s63, s54, {16 if contig else 12}\ns_add_u32 s62, s62, s63")
        if cfg.perm == "s": a("s_xor_b32 s63, s3, s54")
        elif cfg.perm == "none": a("s_mov_b32 s63, s3")
        elif cfg.perm == "sh": a("s_add_u32 s63, s54, s49\ns_and_b32 s63, s63, 15\ns_xor_b32 s63, s63, s3")
        elif cfg.perm == "hb": a("s_lshl_b32 s63, s53, 3\ns_add_u32 s63, s63, s49\ns_xor_b32 s63, s63, s3")
        a(f"""
        s_lshl_b32 s63, s63, {12 if contig else 16}
        s_add_u32 s62, s62, s63
        s_lshl_b32 s63, s49, 2
        s_add_u32 s63, s63, s52
        s_lshl_b32 s63, s63, 4
        s_add_u32 s63, s63, s3
        s_lshl_b32 s63, s63, 13
        s_add_u32 s63, s63, s57
        s_lshl_b32 s60, s58, 3
        s_add_u32 s60, s60, s3
        s_lshl_b32 s60, s60, 13
        s_add_u32 s60, s60, s57
        s_add_u32 s60, s60, s59
        s_lshl_b32 s58, s3, 2
        s_add_u32 s58, s58, {FLAGS}
        v_mov_b32 v20, s58
        v_lshlrev_b32 v22, 2, v2
        v_add_u32 v22, {FLAGS}, v22
        s_lshl_b32 s58, s3, 12             ; lw*4096
        """)
    setup_done = [False]; barrier_done = [False]
    def maybe_setup():
        if not setup_done[0] and n[0] == min(D0, 8):
            setup_rest(); setup_done[0] = True
        if not barrier_done[0] and n[0] == D0:
            a("s_barrier"); stamp(1); barrier_done[0] = True
    def wseg(srd, v, soff, step, cnt, ldsbase, first=False):
        for i in range(cnt):
            maybe_setup()
            if i == 0:
                if not first: a(f"s_add_u32 m0, s61, {ldsbase}")
                so = f"s{soff}"
            else:
                a(f"s_add_u32 m0, m0, 4096\ns_add_u32 s46, s{soff}, {i*step}")
                so = "s46"
            pre_issue()
            a(f"buffer_load_dwordx4 v{v}, s[{srd}:{srd+3}], {so} offen {cfg.pol} lds")
            post_issue()
    wseg(12, 10, 55, 32*8192, 4, WQ_L, first=True)
    wseg(20, 11, 56, 32*3584, 2, G_L)
    wseg(24, 11, 56, 32*3584, 2, U_L)
    def kvseg(srd, regs, ldsbase, isv):
        for i in range(4):
            if isv and i == 2 and not cfg.streamonly:
                spin(23, 22, 0xff0, C_TILE)
            maybe_setup()
            a(f"s_add_u32 m0, s58, {ldsbase + i*16384}")
            if i == 0: so = "s62"
            else:
                a(f"s_xor_b32 s46, s62, {i*16384*(1 if cfg.kvmap == 'contig' else 16)}"); so = "s46"
            for cc in range(4):
                maybe_setup()
                pre_issue()
                a(f"buffer_load_dwordx4 v{regs[cc % len(regs)]}, s[{srd}:{srd+3}], {so} offen offset:{cc*1024} {cfg.pol} lds")
                post_issue()
    kvseg(4, [13, 14, 15, 16], K_L, False)
    kvseg(8, [17, 18], V_L, True)
    assert barrier_done[0]
    stamp(2)
    wseg(28, 12, 60, 32*1024, 2, DN_L)
    wseg(16, 12, 63, 32*1024, 4, WO_L)
    assert n[0] == 46
    for k in sorted(miles):
        a(f"s_waitcnt vmcnt({46-k})"); miles[k]()
    a("s_waitcnt vmcnt(6)")
    stamp(3)
    a("s_barrier")
    a("s_waitcnt vmcnt(0)")
    flag(M_END)
    stamp(4)
    if cfg.diag:
        a("s_load_dwordx2 s[32:33], s[0:1], 88"); srd_tail(32, WS_BYTES)
        dump_stamps(8)
    a("s_endpgm")

    a("L_compute:")
    incompute[0] = True
    a("""
    s_load_dwordx2 s[36:37], s[0:1], 0
    s_load_dwordx2 s[32:33], s[0:1], 88
    s_load_dwordx2 s[40:41], s[0:1], 72
    """)
    stamp(0)
    a("s_barrier")
    if cfg.streamonly and cfg.pf != 'c': a("s_endpgm")
    if cfg.prio: a(f"s_setprio {cfg.prio}")
    srd_tail(36, 2048); srd_tail(32, WS_BYTES); srd_tail(40, 2048)
    a(f"""
    s_sub_u32 s55, s3, 4
    v_lshlrev_b32 v7, 4, v0           ; l*16
    s_lshl_b32 s56, s55, 10
    s_cmp_ge_u32 s55, 2
    s_waitcnt lgkmcnt(0)
    s_load_dword s44, s[32:33], 0
    s_cbranch_scc1 L_nox
    buffer_load_dwordx4 v[16:19], v7, s[36:39], s56 offen
L_nox:
    v_and_b32 v1, 15, v0              ; J
    v_lshrrev_b32 v2, 4, v0           ; G
    v_and_b32 v120, 3, v0
    v_lshl_add_u32 v120, v120, 2, v2
    v_lshlrev_b32 v120, 1, v120       ; final stage: byte offset of this lane's column
    s_cmp_lg_u32 s55, 4
    s_cbranch_scc1 L_noxr
    s_lshr_b32 s56, s2, 3             ; cg'
    s_lshl_b32 s56, s56, 6
    s_and_b32 s58, s2, 3
    s_lshl_b32 s58, s58, 4
    s_add_u32 s56, s56, s58
    s_bfe_u32 s58, s2, 0x10002
    s_lshl_b32 s58, s58, 9
    s_add_u32 s56, s56, s58           ; element index of first column
    s_lshl_b32 s31, s56, 1
    buffer_load_ushort v121, v120, s[36:39], s31 offen
    """)
    def touchF():
        if cfg.preF == 'other': a("s_add_u32 s30, s2, 4\ns_and_b32 s30, s30, 63")
        else: a("s_mov_b32 s30, s2")
        a(f"s_cmp_ge_u32 s2, 64\ns_cbranch_scc1 L_noF\ns_lshl_b32 s30, s30, 12\ns_add_u32 s30, s30, {cfg.fr}\nv_lshlrev_b32 v118, {6 if cfg.preF != 'tlb' else 0}, v0\nbuffer_load_dword v119, v118, s[32:35], s30 offen {cfg.preFpol}\nL_noF:")
    if cfg.preout: a("buffer_load_ushort v119, v120, s[40:43], s31 offen")
    if cfg.preF in ('start', 'tlb', 'other'): touchF()
    a(f"""
L_noxr:
    """)
    if cfg.pf == 'c':
        a("s_cmp_lg_u32 s55, 7\ns_cbranch_scc1 L_nopf")
        code_prefetch(122, 7, 112)
        a("L_nopf:")
    if cfg.streamonly: a("s_endpgm")
    a(f"""
    v_lshlrev_b32 v4, 2, v1
    v_add_u32 v4, {FLAGS}, v4
    s_lshl_b32 s56, s55, 2
    s_add_u32 s56, s56, {FLAGS+16}
    v_mov_b32 v6, s56
    v_mov_b32 v3, 0xffffff00
    s_lshl_b32 s62, s49, 2
    s_add_u32 s62, s62, s52           ; 4h+rg
    s_and_b32 s56, s55, 3             ; mt
    v_lshrrev_b32 v8, 2, v1
    v_lshl_add_u32 v8, v2, 2, v8      ; r
    v_bfe_u32 v9, v8, 1, 2
    v_xor_b32 v9, s56, v9
    v_lshlrev_b32 v9, 5, v9
    v_and_b32 v10, 3, v1
    v_lshlrev_b32 v11, 3, v10         ; (i&3)*8
    v_add_u32 v9, v9, v11
    v_lshl_add_u32 v15, v8, 7, v9     ; vT
    v_and_b32 v10, 1, v1
    v_mul_u32_u24 v12, {XNS}, v10
    v_lshl_add_u32 v12, v2, 3, v12    ; (j&1)*XNS + g*8
    ; first publish slot: q partial (cw<4) or gate/up partial
    s_lshl_b32 s57, s49, 14
    s_lshl_b32 s58, s52, 11
    s_add_u32 s57, s57, s58
    s_lshl_b32 s58, s51, 8
    s_add_u32 s57, s57, s58
    s_add_u32 s57, s57, {QA}
    s_lshl_b32 s58, s62, 13
    s_lshl_b32 s59, s51, 10
    s_add_u32 s58, s58, s59
    s_add_u32 s58, s58, {GA}
    s_lshl_b32 s59, s52, 8
    s_lshl_b32 s60, s51, 7
    s_cmp_lt_u32 s55, 4
    s_cselect_b32 s57, s57, s58
    s_cselect_b32 s59, s59, s60
    s_mov_b32 s60, {WQ_L}
    s_cselect_b32 s60, s60, {G_L}
    s_cselect_b32 s61, 13, 8
    s_mov_b32 s63, 0x00030003
    s_cselect_b32 s63, s63, 0x000f000f
    s_lshl_b32 s56, s56, 6
    s_add_u32 s57, s57, s56           ; publish soffset (near)
    s_add_u32 s59, s59, {XN}
    v_add_u32 v12, s59, v12
    v_add_u32 v9, s60, v15
    v_lshlrev_b32 v13, s61, v1
    v_lshl_add_u32 v13, v2, 4, v13    ; publish voffset
    """)
    if cfg.pre1:
        a("s_mov_b32 exec_lo, s63\ns_mov_b32 exec_hi, s63\nbuffer_load_dword v123, v13, s[32:35], s57 offen\ns_mov_b64 exec, -1")
    def cflag(val):
        a(f"v_mov_b32 v5, {val}\ns_mov_b64 exec, 1\nds_write_b32 v6, v5\ns_mov_b64 exec, -1")
    def wait(mask, val, body=None): spin(5, 4, mask, val, body)
    def allreduce(x, t, op):
        for d in ("quad_perm:[1,0,3,2]", "quad_perm:[2,3,0,1]", "row_half_mirror", "row_mirror"):
            a(f"{op}_dpp v{x}, v{x}, v{x} {d} row_mask:0xf bank_mask:0xf")
        a(f"v_mov_b32 v{t}, v{x}\nv_permlane16_swap_b32 v{x}, v{t}\n{op} v{x}, v{x}, v{t}")
        a(f"v_mov_b32 v{t}, v{x}\nv_permlane32_swap_b32 v{x}, v{t}\n{op} v{x}, v{x}, v{t}")
    def unpack(src, dst, n):
        for i in range(n):
            a(f"v_lshlrev_b32 v{dst+2*i}, 16, v{src+i}\nv_and_b32 v{dst+2*i+1}, 0xffff0000, v{src+i}")
    def pack(src, dst, n):
        for i in range(n):
            a(f"v_cvt_pk_bf16_f32 v{dst+i}, v{src+2*i}, v{src+2*i+1}")
    def rbf(x, d=None):
        d = x if d is None else d
        a(f"v_cvt_pk_bf16_f32 v{d}, v{x}, v{x}\nv_lshlrev_b32 v{d}, 16, v{d}")
    def tag(src, dst, last=48):
        for i in range(4):
            a(f"v_and_or_b32 v{dst+i}, v{src+i}, v3, s{45+i if i < 3 else last}")
    def check(regs, last=97, masked=False, t=5):
        for k, r in enumerate(regs):
            for i in range(4): a(f"v_xor_b32 v{r+i}, s{45+i if i < 3 else last}, v{r+i}")
            if masked:
                if k == 0: a(f"v_or3_b32 v{t}, v{r}, v{r+1}, v{r+2}\nv_mov_b32 v127, v{r+3}")
                else: a(f"v_or3_b32 v{t}, v{t}, v{r}, v{r+1}\nv_or_b32 v{t}, v{t}, v{r+2}\nv_or_b32 v127, v127, v{r+3}")
            elif k == 0: a(f"v_or3_b32 v{t}, v{r}, v{r+1}, v{r+2}\nv_or_b32 v{t}, v{t}, v{r+3}")
            else: a(f"v_or3_b32 v{t}, v{t}, v{r}, v{r+1}\nv_or3_b32 v{t}, v{t}, v{r+2}, v{r+3}")
        if masked: a(f"v_and_or_b32 v{t}, v127, s101, v{t}")
        a(f"v_and_b32 v{t}, 0xff, v{t}\nv_cmp_ne_u32 vcc, 0, v{t}")
    def issue(loads, soffs):
        for (r, va, si, imm) in loads:
            a(f"buffer_load_dwordx4 v[{r}:{r+3}], v{va}, s[32:35], s{soffs[si]} offen offset:{imm} sc1")
    def poll(loads, soffs, each=None, pre_issued=None, **kw):
        top, chk, done = L("p"), L("pc"), L("pd")
        a("s_mov_b32 s59, 0")
        if pre_issued is not None: a(f"s_waitcnt vmcnt({pre_issued})\ns_branch {chk}")
        a(f"{top}:\ns_add_u32 s59, s59, 1")
        if each: each()
        issue(loads, soffs)
        a(f"s_waitcnt vmcnt(0)\n{chk}:")
        check([r for (r, _, _, _) in loads], **kw)
        a(f"s_cbranch_vccz {done}\ns_cmp_lt_u32 s59, {cfg.NMAX}\ns_cbranch_scc1 {top}\n{done}:")
    def mstore(r, va, so):
        f, d = L("ms"), L("md")
        a(f"s_cmp_lg_u32 s98, 0\ns_cbranch_scc1 {f}\nbuffer_store_dwordx4 v[{r}:{r+3}], v{va}, s[32:35], s{so} offen {NP}\ns_branch {d}\n{f}:\nbuffer_store_dwordx4 v[{r}:{r+3}], v{va}, s[32:35], s{so} offen sc1\n{d}:")
    def far_first():
        t = L("ff")
        a(f"s_cmp_lg_u32 s95, 0\ns_cbranch_scc1 {t}\ns_mov_b32 s95, 1\ns_mov_b32 exec_lo, s63\ns_mov_b32 exec_hi, s63\nbuffer_store_dwordx4 v[52:55], v13, s[32:35], s58 offen sc1\ns_mov_b64 exec, -1\n{t}:")

    a("s_cmp_ge_u32 s55, 2\ns_cbranch_scc1 L_noln")
    a(f"s_waitcnt vmcnt({1 if cfg.pre1 else 0})")
    stamp(1)
    unpack(16, 20, 4)
    a("""
    v_add_f32 v28, v20, v21
    v_add_f32 v29, v22, v23
    v_add_f32 v30, v24, v25
    v_add_f32 v31, v26, v27
    v_add_f32 v28, v28, v29
    v_add_f32 v30, v30, v31
    v_add_f32 v28, v28, v30
    """)
    allreduce(28, 29, "v_add_f32")
    a("v_mul_f32 v28, 0x3b000000, v28")
    for i in range(8): a(f"v_sub_f32 v{32+i}, v{20+i}, v28")
    a("v_mul_f32 v29, v32, v32\nv_mul_f32 v30, v33, v33")
    for i in range(2, 8, 2): a(f"v_fmac_f32 v29, v{32+i}, v{32+i}\nv_fmac_f32 v30, v{33+i}, v{33+i}")
    a("v_add_f32 v29, v29, v30")
    rbf(28)
    for i in range(8): a(f"v_sub_f32 v{32+i}, v{20+i}, v28")
    allreduce(29, 30, "v_add_f32")
    pack(32, 16, 4)
    a("v_mul_f32 v29, 0x3b000000, v29")
    rbf(29)
    a("v_add_f32 v29, 0x3727c5ac, v29")
    rbf(29)
    a("v_sqrt_f32 v29, v29")
    unpack(16, 32, 4)
    rbf(29)
    a("v_rcp_f32 v29, v29")
    for i in range(8): a(f"v_mul_f32 v{32+i}, v{32+i}, v29")
    pack(32, 16, 4)
    a(f"s_mul_i32 s56, s55, {XNS}\ns_add_u32 s56, s56, {XN}\nv_add_u32 v14, s56, v7\nds_write_b128 v14, v[16:19]")
    cflag(C_XN)
    a("L_noln:")
    a(f"""
    s_waitcnt lgkmcnt(0)
    s_and_b32 s45, s44, 0x7f7f7f7f
    s_add_u32 s45, s45, 0x01010101
    s_and_b32 s44, s44, 0x80808080
    s_xor_b32 s44, s44, s45
    s_and_b32 s45, s44, 0xff
    s_bfe_u32 s46, s44, 0x80008
    s_bfe_u32 s47, s44, 0x80010
    s_lshr_b32 s48, s44, 24
    s_getreg_b32 s96, hwreg(HW_REG_XCC_ID, 0, 4)
    s_xor_b32 s96, s96, s48           ; byte 3 of the first hand-off's tag carries the die id
    s_mov_b32 s97, s96
    s_mov_b32 s98, 0
    s_mov_b32 s101, -1
    s_mov_b32 s95, 0
    s_add_u32 s58, s57, {MIR}
    v_and_b32 v10, 2, v1
    v_cmp_ne_u32 s[60:61], 0, v10
    """)
    wait(0x30, C_XN)
    a("s_cmp_ge_u32 s55, 4\ns_cbranch_scc1 L_gu")
    for k in range(4): a(f"ds_read2_b64 v[{32+4*k}:{35+4*k}], v12 offset0:{8*k} offset1:{8*k+4}")
    wait(0xf, M_WQ)
    stamp(2)
    for k in range(4):
        for t in range(2): a(f"ds_read_b64_tr_b16 v[{16+4*k+2*t}:{17+4*k+2*t}], v9 offset:{k*4096+t*2048}")
    cflag(C_TILE)
    a("s_waitcnt lgkmcnt(0)")
    for k in range(4):
        a(f"v_mfma_f32_16x16x32_bf16 v[48:51], v[{16+4*k}:{19+4*k}], v[{32+4*k}:{35+4*k}], {'0' if k==0 else 'v[48:51]'}")
    a("s_branch L_pub1")
    a("L_gu:")
    for k in range(2): a(f"ds_read2_b64 v[{32+4*k}:{35+4*k}], v12 offset0:{8*k} offset1:{8*k+4}")
    wait(0xf, M_GU)
    stamp(2)
    for m in range(2):
        for k in range(2):
            for t in range(2): a(f"ds_read_b64_tr_b16 v[{16+8*m+4*k+2*t}:{17+8*m+4*k+2*t}], v9 offset:{m*8192+k*4096+t*2048}")
    cflag(C_TILE)
    a("s_waitcnt lgkmcnt(0)")
    for k in range(2):
        a(f"v_mfma_f32_16x16x32_bf16 v[48:51], v[{16+4*k}:{19+4*k}], v[{32+4*k}:{35+4*k}], {'0' if k==0 else 'v[48:51]'}")
        a(f"v_mfma_f32_16x16x32_bf16 v[56:59], v[{24+4*k}:{27+4*k}], v[{32+4*k}:{35+4*k}], {'0' if k==0 else 'v[56:59]'}")
    for i in range(4): a(f"v_cndmask_b32 v{48+i}, v{48+i}, v{56+i}, s[60:61]")
    a("L_pub1:\ns_nop 7")
    tag(48, 52, 96)
    a("s_mov_b32 exec_lo, s63\ns_mov_b32 exec_hi, s63")
    a(f"buffer_store_dwordx4 v[52:55], v13, s[32:35], s57 offen {NP}")
    a("s_mov_b64 exec, -1")
    stamp(3)
    a(f"""
    v_and_b32 v10, 3, v1
    v_mul_u32_u24 v9, {QBS}, v10
    v_lshl_add_u32 v9, v2, 4, v9
    v_add_u32 v9, {QB}, v9
    s_lshl_b32 s56, s55, 13
    v_xor_b32 v12, v1, v2
    v_lshlrev_b32 v12, 4, v12
    v_lshl_add_u32 v12, v1, 8, v12
    v_add_u32 v12, s56, v12           ; K operand address, step 0
    v_xor_b32 v62, 64, v12
    v_xor_b32 v63, 128, v12
    v_xor_b32 v64, 192, v12
    """)
    a("s_cmp_ge_u32 s55, 2\ns_cbranch_scc1 L_noq")
    a(f"""
    s_lshl_b32 s56, s55, 10
    v_add_u32 v126, s56, v7
    s_lshl_b32 s99, s49, 14
    s_lshl_b32 s100, s53, 13
    s_add_u32 s99, s99, s100
    s_add_u32 s99, s99, {QA}
    s_add_u32 s100, s99, 4096
    s_lshl_b32 s56, s55, 1
    v_lshrrev_b32 v14, 5, v0
    v_add_u32 v14, s56, v14
    v_mul_u32_u24 v14, {QBS}, v14
    v_and_b32 v16, 31, v0
    v_lshl_add_u32 v14, v16, 3, v14
    v_add_u32 v14, {QB}, v14
    """)
    def q_each():
        t = L("qe")
        a(f"s_cmp_lt_u32 s59, {cfg.N0}\ns_cbranch_scc1 {t}")
        a("v_mov_b32 v5, 1\ns_mov_b64 exec, 1\nds_write_b32 v4, v5 offset:56\ns_mov_b64 exec, -1")
        far_first()
        a(f"s_xor_b32 s98, s98, {MIR}\ns_xor_b32 s99, s99, {MIR}\ns_xor_b32 s100, s100, {MIR}\ns_xor_b32 s101, s101, 15\n{t}:")
    poll([(16, 126, 0, 0), (20, 126, 0, 2048), (24, 126, 1, 0), (28, 126, 1, 2048)], [99, 100], each=q_each, last=96, masked=True)
    a("v_and_b32 v127, 15, v127\nv_cmp_ne_u32 vcc, 0, v127\ns_cbranch_vccnz L_remote\ns_mov_b32 s98, 0\nL_remote:")
    for r in (19, 23, 27, 31): a(f"v_and_b32 v{r}, v{r}, v3")
    for i in range(4): a(f"v_add_f32 v{16+i}, v{16+i}, v{20+i}\nv_add_f32 v{24+i}, v{24+i}, v{28+i}")
    for i in range(4): a(f"v_add_f32 v{16+i}, v{16+i}, v{24+i}")
    pack(16, 20, 2)
    a("ds_write_b64 v14, v[20:21]")
    a("v_mov_b32 v5, s98\ns_mov_b64 exec, 1\nds_write_b32 v6, v5 offset:32\ns_mov_b64 exec, -1")
    cflag(C_Q)
    a("L_noq:")
    stamp(4)
    def watch():
        t = L("wt")
        a(f"v_cmp_ne_u32 vcc, 0, v5\ns_and_b64 vcc, vcc, 0x4000\ns_cbranch_vccz {t}")
        far_first()
        a(f"{t}:")
    wait(0x30, C_Q, watch)
    a(f"v_cmp_ne_u32 vcc, 0, v5\ns_and_b64 vcc, vcc, 0x3000\ns_mov_b32 s98, 0\ns_mov_b32 s101, -1\ns_cbranch_vccz L_near\ns_mov_b32 s98, {MIR}\ns_mov_b32 s97, s48\ns_mov_b32 s101, 0xfffffff0")
    far_first()
    a("L_near:")
    for st in range(4): a(f"ds_read_b128 v[{16+4*st}:{19+4*st}], v9 offset:{64*st}")
    wait(0xf, M_K)
    stamp(5)
    ka = [12, 62, 63, 64]
    for tt in range(2):
        for st in range(4):
            r = 32 + 16*tt + 4*st
            if r == 52: r = 92
            if r == 60: r = 88
            a(f"ds_read_b128 v[{r}:{r+3}], v{ka[st]} offset:{tt*4096}")
    a(f"""
    v_lshlrev_b32 v9, 5, v10
    v_add_u32 v9, {MX}, v9
    s_lshl_b32 s56, s55, 2
    v_add_u32 v12, s56, v9
    s_lshl_b32 s56, s55, 8
    v_lshlrev_b32 v13, 6, v2
    v_lshl_add_u32 v13, v10, 4, v13
    v_add_u32 v13, {PB}, v13
    v_add_u32 v14, s56, v13
    s_waitcnt lgkmcnt(0)
    """)
    for st in range(4):
        for tt in range(2):
            r = 32 + 16*tt + 4*st; d = 68 + 4*tt
            if r == 52: r = 92
            if r == 60: r = 88
            a(f"v_mfma_f32_16x16x32_bf16 v[{d}:{d+3}], v[{r}:{r+3}], v[{16+4*st}:{19+4*st}], {'0' if st==0 else f'v[{d}:{d+3}]'}")
    pack(68, 32, 4)
    unpack(32, 36, 4)
    for i in range(8): a(f"v_mul_f32 v{36+i}, 0x3db504f3, v{36+i}")
    pack(36, 32, 4)
    unpack(32, 36, 4)
    a("""
    v_max3_f32 v56, v36, v37, v38
    v_max3_f32 v57, v39, v40, v41
    v_max3_f32 v56, v56, v42, v43
    v_max_f32 v56, v56, v57
    v_mov_b32 v57, v56
    v_permlane16_swap_b32 v56, v57
    v_max_f32 v56, v56, v57
    v_mov_b32 v57, v56
    v_permlane32_swap_b32 v56, v57
    v_max_f32 v56, v56, v57
    s_mov_b64 exec, 15
    ds_write_b32 v12, v56
    """)
    cflag(C_MAX)
    wait(0xff0, C_MAX)
    a(f"""
    ds_read_b128 v[44:47], v9
    ds_read_b128 v[48:51], v9 offset:16
    s_mov_b32 s56, {LOG2E}
    s_waitcnt lgkmcnt(0)
    v_max3_f32 v56, v44, v45, v46
    v_max3_f32 v57, v47, v48, v49
    v_max3_f32 v56, v56, v50, v51
    v_max_f32 v56, v56, v57           ; m
    v_mul_f32 v57, s56, v56
    """)
    for i in range(8): a(f"v_fma_f32 v{36+i}, v{36+i}, s56, -v57")
    for i in range(8): a(f"v_exp_f32 v{36+i}, v{36+i}")
    pack(36, 32, 4)
    exmask16(0xf)
    a("ds_write_b128 v14, v[32:35]")
    cflag(C_P)
    a(f"""
    v_and_b32 v9, 7, v8
    v_xor_b32 v9, s55, v9
    v_lshlrev_b32 v9, 5, v9
    v_add_u32 v9, v9, v11
    v_lshl_add_u32 v9, v8, 8, v9
    v_add_u32 v9, {V_L}, v9
    v_lshlrev_b32 v12, 14, v1
    v_lshl_add_u32 v12, v2, 4, v12    ; o publish: head*16384 + g*16
    s_lshl_b32 s56, s49, 16
    s_lshl_b32 s57, s50, 9
    s_add_u32 s56, s56, s57
    s_lshl_b32 s57, s55, 6
    s_add_u32 s56, s56, s57
    s_add_u32 s56, s56, {OA}          ; o publish soffset
    s_add_u32 s56, s56, s98
    """)
    if cfg.pretouch:
        exmask16(0xf)
        a("buffer_load_dword v123, v12, s[32:35], s56 offen\ns_mov_b64 exec, -1")
    wait(0xff0, C_P)
    for kb in range(8): a(f"ds_read_b128 v[{16+4*kb}:{19+4*kb}], v13 offset:{kb*256}")
    a("s_waitcnt lgkmcnt(0)")
    stamp(6)
    a("s_cmp_lg_u32 s55, 3\ns_cbranch_scc1 L_nol")
    for i in range(4): a(f"v_mov_b32 v{52+i}, 0x3f803f80")
    for kb in range(8):
        a(f"v_mfma_f32_16x16x32_bf16 v[60:63], v[52:55], v[{16+4*kb}:{19+4*kb}], {'0' if kb==0 else 'v[60:63]'}")
    a(f"""
    v_lshlrev_b32 v13, 9, v0
    s_lshl_b32 s57, s49, 11
    s_lshl_b32 s58, s50, 4
    s_add_u32 s57, s57, s58
    s_add_u32 s57, s57, {MA}
    s_add_u32 s57, s57, s98
    v_mov_b32 v58, 0
    v_mov_b32 v59, 0
    v_mov_b32 v57, v60
    """)
    tag(56, 60, 97)
    a("s_mov_b64 exec, 15")
    mstore(60, 13, 57)
    a("s_mov_b64 exec, -1")
    a("L_nol:")
    if cfg.preF == 'P':
        a("s_cmp_lg_u32 s55, 4\ns_cbranch_scc1 L_noF2")
        touchF()
        a("L_noF2:")
    a(f"""
    v_lshrrev_b32 v10, 3, v0          ; ss
    v_and_b32 v14, 7, v0              ; gi
    v_lshlrev_b32 v13, 4, v10
    v_lshlrev_b32 v10, 9, v10
    v_lshl_add_u32 v10, v14, 4, v10
    s_lshr_b32 s60, s55, 2            ; b'
    s_and_b32 s61, s55, 3             ; dq
    s_lshl_b32 s58, s62, 1
    s_add_u32 s58, s58, s60           ; (4h+rg)*2 + b'
    s_lshl_b32 s57, s58, 8
    s_add_u32 s57, s57, {MA}
    s_add_u32 s57, s57, s98
    s_lshl_b32 s58, s58, 13
    s_lshl_b32 s91, s61, 7
    s_add_u32 s58, s58, s91
    s_add_u32 s58, s58, {OA}          ; o soffset
    s_add_u32 s58, s58, s98
    s_add_u32 s91, s58, 4096
    s_mul_i32 s60, s60, {OBS}
    s_lshl_b32 s61, s61, 6
    s_add_u32 s60, s60, s61
    s_add_u32 s60, s60, {OB}
    v_lshlrev_b32 v14, 3, v14
    v_lshl_add_u32 v14, v2, 1, v14
    v_add_u32 v14, s60, v14
    ; projection-stage addresses
    v_and_b32 v93, 1, v1
    v_mul_u32_u24 v90, {OBS}, v93
    v_lshl_add_u32 v90, v2, 3, v90
    v_add_u32 v90, {OB}, v90          ; o operand
    v_mul_u32_u24 v91, {HBS}, v93
    v_lshl_add_u32 v91, v2, 3, v91
    v_add_u32 v91, {HB}, v91          ; h operand
    v_add_u32 v15, {WO_L}, v15
    v_lshlrev_b32 v92, 14, v93
    v_bfe_u32 v93, v1, 1, 1
    v_lshl_add_u32 v92, v93, 6, v92
    v_lshl_add_u32 v92, v2, 4, v92    ; b*16384 + kind*64 + g*16
    v_cmp_ne_u32 s[60:61], 0, v93
    s_lshl_b32 s92, s51, 15
    s_lshl_b32 s93, s55, 12
    s_add_u32 s92, s92, s93
    s_lshl_b32 s93, s62, 7
    s_add_u32 s92, s92, s93
    s_add_u32 s92, s92, {cfg.fr}
    """)
    if cfg.preF == 'st':
        a("s_cmp_ge_u32 s55, 4\ns_cbranch_scc1 L_nops")
        exmask16(0xf)
        a(f"v_mov_b32 v96, 0\nv_mov_b32 v97, 0\nv_mov_b32 v98, 0\nv_mov_b32 v99, 0\nbuffer_store_dwordx4 v[96:99], v92, s[32:35], s92 offen {cfg.fst}\ns_mov_b64 exec, -1\nL_nops:")
    a(f"""
    v_mov_b32 v94, 0
    s_mov_b64 exec, 0x20f
    v_mov_b32 v94, {M_END}            ; thresholds: loaders finished, h written (M_END == C_H)
    s_mov_b64 exec, -1
    """)
    assert M_END == C_H
    def pv(m):
        for kk in range(2):
            kb = 2*m + kk
            for t in range(2):
                r = 64 + 4*kk + 2*t
                a(f"ds_read_b64_tr_b16 v[{r}:{r+1}], v9 offset:{kb*8192+t*4096}")
        for kk in range(2):
            kb = 2*m + kk
            a(f"s_waitcnt lgkmcnt({2 if kk == 0 and not cfg.diag else 0})")
            a(f"v_mfma_f32_16x16x32_bf16 v[72:75], v[{64+4*kk}:{67+4*kk}], v[{16+4*kb}:{19+4*kb}], {'0' if kb==0 else 'v[72:75]'}")
    ml = [(80, 13, 0, 0), (84, 13, 0, 128)]
    hl = [(96+4*k if k < 6 else 48+4*(k-6), 7, k//4, (k % 4)*1024) for k in range(8)]
    a(f"""
    s_cmp_lg_u32 s55, 5
    s_cbranch_scc1 L_noh0
    s_lshl_b32 s99, s62, 13
    s_add_u32 s99, s99, {GA}
    s_add_u32 s99, s99, s98
    s_add_u32 s100, s99, 4096
    """)
    issue(hl, [99, 100])
    a("L_noh0:")
    wait(0xf, M_V1); pv(0)
    wait(0xf, M_V2); pv(1)
    issue(ml, [57])
    wait(0xf, M_V3); pv(2)
    stamp(7)
    a("s_barrier")
    stamp(8)
    pv(3)
    tag(72, 76, 97)
    exmask16(0xf)
    mstore(76, 12, 56)
    cflag(C_PUB)
    tstamp(1)
    a("s_cmp_lg_u32 s55, 5\ns_cbranch_scc1 L_noh")
    a(f"""
    v_mul_u32_u24 v122, {HBS}, v2
    v_lshl_add_u32 v122, v1, 3, v122
    v_add_u32 v122, {HB}, v122
    """)
    poll(hl, [99, 100], pre_issued=1, last=96, masked=True)
    for (r, _, _, _) in hl: a(f"v_and_b32 v{r+3}, v{r+3}, v3")
    b = 96
    for i in range(4):
        a(f"v_add_f32 v{b+i}, v{b+i}, v{b+4+i}\nv_add_f32 v{b+8+i}, v{b+8+i}, v{b+12+i}\nv_add_f32 v{b+16+i}, v{b+16+i}, v{b+20+i}\nv_add_f32 v{48+i}, v{48+i}, v{52+i}")
    for i in range(4): a(f"v_add_f32 v{b+i}, v{b+i}, v{b+8+i}\nv_add_f32 v{b+16+i}, v{b+16+i}, v{48+i}")
    for i in range(4): a(f"v_add_f32 v{b+i}, v{b+i}, v{b+16+i}")
    pack(b, 56, 2)
    a("v_mov_b32 v58, v56\nv_mov_b32 v59, v57\nv_permlane32_swap_b32 v56, v58\nv_permlane32_swap_b32 v57, v59")
    unpack(56, 24, 2)
    unpack(58, 28, 2)
    for i in range(4): a(f"v_mul_f32 v{24+i}, 0xbfb8aa3b, v{24+i}")
    for i in range(4): a(f"v_exp_f32 v{24+i}, v{24+i}")
    for i in range(4): a(f"v_add_f32 v{24+i}, 1.0, v{24+i}")
    for i in range(4): a(f"v_rcp_f32 v{24+i}, v{24+i}")
    pack(24, 56, 2)
    unpack(56, 24, 2)
    for i in range(4): a(f"v_mul_f32 v{24+i}, v{24+i}, v{28+i}")
    pack(24, 56, 2)
    a("s_mov_b64 exec, 0xffffffff\nds_write_b64 v122, v[56:57]\ns_mov_b64 exec, -1")
    cflag(C_H)
    a("L_noh:")
    poll(ml, [57], pre_issued=1)
    a(f"""
    s_mov_b32 s59, {LOG2E}
    v_max_f32 v88, v80, v84
    v_max_f32_dpp v88, v88, v88 row_ror:8 row_mask:0xf bank_mask:0xf
    v_mov_b32 v89, v88
    v_permlane16_swap_b32 v88, v89
    v_max_f32 v88, v88, v89
    v_mov_b32 v89, v88
    v_permlane32_swap_b32 v88, v89
    v_max_f32 v88, v88, v89
    v_sub_f32 v80, v80, v88
    v_sub_f32 v84, v84, v88
    v_mul_f32 v80, s59, v80
    v_mul_f32 v84, s59, v84
    v_exp_f32 v80, v80
    v_exp_f32 v84, v84
    v_mul_f32 v88, v80, v81
    v_fmac_f32 v88, v84, v85
    v_add_f32_dpp v88, v88, v88 row_ror:8 row_mask:0xf bank_mask:0xf
    v_mov_b32 v89, v88
    v_permlane16_swap_b32 v88, v89
    v_add_f32 v88, v88, v89
    v_mov_b32 v89, v88
    v_permlane32_swap_b32 v88, v89
    v_add_f32 v88, v88, v89
    v_rcp_f32 v88, v88
    v_mul_f32 v80, v80, v88
    v_mul_f32 v84, v84, v88
    """)
    tstamp(2)
    wait(0xff0, C_PUB)
    tstamp(3)
    poll([(16, 10, 0, 0), (20, 10, 1, 0)], [58, 91], t=95)
    stamp(9)
    a("ds_read_b32 v5, v4")
    for i in range(4): a(f"v_mul_f32 v{16+i}, v{16+i}, v80")
    for i in range(4): a(f"v_fmac_f32 v{16+i}, v{20+i}, v84")
    def reduce_scatter(r):
        a(f"""
        v_permlane32_swap_b32 v{r}, v{r+2}
        v_permlane32_swap_b32 v{r+1}, v{r+3}
        v_add_f32 v{r}, v{r}, v{r+2}
        v_add_f32 v{r+1}, v{r+1}, v{r+3}
        v_permlane16_swap_b32 v{r}, v{r+1}
        v_add_f32 v{r}, v{r}, v{r+1}
        v_add_f32_dpp v{r}, v{r}, v{r} row_ror:8 row_mask:0xf bank_mask:0xf
        """)
    reduce_scatter(16)
    a("v_cvt_pk_bf16_f32 v16, v16, v16\nds_write_b16 v14, v16")
    a("s_cmp_ge_u32 s55, 4\ns_cbranch_scc1 L_final")
    a(f"s_waitcnt lgkmcnt({0 if cfg.diag else 1})\nv_cmp_gt_u32 vcc, v94, v5\ns_cbranch_vccz L_tiles")
    spin(5, 4, None, "v94")
    a("L_tiles:")
    tstamp(4)
    for k in range(2): a(f"ds_read2_b64 v[{56+4*k}:{59+4*k}], v91 offset0:{8*k} offset1:{8*k+4}")
    for k in range(2):
        for t in range(2): a(f"ds_read_b64_tr_b16 v[{32+4*k+2*t}:{33+4*k+2*t}], v15 offset:{16384+k*4096+t*2048}")
    for k in range(4):
        for t in range(2): a(f"ds_read_b64_tr_b16 v[{96+4*k+2*t}:{97+4*k+2*t}], v15 offset:{k*4096+t*2048}")
    a(f"s_waitcnt lgkmcnt({0 if cfg.diag else 14})\ns_barrier")
    stamp(10)
    a("s_waitcnt lgkmcnt(11)")
    for k in range(4): a(f"ds_read2_b64 v[{40+4*k}:{43+4*k}], v90 offset0:{8*k} offset1:{8*k+4}")
    a(f"s_waitcnt lgkmcnt({0 if cfg.diag else 12})")
    for k in range(2):
        a(f"v_mfma_f32_16x16x32_bf16 v[68:71], v[{32+4*k}:{35+4*k}], v[{56+4*k}:{59+4*k}], {'0' if k==0 else 'v[68:71]'}")
    for k in range(4):
        a(f"s_waitcnt lgkmcnt({0 if cfg.diag else 3-k})")
        a(f"v_mfma_f32_16x16x32_bf16 v[64:67], v[{96+4*k}:{99+4*k}], v[{40+4*k}:{43+4*k}], {'0' if k==0 else 'v[64:67]'}")
    exmask16(0xf)
    for i in range(4): a(f"v_cndmask_b32 v{64+i}, v{64+i}, v{68+i}, s[60:61]")
    tag(64, 68, 48)
    a(f"buffer_store_dwordx4 v[68:71], v92, s[32:35], s92 offen {cfg.fst}")
    stamp(11)
    dump_stamps(12)
    a("s_endpgm")
    a("L_final:\ns_waitcnt lgkmcnt(0)\ns_barrier")
    stamp(10)
    a("s_cmp_lg_u32 s55, 4\ns_cbranch_scc1 L_fin_exit\ns_cmp_ge_u32 s2, 64\ns_cbranch_scc1 L_fin_exit")
    a(f"s_lshl_b32 s57, s2, 12\ns_add_u32 s57, s57, {cfg.fr}\ns_mov_b32 s59, 0")
    def fissue(base):
        for k in range(4): a(f"buffer_load_dwordx4 v[{base+4*k}:{base+3+4*k}], v7, s[32:35], s57 offen offset:{k*1024} {cfg.fld}")
    if cfg.fmode == 'plain':
        a("L_fp:")
        fissue(16)
        a("s_add_u32 s59, s59, 1\ns_waitcnt vmcnt(0)")
        if cfg.diag == 2:
            a("s_cmp_lg_u32 s59, 1\ns_cbranch_scc1 L_nf1")
            tstamp(5)
            a("L_nf1:")
        check([16, 20, 24, 28], 48)
        a(f"s_cbranch_vccz L_fok\ns_cmp_lt_u32 s59, {cfg.NMAX}\ns_cbranch_scc1 L_fp\nL_fok:")
        if cfg.diag == 2: a("s_mov_b32 s76, s59")
    elif cfg.fmode == 'pipe':
        fissue(16)
        a("L_fp:")
        fissue(32)
        a("s_add_u32 s59, s59, 1\ns_waitcnt vmcnt(4)")
        check([16, 20, 24, 28], 48)
        a("s_cbranch_vccz L_fok")
        fissue(16)
        a("s_waitcnt vmcnt(4)")
        check([32, 36, 40, 44], 48)
        a(f"s_cbranch_vccz L_fok2\ns_cmp_lt_u32 s59, {cfg.NMAX}\ns_cbranch_scc1 L_fp\nL_fok2:\ns_waitcnt vmcnt(0)")
        for i in range(16): a(f"v_mov_b32 v{16+i}, v{32+i}")
        a("L_fok:")
    elif cfg.fmode == 'mask':
        for k in range(4): a(f"s_mov_b64 s[{4+2*k}:{5+2*k}], -1")
        a("L_fp:")
        for k in range(4):
            a(f"s_mov_b64 exec, s[{4+2*k}:{5+2*k}]\ns_cbranch_execz L_fs{k}\nbuffer_load_dwordx4 v[{16+4*k}:{19+4*k}], v7, s[32:35], s57 offen offset:{k*1024} {cfg.fld}\nL_fs{k}:")
        a("s_add_u32 s59, s59, 1\ns_waitcnt vmcnt(0)")
        for k in range(4):
            a(f"s_mov_b64 exec, s[{4+2*k}:{5+2*k}]")
            check([16+4*k], 48)
            a(f"s_mov_b64 s[{4+2*k}:{5+2*k}], vcc")
        a(f"s_or_b64 s[12:13], s[4:5], s[6:7]\ns_or_b64 s[14:15], s[8:9], s[10:11]\ns_or_b64 s[12:13], s[12:13], s[14:15]\ns_cbranch_scc0 L_fok\ns_cmp_lt_u32 s59, {cfg.NMAX}\ns_cbranch_scc1 L_fp\nL_fok:\ns_mov_b64 exec, -1")
    stamp(11)
    for i in range(4): a(f"v_add_f32 v{16+i}, v{16+i}, v{20+i}\nv_add_f32 v{24+i}, v{24+i}, v{28+i}")
    for i in range(4): a(f"v_add_f32 v{16+i}, v{16+i}, v{24+i}")
    reduce_scatter(16)
    a("v_mov_b32_dpp v17, v16 row_ror:4 row_mask:0xf bank_mask:0xf")
    rbf(16); rbf(17)
    a(f"""
    v_mul_f32 v18, 0xbfb8aa3b, v17
    v_exp_f32 v18, v18
    v_lshlrev_b32 v121, 16, v121
    v_add_f32 v18, 1.0, v18
    v_rcp_f32 v18, v18
    v_mul_f32 v17, v17, v18
    """)
    rbf(17)
    a("v_mul_f32 v16, v16, v17")
    rbf(16)
    a("v_add_f32 v16, v121, v16\nv_cvt_pk_bf16_f32 v16, v16, v16")
    exmask16(0xf)
    a("buffer_store_short v16, v120, s[40:43], s31 offen")
    a("s_cmp_lg_u32 s2, 0\ns_cbranch_scc1 L_fin_exit\nv_mov_b32 v16, s44\nv_mov_b32 v17, 0\ns_mov_b64 exec, 1\nbuffer_store_dword v16, v17, s[32:35], 0 offen sc1")
    if cfg.amp:
        a("s_memrealtime s[88:89]\ns_waitcnt lgkmcnt(0)")
        i, k = cfg.amp
        if i is None: a(f"s_add_u32 s90, s64, {k}")
        else: a(f"s_sub_u32 s90, s{64+2*i}, s64\ns_mul_i32 s90, s90, {k}\ns_add_u32 s90, s90, s64")
        a("L_amp:\ns_memrealtime s[92:93]\ns_waitcnt lgkmcnt(0)\ns_sub_u32 s91, s92, s90\ns_cmp_lt_i32 s91, 0\ns_cbranch_scc1 L_amp")
    a("L_fin_exit:")
    stamp(12)
    dump_stamps(13)
    a("L_exit:\ns_endpgm\nL_codeend:")
    body = a.text()
    head = f"""; Fused decode step: layernorm -> (q projection, sliding-window GQA attention, o projection) gated by a GLU branch.
; One launch, 256 workgroups of 12 waves: waves 0-3 stream weights and K/V into LDS, waves 4-11 compute.
; @launch grid=(256,1,1) block=(768,1,1) lds=163840
.amdgcn_target "amdgcn-amd-amdhsa--gfx950"
.text
.globl {NAME}
.p2align 8
.type {NAME},@function
{NAME}:
"""
    tail = f"""
.section .rodata,"a"
.p2align 6
.amdhsa_kernel {NAME}
  .amdhsa_next_free_vgpr 128
  .amdhsa_next_free_sgpr 102
  .amdhsa_accum_offset 128
  .amdhsa_group_segment_fixed_size 0
  .amdhsa_kernarg_size 96
  .amdhsa_user_sgpr_count 2
  .amdhsa_user_sgpr_kernarg_segment_ptr 1
  .amdhsa_system_sgpr_workgroup_id_x 1
  .amdhsa_float_denorm_mode_32 3
.end_amdhsa_kernel
"""
    return head + body + tail

if __name__ == "__main__":
    kw = {}
    out = "recurrent_scan__sliding_block_cached__glu_gated_glu__decode.s"
    for arg in sys.argv[1:]:
        if arg.startswith("out="): out = arg[4:]; continue
        k, v = arg.split("=")
        try: v = eval(v)
        except Exception: pass
        kw[k] = v
    open(out, "w").write(gen(Cfg(**kw)))
    print("wrote", out)
```

```python
import sys
from asmlib import Asm

NAME = "recurrent_scan__sliding_block_cached__glu_gated_glu__decode_kernel"

K_L, V_L = 0, 65536
WQ_L, G_L, U_L = 98304, 114688, 122880
WO_L, DN_L = 131072, 147456
SM = 155648
FLAGS, MX, HB, OB, QB, XN, PB = SM, SM+64, SM+256, SM+640, SM+1280, SM+2560, SM+4864
HBS, OBS, QBS, XNS = 192, 320, 320, 1088
QA, GA, MA, OA, MIR, FR, DIAG = 0x10000, 0x30000, 0x70000, 0x80000, 0x100000, 0x200000, 0x400000
WS_BYTES = 0x8000000
PROBE = 0x80000
LOG2E = "0x3fb8aa3b"
OOB = 0x40000000
M_X, M_WQ, M_GU, M_K, M_V1, M_V2, M_V3, M_END = 1, 2, 3, 4, 5, 6, 7, 8
C_XN, C_TILE, C_Q, C_MAX, C_P, C_PUB, C_H = 1, 2, 3, 4, 5, 6, 8

class Cfg:
    D = 6
    D0 = None
    diag = False
    N0 = 400
    NMAX = 400000
    perm = "s"
    pf = 'c'
    safe = True
    pol = 'nt'
    prio = 2
    kvmap = 'contig'
    fmode = 'plain'
    near_pol = ''
    cgshift = 0
    probe = None
    side = 'auto'
    rounds = 2
    force = None
    sidewave = 'five'
    sideat = 'V2'
    leader = 0
    qtrig = 3
    fmap = None
    tail2 = True
    Dk = 5
    Dv = None
    Dt = None
    kv = [x << 10 for x in [8,16,1,512,4,2,64,32,128,258,0,512,16,0]]
    preout = False
    pre1 = False
    pretouch = False
    fst = 'sc1'
    fld = 'sc1'
    preF = 'start'
    preFpol = 'sc1'
    fr = FR
    streamonly = False
    amp = None
    def __init__(self, **kw):
        for k, v in kw.items():
            assert hasattr(self, k), k
            setattr(self, k, v)

def gen(cfg):
    a = Asm()
    incompute = [False]
    def stamp(i):
        if cfg.diag == 2 and incompute[0] and 1 <= i <= 6: return
        if cfg.diag: a(f"s_memrealtime s[{64+2*i}:{65+2*i}]")
    def tstamp(i):
        if cfg.diag == 2: a(f"s_memrealtime s[{64+2*i}:{65+2*i}]")
    def dump_stamps(n):
        if not cfg.diag or cfg.amp: return
        a("s_waitcnt lgkmcnt(0)")
        a("s_mov_b64 exec, -1")
        a("v_mov_b32 v125, 0")
        for i in range(n):
            a(f"v_writelane_b32 v125, s{64+2*i}, {i}")
        a(f"s_mul_i32 s62, s2, {12*64}\ns_lshl_b32 s63, s3, 6\ns_add_u32 s62, s62, s63\ns_add_u32 s62, s62, {DIAG}")
        a("v_lshlrev_b32 v124, 2, v0\ns_mov_b64 exec, 0xffff")
        a("buffer_store_dword v125, v124, s[32:35], s62 offen")
    def srd_tail(r, n):
        a(f"s_mov_b32 s{r+2}, {n}\ns_mov_b32 s{r+3}, 0x20000")
    def exmask16(m):
        v = hex(m | (m << 16)); a(f"s_mov_b32 exec_lo, {v}\ns_mov_b32 exec_hi, {v}")
    lab = [0]
    def L(p):
        lab[0] += 1
        return f"L{p}{lab[0]}"
    def spin(vdst, vaddr, mask, val, body=None):
        w = L("w")
        if cfg.safe: a("s_mov_b32 s94, 0")
        a(f"{w}:\nds_read_b32 v{vdst}, v{vaddr}")
        if cfg.safe: a(f"s_add_u32 s94, s94, 1\ns_bitcmp1_b32 s94, 20\ns_cbranch_scc1 {w}x")
        a("s_waitcnt lgkmcnt(0)")
        if body: body()
        a(f"v_cmp_gt_u32 vcc, {val}, v{vdst}")
        if mask is not None: a(f"s_and_b64 vcc, vcc, {hex(mask)}")
        a(f"s_cbranch_vccnz {w}")
        if cfg.safe: a(f"{w}x:\ns_waitcnt lgkmcnt(0)")
    NP = cfg.near_pol
    def code_prefetch(vt, v16, dst):
        a(f"""
        s_getpc_b64 s[60:61]
L_pc:
        s_sub_u32 s60, s60, L_pc-{NAME}
        s_subb_u32 s61, s61, 0
        s_lshl_b32 s58, s51, 10
        v_add_u32 v{vt}, s58, v{v16}
        v_cmp_gt_u32 vcc, L_codeend-{NAME}, v{vt}
        s_and_saveexec_b64 s[58:59], vcc
        s_cbranch_execz L_nopf2
        global_load_dwordx4 v[{dst}:{dst+3}], v{vt}, s[60:61]
L_nopf2:
        s_mov_b64 exec, -1
        v_add_u32 v{vt}, 8192, v{vt}
        v_cmp_gt_u32 vcc, L_codeend-{NAME}, v{vt}
        s_and_saveexec_b64 s[58:59], vcc
        s_cbranch_execz L_nopf3
        global_load_dwordx4 v[{dst+4}:{dst+7}], v{vt}, s[60:61]
L_nopf3:
        s_mov_b64 exec, -1
        """)

    a(f"""
    s_load_dwordx2 s[36:37], s[0:1], 0
    s_load_dwordx2 s[12:13], s[0:1], 24
    s_cmpk_ge_u32 s2, 256
    s_cbranch_scc1 L_exit
    v_lshrrev_b32 v1, 6, v0
    v_and_b32 v0, 63, v0
    s_lshr_b32 s50, s2, 3         ; j
    v_readfirstlane_b32 s3, v1    ; wave
    s_and_b32 s49, s2, 7          ; h
    s_and_b32 s51, s50, 7         ; cg
    s_lshr_b32 s52, s50, 3        ; rg
    s_cmp_ge_u32 s3, 4
    s_cbranch_scc1 L_compute
    """)
    stamp(0)
    a(f"""
    s_movk_i32 s38, 2048
    s_lshl_b32 s39, 1, 17
    v_lshlrev_b32 v9, 4, v0
    s_and_b32 s56, s3, 1
    s_lshl_b32 s57, s56, 10
    s_mulk_i32 s56, {XNS}
    s_add_u32 m0, s56, {XN}
    s_lshl_b32 s14, 1, 22
    s_mov_b32 s15, s39
    v_and_b32 v2, 7, v0
    v_lshlrev_b32 v2, 4, v2
    s_waitcnt lgkmcnt(0)
    buffer_load_dwordx4 v9, s[36:39], s57 offen lds
    v_lshrrev_b32 v3, 4, v0
    v_lshlrev_b32 v3, 5, v3
    v_xor_b32 v2, v2, v3
    v_lshrrev_b32 v1, 3, v0            ; r = l>>3
    v_lshl_add_u32 v10, v1, 13, v2     ; wq: row stride 8192
    s_lshl4_add_u32 s55, s52, s3
    s_lshl_b32 s55, s55, 6
    s_add_u32 s55, s55, s49
    s_lshl3_add_u32 s55, s55, s51
    s_lshl_b32 s55, s55, 7
    s_lshl_b32 s61, s3, 10             ; lw*1024
    s_add_u32 m0, s61, {WQ_L}
    s_lshl_b32 s47, 1, 18
    """)
    stamp(6)
    n = [1]
    X = 1
    D = cfg.D
    D0 = cfg.D0 or D
    landed = [0]
    miles = {}
    def flag(val):
        a(f"v_mov_b32 v21, {val}\ns_mov_b64 exec, 1\nds_write_b32 v20, v21\ns_mov_b64 exec, -1")
    def pre_issue():
        i = n[0]
        if i >= D0:
            Dn = D
            if i >= X + 8 and cfg.Dk: Dn = cfg.Dk
            if i >= X + 24 and cfg.Dv: Dn = cfg.Dv
            if i >= X + 40 and cfg.Dt: Dn = cfg.Dt
            want = i - Dn + 1
            if want > landed[0]:
                a(f"s_waitcnt vmcnt({i - want})")
                landed[0] = want
    def post_issue():
        n[0] += 1
        for k in sorted(miles):
            if k <= landed[0]: miles.pop(k)()
    miles[1] = lambda: (flag(M_X), stamp(7))
    miles[X+4] = lambda: flag(M_WQ)
    miles[X+8] = lambda: flag(M_GU)
    miles[X+24] = lambda: (flag(M_K), stamp(5))
    miles[X+28] = lambda: flag(M_V1)
    miles[X+32] = lambda: flag(M_V2)
    miles[X+36] = lambda: flag(M_V3)
    miles[X+40] = lambda: (stamp(3), a("s_barrier"))
    def setup_rest():
        a("""
        s_load_dwordx2 s[20:21], s[0:1], 48
        s_load_dwordx2 s[24:25], s[0:1], 56
        s_load_dwordx2 s[4:5], s[0:1], 8
        s_load_dwordx2 s[8:9], s[0:1], 16
        s_load_dwordx2 s[28:29], s[0:1], 64
        s_load_dwordx2 s[16:17], s[0:1], 32
        """)
        if cfg.pf == 'l':
            a("s_cmp_lg_u32 s3, 3\ns_cbranch_scc1 L_nopf")
            code_prefetch(31, 9, 32)
            a("L_nopf:")
        a(f"""
        s_cmp_lg_u32 s3, 0
        s_cbranch_scc1 L_noinit
        v_lshlrev_b32 v4, 2, v0
        v_add_u32 v4, {FLAGS}, v4
        v_mov_b32 v5, 0
        s_mov_b64 exec, 0xffff
        ds_write_b32 v4, v5           ; progress flags start at zero
        s_mov_b64 exec, -1
L_noinit:
        v_mul_u32_u24 v5, 3584, v1
        v_add_u32 v11, v5, v2              ; gate/up: row stride 3584
        v_lshl_add_u32 v12, v1, 10, v2     ; wo/down: row stride 1024
        s_mov_b32 s22, {512*1792*2}
        s_mov_b32 s23, s39
        s_mov_b32 s26, s22
        s_mov_b32 s27, s39
        s_mov_b32 s30, s22
        s_mov_b32 s31, s39
        s_lshl_b32 s6, 1, 27
        s_mov_b32 s7, s39
        s_mov_b32 s10, s6
        s_mov_b32 s11, s39
        s_mov_b32 s18, s14
        s_mov_b32 s19, s39
        s_lshr_b32 s53, s50, 4        ; b
        s_and_b32 s54, s50, 15        ; split
        s_add_u32 s57, s51, {cfg.cgshift}
        s_and_b32 s57, s57, 7
        s_lshl_b32 s57, s57, 7
        s_lshl3_add_u32 s58, s52, s49      ; u
        s_cmp_ge_u32 s58, 28
        s_cselect_b32 s59, {OOB}, 0
        s_lshl3_add_u32 s56, s51, s3
        s_mulk_i32 s56, {8*3584}
        s_lshl_b32 s60, s58, 7
        s_add_u32 s56, s56, s60
        s_add_u32 s56, s56, s59
        v_lshrrev_b32 v1, 4, v0
        v_and_b32 v2, 15, v0
        v_xor_b32 v3, v2, v1
        v_lshlrev_b32 v3, 4, v3
        v_lshl_add_u32 v13, v1, 8, v3
        v_xor_b32 v14, 64, v13
        v_xor_b32 v15, 128, v13
        v_xor_b32 v16, 192, v13
        v_lshrrev_b32 v3, 1, v2
        v_xor_b32 v3, v3, v1
        v_lshlrev_b32 v3, 5, v3
        v_and_b32 v4, 1, v0
        v_lshl_add_u32 v3, v4, 4, v3
        v_lshl_add_u32 v17, v1, 8, v3
        v_xor_b32 v18, 128, v17
        s_lshl_b32 s62, s53, 3
        s_add_u32 s62, s62, s49
        s_lshl_b32 s62, s62, 23            ; (b*8+h) * 8MB
        s_add_u32 s62, s62, {28672*256}
        """)
        if cfg.kv == 'table':
            a(f"""
            s_load_dwordx2 s[98:99], s[0:1], 88
            s_lshl2_add_u32 s92, s2, s3
            s_lshl_b32 s92, s92, 2
            s_add_u32 s92, s92, {0x500100}
            s_waitcnt lgkmcnt(0)
            s_load_dword s93, s[98:99], s92
            s_add_u32 s98, s98, {0x500000}
            s_addc_u32 s99, s99, 0
            s_load_dwordx8 s[84:91], s[98:99], 0
            s_waitcnt lgkmcnt(0)
            s_add_u32 s62, s62, s93
            """)
        elif cfg.kv:
            a("s_mov_b32 s63, 0")
            bits = [(3, 0), (3, 1), (54, 0), (54, 1), (54, 2), (54, 3), (49, 0), (49, 1), (49, 2), (53, 0)]
            for (r, b), m in zip(bits, cfg.kv[4:]):
                if m: a(f"s_bitcmp1_b32 s{r}, {b}\ns_cselect_b32 s93, {m}, 0\ns_xor_b32 s63, s63, s93")
            a("s_add_u32 s62, s62, s63")
        contig = cfg.kvmap == 'contig'
        if cfg.kv: a("s_mov_b32 s63, 0")
        else: a(f"s_lshl_b32 s63, s54, {16 if contig else 12}\ns_add_u32 s62, s62, s63")
        if cfg.kv: pass
        elif cfg.perm == "s": a("s_xor_b32 s63, s3, s54")
        elif cfg.perm == "none": a("s_mov_b32 s63, s3")
        elif cfg.perm == "sh": a("s_add_u32 s63, s54, s49\ns_and_b32 s63, s63, 15\ns_xor_b32 s63, s63, s3")
        elif cfg.perm == "hb": a("s_lshl_b32 s63, s53, 3\ns_add_u32 s63, s63, s49\ns_xor_b32 s63, s63, s3")
        a(f"""
        s_lshl_b32 s63, s63, {12 if contig else 16}
        s_add_u32 s62, s62, s63
        s_lshl_b32 s63, s49, 2
        s_add_u32 s63, s63, s52
        s_lshl_b32 s63, s63, 4
        s_add_u32 s63, s63, s3
        s_lshl_b32 s63, s63, 13
        s_add_u32 s63, s63, s57
        s_lshl_b32 s60, s58, 3
        s_add_u32 s60, s60, s3
        s_lshl_b32 s60, s60, 13
        s_add_u32 s60, s60, s57
        s_add_u32 s60, s60, s59
        s_lshl_b32 s58, s3, 2
        s_add_u32 s58, s58, {FLAGS}
        v_mov_b32 v20, s58
        v_lshlrev_b32 v22, 2, v2
        v_add_u32 v22, {FLAGS}, v22
        s_lshl_b32 s58, s3, 12             ; lw*4096
        s_waitcnt lgkmcnt(0)
        """)
    setup_done = [False]; barrier_done = [False]
    def maybe_setup():
        if not setup_done[0] and n[0] == X + 4:
            setup_rest(); setup_done[0] = True
        if not barrier_done[0] and n[0] == D0:
            a("s_barrier"); stamp(1); barrier_done[0] = True
    def wseg(srd, v, soff, step, cnt, ldsbase, first=False):
        for i in range(cnt):
            maybe_setup()
            if i == 0:
                if not first: a(f"s_add_u32 m0, s61, {ldsbase}")
                so = f"s{soff}"
            elif first:
                a(f"s_addk_i32 m0, 4096\ns_add_u32 s{soff}, s{soff}, s47")
                so = f"s{soff}"
            else:
                a(f"s_addk_i32 m0, 4096\ns_add_u32 s46, s{soff}, {i*step}")
                so = "s46"
            pre_issue()
            a(f"buffer_load_dwordx4 v{v}, s[{srd}:{srd+3}], {so} offen {cfg.pol} lds")
            post_issue()
    wseg(12, 10, 55, 32*8192, 4, WQ_L, first=True)
    wseg(20, 11, 56, 32*3584, 2, G_L)
    wseg(24, 11, 56, 32*3584, 2, U_L)
    def kvseg(srd, regs, ldsbase, isv):
        for i in range(4):
            if isv and i == 2 and not cfg.streamonly:
                spin(23, 22, 0xff0, C_TILE)
            maybe_setup()
            if cfg.kv:
                a(f"s_add_u32 m0, s58, {ldsbase + i*16384}")
                if cfg.kv == 'table': a(f"s_xor_b32 s95, s62, s{88+i}")
                else:
                    ci = (cfg.kv[2] if i & 1 else 0) ^ (cfg.kv[3] if i & 2 else 0)
                for cc in range(4):
                    maybe_setup()
                    if cc: a("s_addk_i32 m0, 1024")
                    if cfg.kv == 'table': a(f"s_xor_b32 s96, s95, s{84+cc}")
                    else:
                        c = ci ^ (cfg.kv[0] if cc & 1 else 0) ^ (cfg.kv[1] if cc & 2 else 0)
                        a(f"s_xor_b32 s96, s62, {c}")
                    pre_issue()
                    a(f"buffer_load_dwordx4 v{regs[cc % len(regs)]}, s[{srd}:{srd+3}], s96 offen {cfg.pol} lds")
                    post_issue()
                continue
            a(f"s_add_u32 m0, s58, {ldsbase + i*16384}")
            if i == 0: so = "s62"
            else:
                a(f"s_xor_b32 s46, s62, {i*16384*(1 if cfg.kvmap == 'contig' else 16)}"); so = "s46"
            for cc in range(4):
                maybe_setup()
                pre_issue()
                a(f"buffer_load_dwordx4 v{regs[cc % len(regs)]}, s[{srd}:{srd+3}], {so} offen offset:{cc*1024} {cfg.pol} lds")
                post_issue()
    kvseg(4, [13, 14, 15, 16], K_L, False)
    kvseg(8, [17, 18], V_L, True)
    assert barrier_done[0]
    stamp(2)
    wseg(28, 12, 60, 32*1024, 2, DN_L)
    wseg(16, 12, 63, 32*1024, 4, WO_L)
    assert n[0] == 46 + X
    for k in sorted(miles):
        a(f"s_waitcnt vmcnt({46+X-k})"); miles[k]()
    a("s_waitcnt vmcnt(0)")
    flag(M_END)
    stamp(4)
    if cfg.diag:
        a("s_load_dwordx2 s[32:33], s[0:1], 88"); srd_tail(32, WS_BYTES)
        a("s_getreg_b32 s80, hwreg(HW_REG_HW_ID)")
        dump_stamps(9)
    a("s_endpgm")

    a("L_compute:")
    incompute[0] = True
    a("""
    s_load_dwordx2 s[32:33], s[0:1], 88
    s_load_dwordx4 s[40:43], s[0:1], 72
    v_lshlrev_b32 v7, 4, v0           ; l*16
    s_sub_u32 s55, s3, 4
    """)
    stamp(0)
    if cfg.pf == 'c':
        a("s_cmp_lg_u32 s55, 7\ns_cbranch_scc1 L_nopf")
        code_prefetch(122, 7, 112)
        a("L_nopf:")
    a("s_barrier")
    if cfg.streamonly: a("s_endpgm")
    if cfg.prio: a(f"s_setprio {cfg.prio}")
    srd_tail(36, 2048); srd_tail(32, WS_BYTES)
    a(f"""
    s_lshr_b32 s53, s50, 4        ; b
    s_and_b32 s54, s50, 15        ; split
    s_waitcnt lgkmcnt(0)
    s_mov_b64 s[24:25], s[42:43]  ; d_debug
    s_movk_i32 s26, 256
    s_mov_b32 s27, s39
    s_movk_i32 s42, 2048
    s_mov_b32 s43, s39
    s_load_dword s44, s[32:33], 0
    v_and_b32 v1, 15, v0              ; J
    v_lshrrev_b32 v2, 4, v0           ; G
    v_and_b32 v120, 3, v0
    v_lshl_add_u32 v120, v120, 2, v2
    v_lshlrev_b32 v120, 1, v120       ; final stage: byte offset of this lane's column
    s_lshr_b32 s30, s2, 3
    s_and_b32 s29, s2, 3
    s_lshl2_add_u32 s30, s30, s29     ; c: index of the 16 outputs this workgroup finishes
    s_and_b32 s29, s2, 0x184          ; nonzero: not a finishing workgroup
    s_cmp_lg_u32 s55, 4
    s_cbranch_scc1 L_noxr
    s_cmp_lg_u32 s29, 0
    s_cbranch_scc1 L_noxr
    s_lshr_b32 s56, s30, 3            ; cg'
    s_lshl_b32 s56, s56, 6
    s_and_b32 s58, s30, 3
    s_lshl_b32 s58, s58, 4
    s_add_u32 s56, s56, s58
    s_bfe_u32 s58, s30, 0x10002
    s_lshl_b32 s58, s58, 9
    s_add_u32 s56, s56, s58           ; element index of first column
    s_lshl_b32 s31, s56, 1
    buffer_load_ushort v121, v120, s[36:39], s31 offen
    s_lshr_b32 s56, s30, 1
    s_lshl_b32 s56, s56, 2
    s_and_b32 s58, s30, 1
    s_or_b32 s56, s56, s58
    s_lshl_b32 s56, s56, 12
    s_add_u32 s28, s56, {cfg.fr}
    s_add_u32 s56, s28, 8192
    v_lshlrev_b32 v118, 6, v0
    buffer_load_dword v119, v118, s[32:35], s28 offen {cfg.preFpol}
    buffer_load_dword v119, v118, s[32:35], s56 offen {cfg.preFpol}
    """)
    a(f"""
L_noxr:
    """)
    a(f"""
    v_lshlrev_b32 v4, 2, v1
    v_add_u32 v4, {FLAGS}, v4
    s_lshl_b32 s56, s55, 2
    s_add_u32 s56, s56, {FLAGS+16}
    v_mov_b32 v6, s56
    v_mov_b32 v3, 0xffffff00
    s_lshl_b32 s62, s49, 2
    s_add_u32 s62, s62, s52           ; 4h+rg
    s_and_b32 s56, s55, 3             ; mt
    v_lshrrev_b32 v8, 2, v1
    v_lshl_add_u32 v8, v2, 2, v8      ; r
    v_bfe_u32 v9, v8, 1, 2
    v_xor_b32 v9, s56, v9
    v_lshlrev_b32 v9, 5, v9
    v_and_b32 v10, 3, v1
    v_lshlrev_b32 v11, 3, v10         ; (i&3)*8
    v_add_u32 v9, v9, v11
    v_lshl_add_u32 v15, v8, 7, v9     ; vT
    v_and_b32 v10, 1, v1
    v_mul_u32_u24 v12, {XNS}, v10
    v_lshl_add_u32 v12, v2, 3, v12    ; (j&1)*XNS + g*8
    ; first publish slot: q partial (cw<4) or gate/up partial
    s_lshl_b32 s57, s49, 14
    s_lshl_b32 s58, s52, 11
    s_add_u32 s57, s57, s58
    s_lshl_b32 s58, s51, 8
    s_add_u32 s57, s57, s58
    s_add_u32 s57, s57, {QA}
    s_lshl_b32 s58, s62, 13
    s_lshl_b32 s59, s51, 10
    s_add_u32 s58, s58, s59
    s_add_u32 s58, s58, {GA}
    s_lshl_b32 s59, s52, 8
    s_lshl_b32 s60, s51, 7
    s_cmp_lt_u32 s55, 4
    s_cselect_b32 s57, s57, s58
    s_cselect_b32 s59, s59, s60
    s_mov_b32 s60, {WQ_L}
    s_cselect_b32 s60, s60, {G_L}
    s_cselect_b32 s61, 13, 8
    s_mov_b32 s63, 0x00030003
    s_cselect_b32 s63, s63, 0x000f000f
    s_lshl_b32 s56, s56, 6
    s_add_u32 s57, s57, s56           ; publish soffset (near)
    s_add_u32 s59, s59, {XN}
    v_add_u32 v12, s59, v12
    v_add_u32 v9, s60, v15
    v_lshlrev_b32 v13, s61, v1
    v_lshl_add_u32 v13, v2, 4, v13    ; publish voffset
    """)
    if cfg.pre1:
        a("s_mov_b32 exec_lo, s63\ns_mov_b32 exec_hi, s63\nbuffer_load_dword v123, v13, s[32:35], s57 offen\ns_mov_b64 exec, -1")
    def cflag(val):
        a(f"v_mov_b32 v5, {val}\ns_mov_b64 exec, 1\nds_write_b32 v6, v5\ns_mov_b64 exec, -1")
    def wait(mask, val, body=None): spin(5, 4, mask, val, body)
    def allreduce(x, t, op):
        for d in ("quad_perm:[1,0,3,2]", "quad_perm:[2,3,0,1]", "row_half_mirror", "row_mirror"):
            a(f"{op}_dpp v{x}, v{x}, v{x} {d} row_mask:0xf bank_mask:0xf")
        a(f"v_mov_b32 v{t}, v{x}\nv_permlane16_swap_b32 v{x}, v{t}\n{op} v{x}, v{x}, v{t}")
        a(f"v_mov_b32 v{t}, v{x}\nv_permlane32_swap_b32 v{x}, v{t}\n{op} v{x}, v{x}, v{t}")
    def unpack(src, dst, n):
        for i in range(n):
            a(f"v_lshlrev_b32 v{dst+2*i}, 16, v{src+i}\nv_and_b32 v{dst+2*i+1}, 0xffff0000, v{src+i}")
    def pack(src, dst, n):
        for i in range(n):
            a(f"v_cvt_pk_bf16_f32 v{dst+i}, v{src+2*i}, v{src+2*i+1}")
    def rbf(x, d=None):
        d = x if d is None else d
        a(f"v_cvt_pk_bf16_f32 v{d}, v{x}, v{x}\nv_lshlrev_b32 v{d}, 16, v{d}")
    def tag(src, dst, last=48):
        for i in range(4):
            a(f"v_and_or_b32 v{dst+i}, v{src+i}, v3, s{45+i if i < 3 else last}")
    def check(regs, last=97, masked=False, t=5):
        for k, r in enumerate(regs):
            for i in range(4): a(f"v_xor_b32 v{r+i}, s{45+i if i < 3 else last}, v{r+i}")
            if masked:
                if k == 0: a(f"v_or3_b32 v{t}, v{r}, v{r+1}, v{r+2}\nv_mov_b32 v127, v{r+3}")
                else: a(f"v_or3_b32 v{t}, v{t}, v{r}, v{r+1}\nv_or_b32 v{t}, v{t}, v{r+2}\nv_or_b32 v127, v127, v{r+3}")
            elif k == 0: a(f"v_or3_b32 v{t}, v{r}, v{r+1}, v{r+2}\nv_or_b32 v{t}, v{t}, v{r+3}")
            else: a(f"v_or3_b32 v{t}, v{t}, v{r}, v{r+1}\nv_or3_b32 v{t}, v{t}, v{r+2}, v{r+3}")
        if masked: a(f"v_and_or_b32 v{t}, v127, s101, v{t}")
        a(f"v_and_b32 v{t}, 0xff, v{t}\nv_cmp_ne_u32 vcc, 0, v{t}")
    def issue(loads, soffs):
        for (r, va, si, imm) in loads:
            a(f"buffer_load_dwordx4 v[{r}:{r+3}], v{va}, s[32:35], s{soffs[si]} offen offset:{imm} sc1")
    def poll(loads, soffs, each=None, pre_issued=None, **kw):
        top, chk, done = L("p"), L("pc"), L("pd")
        a("s_mov_b32 s59, 0")
        if pre_issued is not None: a(f"s_waitcnt vmcnt({pre_issued})\ns_branch {chk}")
        a(f"{top}:\ns_add_u32 s59, s59, 1")
        if each: each()
        issue(loads, soffs)
        a(f"s_waitcnt vmcnt(0)\n{chk}:")
        check([r for (r, _, _, _) in loads], **kw)
        a(f"s_cbranch_vccz {done}\ns_cmp_lt_u32 s59, {cfg.NMAX}\ns_cbranch_scc1 {top}\n{done}:")
    def mstore(r, va, so):
        f, d = L("ms"), L("md")
        a(f"s_cmp_lg_u32 s98, 0\ns_cbranch_scc1 {f}\nbuffer_store_dwordx4 v[{r}:{r+3}], v{va}, s[32:35], s{so} offen {NP}\ns_branch {d}\n{f}:\nbuffer_store_dwordx4 v[{r}:{r+3}], v{va}, s[32:35], s{so} offen sc1\n{d}:")
    def far_first():
        t = L("ff")
        a(f"s_cmp_lg_u32 s95, 0\ns_cbranch_scc1 {t}\ns_mov_b32 s95, 1\ns_mov_b32 exec_lo, s63\ns_mov_b32 exec_hi, s63\nbuffer_store_dwordx4 v[52:55], v13, s[32:35], s58 offen sc1\ns_mov_b64 exec, -1\n{t}:")

    a("s_cmp_ge_u32 s55, 2\ns_cbranch_scc1 L_noln")
    a(f"s_mul_i32 s56, s55, {XNS}\ns_add_u32 s56, s56, {XN}\nv_add_u32 v14, s56, v7")
    wait(0xf, M_X)
    a("ds_read_b128 v[16:19], v14\ns_waitcnt lgkmcnt(0)")
    stamp(1)
    unpack(16, 20, 4)
    a("""
    v_add_f32 v28, v20, v21
    v_add_f32 v29, v22, v23
    v_add_f32 v30, v24, v25
    v_add_f32 v31, v26, v27
    v_add_f32 v28, v28, v29
    v_add_f32 v30, v30, v31
    v_add_f32 v28, v28, v30
    """)
    allreduce(28, 29, "v_add_f32")
    a("v_mul_f32 v28, 0x3b000000, v28")
    for i in range(8): a(f"v_sub_f32 v{32+i}, v{20+i}, v28")
    a("v_mul_f32 v29, v32, v32\nv_mul_f32 v30, v33, v33")
    for i in range(2, 8, 2): a(f"v_fmac_f32 v29, v{32+i}, v{32+i}\nv_fmac_f32 v30, v{33+i}, v{33+i}")
    a("v_add_f32 v29, v29, v30")
    rbf(28)
    for i in range(8): a(f"v_sub_f32 v{32+i}, v{20+i}, v28")
    allreduce(29, 30, "v_add_f32")
    pack(32, 16, 4)
    a("v_mul_f32 v29, 0x3b000000, v29")
    rbf(29)
    a("v_add_f32 v29, 0x3727c5ac, v29")
    rbf(29)
    a("v_sqrt_f32 v29, v29")
    unpack(16, 32, 4)
    rbf(29)
    a("v_rcp_f32 v29, v29")
    for i in range(8): a(f"v_mul_f32 v{32+i}, v{32+i}, v29")
    pack(32, 16, 4)
    a("ds_write_b128 v14, v[16:19]")
    cflag(C_XN)
    a("L_noln:")
    a(f"""
    s_waitcnt lgkmcnt(0)
    s_and_b32 s45, s44, 0x7f7f7f7f
    s_add_u32 s45, s45, 0x01010101
    s_and_b32 s44, s44, 0x80808080
    s_xor_b32 s44, s44, s45
    s_and_b32 s45, s44, 0xff
    s_bfe_u32 s46, s44, 0x80008
    s_bfe_u32 s47, s44, 0x80010
    s_lshr_b32 s48, s44, 24
    s_getreg_b32 s96, hwreg(HW_REG_XCC_ID, 0, 4)
    s_xor_b32 s96, s96, s48           ; byte 3 of the first hand-off's tag carries the die id
    s_mov_b32 s97, s96
    s_mov_b32 s98, 0
    s_mov_b32 s101, -1
    s_mov_b32 s95, 0
    s_add_u32 s58, s57, {MIR}
    v_and_b32 v10, 2, v1
    v_cmp_ne_u32 s[60:61], 0, v10
    """)
    wait(0x30, C_XN)
    a("s_cmp_ge_u32 s55, 4\ns_cbranch_scc1 L_gu")
    for k in range(4): a(f"ds_read2_b64 v[{32+4*k}:{35+4*k}], v12 offset0:{8*k} offset1:{8*k+4}")
    wait(0xf, M_WQ)
    stamp(2)
    for k in range(4):
        for t in range(2): a(f"ds_read_b64_tr_b16 v[{16+4*k+2*t}:{17+4*k+2*t}], v9 offset:{k*4096+t*2048}")
    cflag(C_TILE)
    a("s_waitcnt lgkmcnt(0)")
    for k in range(4):
        a(f"v_mfma_f32_16x16x32_bf16 v[48:51], v[{16+4*k}:{19+4*k}], v[{32+4*k}:{35+4*k}], {'0' if k==0 else 'v[48:51]'}")
    a("s_branch L_pub1")
    a("L_gu:")
    for k in range(2): a(f"ds_read2_b64 v[{32+4*k}:{35+4*k}], v12 offset0:{8*k} offset1:{8*k+4}")
    wait(0xf, M_GU)
    stamp(2)
    for m in range(2):
        for k in range(2):
            for t in range(2): a(f"ds_read_b64_tr_b16 v[{16+8*m+4*k+2*t}:{17+8*m+4*k+2*t}], v9 offset:{m*8192+k*4096+t*2048}")
    cflag(C_TILE)
    a("s_waitcnt lgkmcnt(0)")
    for k in range(2):
        a(f"v_mfma_f32_16x16x32_bf16 v[48:51], v[{16+4*k}:{19+4*k}], v[{32+4*k}:{35+4*k}], {'0' if k==0 else 'v[48:51]'}")
        a(f"v_mfma_f32_16x16x32_bf16 v[56:59], v[{24+4*k}:{27+4*k}], v[{32+4*k}:{35+4*k}], {'0' if k==0 else 'v[56:59]'}")
    for i in range(4): a(f"v_cndmask_b32 v{48+i}, v{48+i}, v{56+i}, s[60:61]")
    a("L_pub1:\ns_nop 7")
    tag(48, 52, 96)
    a("s_mov_b32 exec_lo, s63\ns_mov_b32 exec_hi, s63")
    a(f"buffer_store_dwordx4 v[52:55], v13, s[32:35], s57 offen {NP}")
    a("s_mov_b64 exec, -1")
    stamp(3)
    if cfg.side == 'auto':
        a(f"""
        s_cmp_lt_u32 s55, 4
        s_cbranch_scc1 L_noprobe
        s_cmp_lg_u32 s2, {cfg.leader}
        s_cbranch_scc1 L_noprobe
        s_lshl_b32 s4, s55, 7
        s_and_b32 s5, s55, 1
        s_lshl_b32 s5, s5, 13
        s_add_u32 s4, s4, s5
        s_add_u32 s4, s4, {cfg.fr + PROBE}
        s_xor_b32 s5, s4, 0x2000
        s_add_u32 s6, s32, s4
        s_addc_u32 s7, s33, 0
        s_add_u32 s8, s32, s5
        s_addc_u32 s9, s33, 0
        s_load_dword s10, s[6:7], 0 glc
        s_load_dword s11, s[8:9], 0 glc
        s_mov_b32 s16, 0
        s_waitcnt lgkmcnt(0)
        """)
        for r in range(cfg.rounds):
            a("""
            s_memtime s[12:13]
            s_waitcnt lgkmcnt(0)
            s_load_dword s10, s[6:7], 0 glc
            s_waitcnt lgkmcnt(0)
            s_memtime s[14:15]
            s_waitcnt lgkmcnt(0)
            s_load_dword s10, s[8:9], 0 glc
            s_waitcnt lgkmcnt(0)
            s_memtime s[18:19]
            s_waitcnt lgkmcnt(0)
            s_lshl_b32 s14, s14, 1
            s_sub_u32 s14, s14, s12
            s_sub_u32 s14, s14, s18          ; first - second
            s_add_u32 s16, s16, s14
            """)
        a(f"""
        s_sub_u32 s14, 0, s16
        s_bitcmp1_b32 s55, 0
        s_cselect_b32 s16, s14, s16
        s_min_i32 s16, s16, 2047
        s_max_i32 s16, s16, -2047
        s_add_u32 s16, s16, {(1 << 20) + 2048}
        v_mov_b32 v5, s16
        s_mov_b64 exec, 1
        ds_add_rtn_u32 v16, v4, v5 offset:60
        s_waitcnt lgkmcnt(0)
        v_readfirstlane_b32 s14, v16
        s_add_u32 s14, s14, s16
        s_lshr_b32 s15, s14, 20
        s_cmp_lg_u32 s15, 4
        s_cbranch_scc1 L_noprobe2
        s_and_b32 s14, s14, 0xfffff
        s_cmp_gt_u32 s14, {4*2048}
        s_cselect_b32 s14, {'1, 2' if cfg.leader & 4 else '2, 1'}
        v_mov_b32 v16, s14
        v_mov_b32 v17, 0
        buffer_store_dword v16, v17, s[24:27], 0 offen sc1
L_noprobe2:
        s_mov_b64 exec, -1
L_noprobe:
        """)
    a(f"""
    v_and_b32 v10, 3, v1
    v_mul_u32_u24 v9, {QBS}, v10
    v_lshl_add_u32 v9, v2, 4, v9
    v_add_u32 v9, {QB}, v9
    s_lshl_b32 s56, s55, 13
    v_xor_b32 v12, v1, v2
    v_lshlrev_b32 v12, 4, v12
    v_lshl_add_u32 v12, v1, 8, v12
    v_add_u32 v12, s56, v12           ; K operand address, step 0
    v_xor_b32 v62, 64, v12
    v_xor_b32 v63, 128, v12
    v_xor_b32 v64, 192, v12
    """)
    a("s_cmp_ge_u32 s55, 2\ns_cbranch_scc1 L_noq")
    a(f"""
    s_lshl_b32 s56, s55, 10
    v_add_u32 v126, s56, v7
    s_lshl_b32 s99, s49, 14
    s_lshl_b32 s100, s53, 13
    s_add_u32 s99, s99, s100
    s_add_u32 s99, s99, {QA}
    s_add_u32 s100, s99, 4096
    s_lshl_b32 s56, s55, 1
    v_lshrrev_b32 v14, 5, v0
    v_add_u32 v14, s56, v14
    v_mul_u32_u24 v14, {QBS}, v14
    v_and_b32 v16, 31, v0
    v_lshl_add_u32 v14, v16, 3, v14
    v_add_u32 v14, {QB}, v14
    """)
    if cfg.qtrig: wait(0xf, cfg.qtrig)
    def q_each():
        t = L("qe")
        a(f"s_cmp_lt_u32 s59, {cfg.N0}\ns_cbranch_scc1 {t}")
        a("v_mov_b32 v5, 1\ns_mov_b64 exec, 1\nds_write_b32 v4, v5 offset:56\ns_mov_b64 exec, -1")
        far_first()
        a(f"s_xor_b32 s98, s98, {MIR}\ns_xor_b32 s99, s99, {MIR}\ns_xor_b32 s100, s100, {MIR}\ns_xor_b32 s101, s101, 15\n{t}:")
    poll([(16, 126, 0, 0), (20, 126, 0, 2048), (24, 126, 1, 0), (28, 126, 1, 2048)], [99, 100], each=q_each, last=96, masked=True)
    a("v_and_b32 v127, 15, v127\nv_cmp_ne_u32 vcc, 0, v127\ns_cbranch_vccnz L_remote\ns_mov_b32 s98, 0\nL_remote:")
    for r in (19, 23, 27, 31): a(f"v_and_b32 v{r}, v{r}, v3")
    for i in range(4): a(f"v_add_f32 v{16+i}, v{16+i}, v{20+i}\nv_add_f32 v{24+i}, v{24+i}, v{28+i}")
    for i in range(4): a(f"v_add_f32 v{16+i}, v{16+i}, v{24+i}")
    pack(16, 20, 2)
    a("ds_write_b64 v14, v[20:21]")
    a("v_mov_b32 v5, s98\ns_mov_b64 exec, 1\nds_write_b32 v6, v5 offset:32\ns_mov_b64 exec, -1")
    cflag(C_Q)
    a("L_noq:")
    stamp(4)
    def watch():
        t = L("wt")
        a(f"v_cmp_ne_u32 vcc, 0, v5\ns_and_b64 vcc, vcc, 0x4000\ns_cbranch_vccz {t}")
        far_first()
        a(f"{t}:")
    wait(0x30, C_Q, watch)
    a(f"v_cmp_ne_u32 vcc, 0, v5\ns_and_b64 vcc, vcc, 0x3000\ns_mov_b32 s98, 0\ns_mov_b32 s101, -1\ns_cbranch_vccz L_near\ns_mov_b32 s98, {MIR}\ns_mov_b32 s97, s48\ns_mov_b32 s101, 0xfffffff0")
    far_first()
    a("L_near:")
    for st in range(4): a(f"ds_read_b128 v[{16+4*st}:{19+4*st}], v9 offset:{64*st}")
    wait(0xf, M_K)
    stamp(5)
    ka = [12, 62, 63, 64]
    for tt in range(2):
        for st in range(4):
            r = 32 + 16*tt + 4*st
            if r == 52: r = 92
            if r == 60: r = 88
            a(f"ds_read_b128 v[{r}:{r+3}], v{ka[st]} offset:{tt*4096}")
    a(f"""
    v_lshlrev_b32 v9, 5, v10
    v_add_u32 v9, {MX}, v9
    s_lshl_b32 s56, s55, 2
    v_add_u32 v12, s56, v9
    s_lshl_b32 s56, s55, 8
    v_lshlrev_b32 v13, 6, v2
    v_lshl_add_u32 v13, v10, 4, v13
    v_add_u32 v13, {PB}, v13
    v_add_u32 v14, s56, v13
    s_waitcnt lgkmcnt(0)
    """)
    for st in range(4):
        for tt in range(2):
            r = 32 + 16*tt + 4*st; d = 68 + 4*tt
            if r == 52: r = 92
            if r == 60: r = 88
            a(f"v_mfma_f32_16x16x32_bf16 v[{d}:{d+3}], v[{r}:{r+3}], v[{16+4*st}:{19+4*st}], {'0' if st==0 else f'v[{d}:{d+3}]'}")
    pack(68, 32, 4)
    unpack(32, 36, 4)
    for i in range(8): a(f"v_mul_f32 v{36+i}, 0x3db504f3, v{36+i}")
    pack(36, 32, 4)
    unpack(32, 36, 4)
    a("""
    v_max3_f32 v56, v36, v37, v38
    v_max3_f32 v57, v39, v40, v41
    v_max3_f32 v56, v56, v42, v43
    v_max_f32 v56, v56, v57
    v_mov_b32 v57, v56
    v_permlane16_swap_b32 v56, v57
    v_max_f32 v56, v56, v57
    v_mov_b32 v57, v56
    v_permlane32_swap_b32 v56, v57
    v_max_f32 v56, v56, v57
    s_mov_b64 exec, 15
    ds_write_b32 v12, v56
    """)
    cflag(C_MAX)
    wait(0xff0, C_MAX)
    a(f"""
    ds_read_b128 v[44:47], v9
    ds_read_b128 v[48:51], v9 offset:16
    s_mov_b32 s56, {LOG2E}
    s_waitcnt lgkmcnt(0)
    v_max3_f32 v56, v44, v45, v46
    v_max3_f32 v57, v47, v48, v49
    v_max3_f32 v56, v56, v50, v51
    v_max_f32 v56, v56, v57           ; m
    v_mul_f32 v57, s56, v56
    """)
    for i in range(8): a(f"v_fma_f32 v{36+i}, v{36+i}, s56, -v57")
    for i in range(8): a(f"v_exp_f32 v{36+i}, v{36+i}")
    pack(36, 32, 4)
    exmask16(0xf)
    a("ds_write_b128 v14, v[32:35]")
    cflag(C_P)
    a(f"""
    v_and_b32 v9, 7, v8
    v_xor_b32 v9, s55, v9
    v_lshlrev_b32 v9, 5, v9
    v_add_u32 v9, v9, v11
    v_lshl_add_u32 v9, v8, 8, v9
    v_add_u32 v9, {V_L}, v9
    v_lshlrev_b32 v12, 14, v1
    v_lshl_add_u32 v12, v2, 4, v12    ; o publish: head*16384 + g*16
    s_lshl_b32 s56, s49, 16
    s_lshl_b32 s57, s50, 9
    s_add_u32 s56, s56, s57
    s_lshl_b32 s57, s55, 6
    s_add_u32 s56, s56, s57
    s_add_u32 s56, s56, {OA}          ; o publish soffset
    s_add_u32 s56, s56, s98
    """)
    if cfg.pretouch:
        exmask16(0xf)
        a("buffer_load_dword v123, v12, s[32:35], s56 offen\ns_mov_b64 exec, -1")
    wait(0xff0, C_P)
    for kb in range(8): a(f"ds_read_b128 v[{16+4*kb}:{19+4*kb}], v13 offset:{kb*256}")
    a("s_waitcnt lgkmcnt(0)")
    stamp(6)
    a("s_cmp_lg_u32 s55, 3\ns_cbranch_scc1 L_nol")
    for i in range(4): a(f"v_mov_b32 v{52+i}, 0x3f803f80")
    for kb in range(8):
        a(f"v_mfma_f32_16x16x32_bf16 v[60:63], v[52:55], v[{16+4*kb}:{19+4*kb}], {'0' if kb==0 else 'v[60:63]'}")
    a(f"""
    v_lshlrev_b32 v13, 9, v0
    s_lshl_b32 s57, s49, 11
    s_lshl_b32 s58, s50, 4
    s_add_u32 s57, s57, s58
    s_add_u32 s57, s57, {MA}
    s_add_u32 s57, s57, s98
    v_mov_b32 v58, 0
    v_mov_b32 v59, 0
    v_mov_b32 v57, v60
    """)
    tag(56, 60, 97)
    a("s_mov_b64 exec, 15")
    mstore(60, 13, 57)
    a("s_mov_b64 exec, -1")
    a("L_nol:")
    a(f"""
    v_lshrrev_b32 v10, 3, v0          ; ss
    v_and_b32 v14, 7, v0              ; gi
    v_lshlrev_b32 v13, 4, v10
    v_lshlrev_b32 v10, 9, v10
    v_lshl_add_u32 v10, v14, 4, v10
    s_lshr_b32 s60, s55, 2            ; b'
    s_and_b32 s61, s55, 3             ; dq
    s_lshl_b32 s58, s62, 1
    s_add_u32 s58, s58, s60           ; (4h+rg)*2 + b'
    s_lshl_b32 s57, s58, 8
    s_add_u32 s57, s57, {MA}
    s_add_u32 s57, s57, s98
    s_lshl_b32 s58, s58, 13
    s_lshl_b32 s91, s61, 7
    s_add_u32 s58, s58, s91
    s_add_u32 s58, s58, {OA}          ; o soffset
    s_add_u32 s58, s58, s98
    s_add_u32 s91, s58, 4096
    s_mul_i32 s60, s60, {OBS}
    s_lshl_b32 s61, s61, 6
    s_add_u32 s60, s60, s61
    s_add_u32 s60, s60, {OB}
    v_lshlrev_b32 v14, 3, v14
    v_lshl_add_u32 v14, v2, 1, v14
    v_add_u32 v14, s60, v14
    ; projection-stage addresses
    v_and_b32 v93, 1, v1
    v_mul_u32_u24 v90, {OBS}, v93
    v_lshl_add_u32 v90, v2, 3, v90
    v_add_u32 v90, {OB}, v90          ; o operand
    v_mul_u32_u24 v91, {HBS}, v93
    v_lshl_add_u32 v91, v2, 3, v91
    v_add_u32 v91, {HB}, v91          ; h operand
    v_add_u32 v15, {WO_L}, v15
    v_lshlrev_b32 v92, 15, v93
    v_bfe_u32 v93, v1, 1, 1
    v_lshl_add_u32 v92, v93, 6, v92
    v_lshl_add_u32 v92, v2, 4, v92    ; b*32768 + kind*64 + g*16
    v_cmp_ne_u32 s[60:61], 0, v93
    s_lshl_b32 s92, s51, 16
    s_and_b32 s93, s55, 2
    s_lshl_b32 s93, s93, 1
    s_and_b32 s59, s55, 1
    s_or_b32 s93, s93, s59
    s_lshl_b32 s93, s93, 12
    s_add_u32 s92, s92, s93
    s_lshl_b32 s93, s62, 7
    s_add_u32 s92, s92, s93
    s_add_u32 s92, s92, {cfg.fr}
    """)
    if cfg.preF == 'st':
        a("s_cmp_ge_u32 s55, 4\ns_cbranch_scc1 L_nops")
        exmask16(0xf)
        a(f"v_mov_b32 v96, 0\nv_mov_b32 v97, 0\nv_mov_b32 v98, 0\nv_mov_b32 v99, 0\nbuffer_store_dwordx4 v[96:99], v92, s[32:35], s92 offen {cfg.fst}\ns_mov_b64 exec, -1\nL_nops:")
    a(f"""
    v_mov_b32 v94, 0
    s_mov_b64 exec, 0x20f
    v_mov_b32 v94, {M_END}            ; thresholds: loaders finished, h written (M_END == C_H)
    s_mov_b64 exec, -1
    """)
    assert M_END == C_H
    def pv(m):
        for kk in range(2):
            kb = 2*m + kk
            for t in range(2):
                r = 64 + 4*kk + 2*t
                a(f"ds_read_b64_tr_b16 v[{r}:{r+1}], v9 offset:{kb*8192+t*4096}")
        for kk in range(2):
            kb = 2*m + kk
            a(f"s_waitcnt lgkmcnt({2 if kk == 0 and not cfg.diag else 0})")
            a(f"v_mfma_f32_16x16x32_bf16 v[72:75], v[{64+4*kk}:{67+4*kk}], v[{16+4*kb}:{19+4*kb}], {'0' if kb==0 else 'v[72:75]'}")
    ml = [(80, 13, 0, 0), (84, 13, 0, 128)]
    hl = [(96+4*k if k < 6 else 48+4*(k-6), 7, k//4, (k % 4)*1024) for k in range(8)]
    a(f"""
    s_cmp_lg_u32 s55, 5
    s_cbranch_scc1 L_noh0
    s_lshl_b32 s99, s62, 13
    s_add_u32 s99, s99, {GA}
    s_add_u32 s99, s99, s98
    s_add_u32 s100, s99, 4096
    """)
    issue(hl, [99, 100])
    a("L_noh0:")
    wait(0xf, M_V1); pv(0)
    wait(0xf, M_V2); pv(1)
    issue(ml, [57])
    def side_load():
        if cfg.side == 'auto' and cfg.force is None:
            a("v_mov_b32 v123, 0\nv_mov_b32 v122, 1")
            if cfg.sidewave != 'all': a("s_cmp_ge_u32 s55, 5\ns_cbranch_scc1 L_nosl")
            a("s_mov_b64 exec, 1\nbuffer_load_dword v122, v123, s[24:27], 0 offen sc1\ns_mov_b64 exec, -1")
            if cfg.sidewave != 'all': a("L_nosl:")
    if cfg.sideat == 'V2': side_load()
    wait(0xf, M_V3); pv(2)
    if cfg.sideat == 'V3': side_load()
    stamp(7)
    a("s_barrier")
    stamp(8)
    pv(3)
    tag(72, 76, 97)
    exmask16(0xf)
    mstore(76, 12, 56)
    cflag(C_PUB)
    tstamp(1)
    a("s_cmp_lg_u32 s55, 5\ns_cbranch_scc1 L_noh")
    a(f"""
    v_mul_u32_u24 v124, {HBS}, v2
    v_lshl_add_u32 v124, v1, 3, v124
    v_add_u32 v124, {HB}, v124
    """)
    poll(hl, [99, 100], pre_issued=1, last=96, masked=True)
    for (r, _, _, _) in hl: a(f"v_and_b32 v{r+3}, v{r+3}, v3")
    b = 96
    for i in range(4):
        a(f"v_add_f32 v{b+i}, v{b+i}, v{b+4+i}\nv_add_f32 v{b+8+i}, v{b+8+i}, v{b+12+i}\nv_add_f32 v{b+16+i}, v{b+16+i}, v{b+20+i}\nv_add_f32 v{48+i}, v{48+i}, v{52+i}")
    for i in range(4): a(f"v_add_f32 v{b+i}, v{b+i}, v{b+8+i}\nv_add_f32 v{b+16+i}, v{b+16+i}, v{48+i}")
    for i in range(4): a(f"v_add_f32 v{b+i}, v{b+i}, v{b+16+i}")
    pack(b, 56, 2)
    a("v_mov_b32 v58, v56\nv_mov_b32 v59, v57\nv_permlane32_swap_b32 v56, v58\nv_permlane32_swap_b32 v57, v59")
    unpack(56, 24, 2)
    unpack(58, 28, 2)
    for i in range(4): a(f"v_mul_f32 v{24+i}, 0xbfb8aa3b, v{24+i}")
    for i in range(4): a(f"v_exp_f32 v{24+i}, v{24+i}")
    for i in range(4): a(f"v_add_f32 v{24+i}, 1.0, v{24+i}")
    for i in range(4): a(f"v_rcp_f32 v{24+i}, v{24+i}")
    pack(24, 56, 2)
    unpack(56, 24, 2)
    for i in range(4): a(f"v_mul_f32 v{24+i}, v{24+i}, v{28+i}")
    pack(24, 56, 2)
    a("s_mov_b64 exec, 0xffffffff\nds_write_b64 v124, v[56:57]\ns_mov_b64 exec, -1")
    cflag(C_H)
    a("L_noh:")
    poll(ml, [57], pre_issued=1)
    a(f"""
    s_mov_b32 s59, {LOG2E}
    v_max_f32 v88, v80, v84
    v_max_f32_dpp v88, v88, v88 row_ror:8 row_mask:0xf bank_mask:0xf
    v_mov_b32 v89, v88
    v_permlane16_swap_b32 v88, v89
    v_max_f32 v88, v88, v89
    v_mov_b32 v89, v88
    v_permlane32_swap_b32 v88, v89
    v_max_f32 v88, v88, v89
    v_sub_f32 v80, v80, v88
    v_sub_f32 v84, v84, v88
    v_mul_f32 v80, s59, v80
    v_mul_f32 v84, s59, v84
    v_exp_f32 v80, v80
    v_exp_f32 v84, v84
    v_mul_f32 v88, v80, v81
    v_fmac_f32 v88, v84, v85
    v_add_f32_dpp v88, v88, v88 row_ror:8 row_mask:0xf bank_mask:0xf
    v_mov_b32 v89, v88
    v_permlane16_swap_b32 v88, v89
    v_add_f32 v88, v88, v89
    v_mov_b32 v89, v88
    v_permlane32_swap_b32 v88, v89
    v_add_f32 v88, v88, v89
    v_rcp_f32 v88, v88
    v_mul_f32 v80, v80, v88
    v_mul_f32 v84, v84, v88
    """)
    if cfg.side == 'auto' and cfg.force is None:
        a(f"""
        s_mov_b32 s59, 0
L_side:
        v_readfirstlane_b32 s29, v122
        s_add_u32 s59, s59, 1
        s_cmp_lg_u32 s29, 0
        s_cbranch_scc1 L_sideok
        s_cmp_ge_u32 s59, {cfg.NMAX}
        s_cbranch_scc1 L_sideok
        buffer_load_dword v122, v123, s[24:27], 0 offen sc1
        s_waitcnt vmcnt(0)
        s_branch L_side
L_sideok:
        s_and_b32 s29, s29, 2
        s_lshl_b32 s29, s29, 12
        """)
    else: a(f"s_mov_b32 s29, {(cfg.side if cfg.force is None else cfg.force)*8192}")
    a("s_add_u32 s92, s92, s29\ns_add_u32 s28, s28, s29")
    tstamp(2)
    wait(0xff0, C_PUB)
    tstamp(3)
    oA = [(16, 10, 0, 0), (20, 10, 1, 0)]
    def reduce_scatter(r):
        a(f"""
        v_permlane32_swap_b32 v{r}, v{r+2}
        v_permlane32_swap_b32 v{r+1}, v{r+3}
        v_add_f32 v{r}, v{r}, v{r+2}
        v_add_f32 v{r+1}, v{r+1}, v{r+3}
        v_permlane16_swap_b32 v{r}, v{r+1}
        v_add_f32 v{r}, v{r}, v{r+1}
        v_add_f32_dpp v{r}, v{r}, v{r} row_ror:8 row_mask:0xf bank_mask:0xf
        """)
    if not cfg.tail2:
        poll([(16, 10, 0, 0), (20, 10, 1, 0)], [58, 91], t=95)
        stamp(9)
        a("ds_read_b32 v5, v4")
        for i in range(4): a(f"v_mul_f32 v{16+i}, v{16+i}, v80")
        for i in range(4): a(f"v_fmac_f32 v{16+i}, v{20+i}, v84")
        reduce_scatter(16)
        a("v_cvt_pk_bf16_f32 v16, v16, v16\nds_write_b16 v14, v16")
        a("s_cmp_ge_u32 s55, 4\ns_cbranch_scc1 L_final")
        a(f"s_waitcnt lgkmcnt({0 if cfg.diag else 1})\nv_cmp_gt_u32 vcc, v94, v5\ns_cbranch_vccz L_tiles")
        spin(5, 4, None, "v94")
        a("L_tiles:")
        tstamp(4)
        for k in range(2): a(f"ds_read2_b64 v[{56+4*k}:{59+4*k}], v91 offset0:{8*k} offset1:{8*k+4}")
        for k in range(2):
            for t in range(2): a(f"ds_read_b64_tr_b16 v[{32+4*k+2*t}:{33+4*k+2*t}], v15 offset:{16384+k*4096+t*2048}")
        for k in range(4):
            for t in range(2): a(f"ds_read_b64_tr_b16 v[{96+4*k+2*t}:{97+4*k+2*t}], v15 offset:{k*4096+t*2048}")
        a(f"s_waitcnt lgkmcnt({0 if cfg.diag else 14})\ns_barrier")
        stamp(10)
        a("s_waitcnt lgkmcnt(11)")
        for k in range(4): a(f"ds_read2_b64 v[{40+4*k}:{43+4*k}], v90 offset0:{8*k} offset1:{8*k+4}")
        a(f"s_waitcnt lgkmcnt({0 if cfg.diag else 12})")
        for k in range(2):
            a(f"v_mfma_f32_16x16x32_bf16 v[68:71], v[{32+4*k}:{35+4*k}], v[{56+4*k}:{59+4*k}], {'0' if k==0 else 'v[68:71]'}")
        for k in range(4):
            a(f"s_waitcnt lgkmcnt({0 if cfg.diag else 3-k})")
            a(f"v_mfma_f32_16x16x32_bf16 v[64:67], v[{96+4*k}:{99+4*k}], v[{40+4*k}:{43+4*k}], {'0' if k==0 else 'v[64:67]'}")
        exmask16(0xf)
        for i in range(4): a(f"v_cndmask_b32 v{64+i}, v{64+i}, v{68+i}, s[60:61]")
        tag(64, 68, 48)
        a(f"buffer_store_dwordx4 v[68:71], v92, s[32:35], s92 offen {cfg.fst}")
    else:
        issue(oA, [58, 91])
        a("s_cmp_ge_u32 s55, 4\ns_cbranch_scc1 L_nopre")
        for i in range(40, 64): a(f"v_mov_b32 v{i}, 0")
        spin(5, 4, None, "v94")
        tstamp(4)
        exmask16(0xc)
        for k in range(2): a(f"ds_read2_b64 v[{56+4*k}:{59+4*k}], v91 offset0:{8*k} offset1:{8*k+4}")
        a("s_mov_b64 exec, -1")
        for k in range(2):
            for t in range(2): a(f"ds_read_b64_tr_b16 v[{32+4*k+2*t}:{33+4*k+2*t}], v15 offset:{16384+k*4096+t*2048}")
        for k in range(4):
            for t in range(2): a(f"ds_read_b64_tr_b16 v[{96+4*k+2*t}:{97+4*k+2*t}], v15 offset:{k*4096+t*2048}")
        a("L_nopre:")
        poll(oA, [58, 91], pre_issued=0)
        stamp(9)
        for i in range(0, 4, 2): a(f"v_pk_mul_f32 v[{16+i}:{17+i}], v[{16+i}:{17+i}], v[80:81] op_sel_hi:[1,0]")
        for i in range(0, 4, 2): a(f"v_pk_fma_f32 v[{16+i}:{17+i}], v[{20+i}:{21+i}], v[84:85], v[{16+i}:{17+i}] op_sel_hi:[1,0,1]")
        reduce_scatter(16)
        a("v_cvt_pk_bf16_f32 v16, v16, v16\nds_write_b16 v14, v16")
        a("s_cmp_ge_u32 s55, 4\ns_cbranch_scc1 L_final\ns_waitcnt lgkmcnt(9)")
        for k in range(2):
            a(f"v_mfma_f32_16x16x32_bf16 v[64:67], v[{32+4*k}:{35+4*k}], v[{56+4*k}:{59+4*k}], {'0' if k==0 else 'v[64:67]'}")
        exmask16(0x3)
        a("s_waitcnt lgkmcnt(0)\ns_barrier")
        stamp(10)
        for k in range(4): a(f"ds_read2_b64 v[{40+4*k}:{43+4*k}], v90 offset0:{8*k} offset1:{8*k+4}")
        a("s_mov_b64 exec, -1")
        for k in range(4):
            a(f"s_waitcnt lgkmcnt({0 if cfg.diag else 3-k})")
            a(f"v_mfma_f32_16x16x32_bf16 v[64:67], v[{96+4*k}:{99+4*k}], v[{40+4*k}:{43+4*k}], v[64:67]")
        exmask16(0xf)
        tag(64, 68, 48)
        a(f"buffer_store_dwordx4 v[68:71], v92, s[32:35], s92 offen {cfg.fst}")
    stamp(11)
    dump_stamps(12)
    a("s_endpgm")
    a("L_final:\ns_waitcnt lgkmcnt(0)\ns_barrier")
    stamp(10)
    a("s_cmp_lg_u32 s55, 4\ns_cbranch_scc1 L_fin_exit\ns_and_b32 s59, s2, 0x184\ns_cbranch_scc1 L_fin_exit")
    a("s_mov_b32 s57, s28\ns_mov_b32 s59, 0")
    def fissue(base):
        for k in range(4): a(f"buffer_load_dwordx4 v[{base+4*k}:{base+3+4*k}], v7, s[32:35], s57 offen offset:{k*1024} {cfg.fld}")
    if cfg.fmode == 'plain':
        a("L_fp:")
        fissue(16)
        a("s_add_u32 s59, s59, 1\ns_waitcnt vmcnt(0)")
        if cfg.diag == 2:
            a("s_cmp_lg_u32 s59, 1\ns_cbranch_scc1 L_nf1")
            tstamp(5)
            a("L_nf1:")
        check([16, 20, 24, 28], 48)
        a(f"s_cbranch_vccz L_fok\ns_cmp_lt_u32 s59, {cfg.NMAX}\ns_cbranch_scc1 L_fp\nL_fok:")
        if cfg.diag == 2: a("s_mov_b32 s76, s59")
    elif cfg.fmode == 'pipe':
        fissue(16)
        a("L_fp:")
        fissue(32)
        a("s_add_u32 s59, s59, 1\ns_waitcnt vmcnt(4)")
        check([16, 20, 24, 28], 48)
        a("s_cbranch_vccz L_fok")
        fissue(16)
        a("s_waitcnt vmcnt(4)")
        check([32, 36, 40, 44], 48)
        a(f"s_cbranch_vccz L_fok2\ns_cmp_lt_u32 s59, {cfg.NMAX}\ns_cbranch_scc1 L_fp\nL_fok2:\ns_waitcnt vmcnt(0)")
        for i in range(16): a(f"v_mov_b32 v{16+i}, v{32+i}")
        a("L_fok:")
    elif cfg.fmode == 'mask':
        for k in range(4): a(f"s_mov_b64 s[{4+2*k}:{5+2*k}], -1")
        a("L_fp:")
        for k in range(4):
            a(f"s_mov_b64 exec, s[{4+2*k}:{5+2*k}]\ns_cbranch_execz L_fs{k}\nbuffer_load_dwordx4 v[{16+4*k}:{19+4*k}], v7, s[32:35], s57 offen offset:{k*1024} {cfg.fld}\nL_fs{k}:")
        a("s_add_u32 s59, s59, 1\ns_waitcnt vmcnt(0)")
        for k in range(4):
            a(f"s_mov_b64 exec, s[{4+2*k}:{5+2*k}]")
            check([16+4*k], 48)
            a(f"s_mov_b64 s[{4+2*k}:{5+2*k}], vcc")
        a(f"s_or_b64 s[12:13], s[4:5], s[6:7]\ns_or_b64 s[14:15], s[8:9], s[10:11]\ns_or_b64 s[12:13], s[12:13], s[14:15]\ns_cbranch_scc0 L_fok\ns_cmp_lt_u32 s59, {cfg.NMAX}\ns_cbranch_scc1 L_fp\nL_fok:\ns_mov_b64 exec, -1")
    stamp(11)
    for i in range(4): a(f"v_add_f32 v{16+i}, v{16+i}, v{20+i}\nv_add_f32 v{24+i}, v{24+i}, v{28+i}")
    for i in range(4): a(f"v_add_f32 v{16+i}, v{16+i}, v{24+i}")
    reduce_scatter(16)
    a("v_mov_b32_dpp v17, v16 row_ror:4 row_mask:0xf bank_mask:0xf")
    rbf(16); rbf(17)
    a(f"""
    v_mul_f32 v18, 0xbfb8aa3b, v17
    v_exp_f32 v18, v18
    v_lshlrev_b32 v121, 16, v121
    v_add_f32 v18, 1.0, v18
    v_rcp_f32 v18, v18
    v_mul_f32 v17, v17, v18
    """)
    rbf(17)
    a("v_mul_f32 v16, v16, v17")
    rbf(16)
    a("v_add_f32 v16, v121, v16\nv_cvt_pk_bf16_f32 v16, v16, v16")
    exmask16(0xf)
    a("buffer_store_short v16, v120, s[40:43], s31 offen")
    a("s_cmp_lg_u32 s2, 0\ns_cbranch_scc1 L_fin_exit\nv_mov_b32 v16, s44\nv_mov_b32 v17, 0\ns_mov_b64 exec, 1\nbuffer_store_dword v16, v17, s[32:35], 0 offen sc1")
    if cfg.amp:
        a("s_memrealtime s[88:89]\ns_waitcnt lgkmcnt(0)")
        i, k = cfg.amp
        if i is None: a(f"s_add_u32 s90, s64, {k}")
        else: a(f"s_sub_u32 s90, s{64+2*i}, s64\ns_mul_i32 s90, s90, {k}\ns_add_u32 s90, s90, s64")
        a("L_amp:\ns_memrealtime s[92:93]\ns_waitcnt lgkmcnt(0)\ns_sub_u32 s91, s92, s90\ns_cmp_lt_i32 s91, 0\ns_cbranch_scc1 L_amp")
    a("L_fin_exit:")
    stamp(12)
    dump_stamps(13)
    a("L_exit:\ns_endpgm\nL_codeend:")
    body = a.text()
    head = f"""; Fused decode step: layernorm -> (q projection, sliding-window GQA attention, o projection) gated by a GLU branch.
; One launch, 256 workgroups of 12 waves: waves 0-3 stream weights and K/V into LDS, waves 4-11 compute.
; @launch grid=(256,1,1) block=(768,1,1) lds=163840
.amdgcn_target "amdgcn-amd-amdhsa--gfx950"
.text
.globl {NAME}
.p2align 8
.type {NAME},@function
{NAME}:
"""
    tail = f"""
.section .rodata,"a"
.p2align 6
.amdhsa_kernel {NAME}
  .amdhsa_next_free_vgpr 128
  .amdhsa_next_free_sgpr 102
  .amdhsa_accum_offset 128
  .amdhsa_group_segment_fixed_size 0
  .amdhsa_kernarg_size 96
  .amdhsa_user_sgpr_count 2
  .amdhsa_user_sgpr_kernarg_segment_ptr 1
  .amdhsa_system_sgpr_workgroup_id_x 1
  .amdhsa_float_denorm_mode_32 3
.end_amdhsa_kernel
"""
    return head + body + tail

if __name__ == "__main__":
    kw = {}
    out = "recurrent_scan__sliding_block_cached__glu_gated_glu__decode.s"
    for arg in sys.argv[1:]:
        if arg.startswith("out="): out = arg[4:]; continue
        k, v = arg.split("=")
        try: v = eval(v)
        except Exception: pass
        kw[k] = v
    open(out, "w").write(gen(Cfg(**kw)))
    print("wrote", out)
```

```python
import sys
from asmlib import Asm

NAME = "recurrent_scan__sliding_block_cached__glu_gated_glu__decode_kernel"

K_L, V_L = 0, 65536
WQ_L, G_L, U_L = 98304, 114688, 122880
WO_L, DN_L = 131072, 147456
SM = 155648
FLAGS, MX, HB, OB, QB, XN, PB = SM, SM+64, SM+256, SM+640, SM+1280, SM+2560, SM+4864
HBS, OBS, QBS, XNS = 192, 320, 320, 1088
QA, GA, MA, OA, MIR, FR, DIAG = 0x10000, 0x30000, 0x70000, 0x80000, 0x100000, 0x200000, 0x400000
WS_BYTES = 0x8000000
PROBE = 0x80000
LOG2E = "0x3fb8aa3b"
OOB = 0x40000000
M_X, M_WQ, M_GU, M_K, M_V1, M_V2, M_V3, M_DN, M_W1, M_W2, M_W3, M_END = 1, 2, 3, 4, 5, 6, 7, 8, 9, 10, 11, 12
C_XN, C_TILE, C_Q, C_MAX, C_P, C_PUB, C_H = 1, 2, 3, 4, 5, 6, 8

class Cfg:
    D = 6
    D0 = None
    diag = False
    N0 = 64
    NMAX = 400000
    perm = "s"
    pf = 'c'
    safe = False
    pol = 'nt'
    prio = 2
    kvmap = 'contig'
    fmode = 'pipe'
    near_pol = ''
    cgshift = 0
    probe = None
    side = 'auto'
    adapt = None
    lprio = 3
    earlywar = True
    abl = ''
    prog = False
    dnpos = 4
    wopos = 0
    dnearly = True
    omask = False
    tlb = ''
    pkadd = True
    rounds = 1
    fin = 0
    force = None
    sidewave = 'five'
    sideat = 'V2'
    leader = None
    qtrig = 3
    fmap = None
    tail2 = True
    Dk = 5
    Dv = None
    Dt = 5
    kv = [x << 10 for x in [8,16,1,512,4,2,64,32,128,258,0,512,16,0]]
    preout = False
    pre1 = False
    pretouch = False
    fst = 'sc1'
    fld = 'sc1'
    wb = ''
    wbj = 31
    preF = 'split'
    preFpol = 'sc1'
    fr = FR
    streamonly = False
    amp = None
    def __init__(self, **kw):
        for k, v in kw.items():
            assert hasattr(self, k), k
            setattr(self, k, v)

def gen(cfg):
    a = Asm()
    if cfg.leader is None: cfg.leader = cfg.fin ^ 0x80
    inv = ((cfg.leader ^ cfg.fin) & 4) != 0
    incompute = [False]
    def stamp(i):
        if cfg.diag == 2 and incompute[0] and 1 <= i <= 6: return
        if cfg.diag: a(f"s_memrealtime s[{64+2*i}:{65+2*i}]")
    def tstamp(i):
        if cfg.diag == 2: a(f"s_memrealtime s[{64+2*i}:{65+2*i}]")
    def dump_stamps(n):
        if not cfg.diag or cfg.amp: return
        a("s_waitcnt lgkmcnt(0)")
        a("s_mov_b64 exec, -1")
        a("v_mov_b32 v125, 0")
        for i in range(n):
            a(f"v_writelane_b32 v125, s{64+2*i}, {i}")
        a(f"s_mul_i32 s62, s2, {12*64}\ns_lshl_b32 s63, s3, 6\ns_add_u32 s62, s62, s63\ns_add_u32 s62, s62, {DIAG}")
        a("v_lshlrev_b32 v124, 2, v0\ns_mov_b64 exec, 0xffff")
        a("buffer_store_dword v125, v124, s[32:35], s62 offen")
    def srd_tail(r, n):
        a(f"s_mov_b32 s{r+2}, {n}\ns_mov_b32 s{r+3}, 0x20000")
    def exmask16(m):
        v = hex(m | (m << 16)); a(f"s_mov_b32 exec_lo, {v}\ns_mov_b32 exec_hi, {v}")
    lab = [0]
    def L(p):
        lab[0] += 1
        return f"L{p}{lab[0]}"
    def spin(vdst, vaddr, mask, val, body=None):
        w = L("w")
        if cfg.safe: a("s_mov_b32 s94, 0")
        a(f"{w}:\nds_read_b32 v{vdst}, v{vaddr}")
        if cfg.safe: a(f"s_add_u32 s94, s94, 1\ns_bitcmp1_b32 s94, 20\ns_cbranch_scc1 {w}x")
        a("s_waitcnt lgkmcnt(0)")
        if body: body()
        a(f"v_cmp_gt_u32 vcc, {val}, v{vdst}")
        if mask is not None: a(f"s_and_b64 vcc, vcc, {hex(mask)}")
        if 's' in cfg.abl and incompute[0]: a(f"s_cbranch_vccz {w}y\ns_sleep 1\ns_branch {w}\n{w}y:")
        else: a(f"s_cbranch_vccnz {w}")
        if cfg.safe: a(f"{w}x:\ns_waitcnt lgkmcnt(0)")
    NP = cfg.near_pol
    def code_prefetch(vt, v16, dst):
        a(f"""
        s_getpc_b64 s[60:61]
L_pc:
        s_sub_u32 s60, s60, L_pc-{NAME}
        s_subb_u32 s61, s61, 0
        s_lshl_b32 s58, s51, 10
        v_add_u32 v{vt}, s58, v{v16}
        v_cmp_gt_u32 vcc, L_codeend-{NAME}, v{vt}
        s_and_saveexec_b64 s[58:59], vcc
        s_cbranch_execz L_nopf2
        global_load_dwordx4 v[{dst}:{dst+3}], v{vt}, s[60:61]
L_nopf2:
        s_mov_b64 exec, -1
        v_add_u32 v{vt}, 8192, v{vt}
        v_cmp_gt_u32 vcc, L_codeend-{NAME}, v{vt}
        s_and_saveexec_b64 s[58:59], vcc
        s_cbranch_execz L_nopf3
        global_load_dwordx4 v[{dst+4}:{dst+7}], v{vt}, s[60:61]
L_nopf3:
        s_mov_b64 exec, -1
        """)

    a(f"""
    s_load_dwordx2 s[36:37], s[0:1], 0
    s_load_dwordx2 s[12:13], s[0:1], 24
    s_cmpk_ge_u32 s2, 256
    s_cbranch_scc1 L_exit
    v_lshrrev_b32 v1, 6, v0
    v_and_b32 v0, 63, v0
    s_lshr_b32 s50, s2, 3         ; j
    v_readfirstlane_b32 s3, v1    ; wave
    s_and_b32 s49, s2, 7          ; h
    s_and_b32 s51, s50, 7         ; cg
    s_lshr_b32 s52, s50, 3        ; rg
    s_cmp_ge_u32 s3, 4
    s_cbranch_scc1 L_compute
    """)
    stamp(0)
    if cfg.adapt: a("s_memrealtime s[100:101]")
    a(f"""
    s_movk_i32 s38, 2048
    {"s_setprio %d" % cfg.lprio if cfg.lprio else ""}
    s_lshl_b32 s39, 1, 17
    v_lshlrev_b32 v9, 4, v0
    s_and_b32 s56, s3, 1
    s_lshl_b32 s57, s56, 10
    s_mulk_i32 s56, {XNS}
    s_add_u32 m0, s56, {XN}
    s_lshl_b32 s14, 1, 22
    s_mov_b32 s15, s39
    v_and_b32 v2, 7, v0
    v_lshlrev_b32 v2, 4, v2
    s_waitcnt lgkmcnt(0)
    buffer_load_dwordx4 v9, s[36:39], s57 offen lds
    v_lshrrev_b32 v3, 4, v0
    v_lshlrev_b32 v3, 5, v3
    v_xor_b32 v2, v2, v3
    v_lshrrev_b32 v1, 3, v0            ; r = l>>3
    v_lshl_add_u32 v10, v1, 13, v2     ; wq: row stride 8192
    s_lshl4_add_u32 s55, s52, s3
    s_lshl_b32 s55, s55, 6
    s_add_u32 s55, s55, s49
    s_lshl3_add_u32 s55, s55, s51
    s_lshl_b32 s55, s55, 7
    s_lshl_b32 s61, s3, 10             ; lw*1024
    s_add_u32 m0, s61, {WQ_L}
    s_lshl_b32 s47, 1, 18
    """)
    stamp(6)
    n = [1]
    X = 1
    D = cfg.D
    D0 = cfg.D0 or D
    landed = [0]
    Dover = [None]
    miles = {}
    def flag(val):
        a(f"v_mov_b32 v21, {val}\ns_mov_b64 exec, 1\nds_write_b32 v20, v21\ns_mov_b64 exec, -1")
    def pre_issue():
        i = n[0]
        if i >= D0:
            Dn = D
            if i >= X + 8 and cfg.Dk: Dn = cfg.Dk
            if i >= X + 24 and cfg.Dv: Dn = cfg.Dv
            if i >= X + last['v3'] and cfg.Dt: Dn = cfg.Dt
            if Dover[0]: Dn = Dover[0]
            Dn = int(Dn) + (1 if (Dn != int(Dn) and i & 1) else 0)
            want = i - Dn + 1
            if want > landed[0]:
                a(f"s_waitcnt vmcnt({i - want})")
                landed[0] = want
    def post_issue():
        n[0] += 1
        for k in sorted(miles):
            if k <= landed[0]: miles.pop(k)()
    miles[1] = lambda: (flag(M_X), stamp(7))
    miles[X+4] = lambda: flag(M_WQ)
    miles[X+8] = lambda: flag(M_GU)
    miles[X+24] = lambda: (flag(M_K), stamp(5))
    miles[X+28] = lambda: flag(M_V1)
    miles[X+32] = lambda: flag(M_V2)
    miles[X+36] = lambda: flag(M_V3)
    miles[X+40] = lambda: (stamp(3), a("s_barrier"))
    if cfg.dnearly: miles[X+42] = lambda: flag(M_DN)
    if cfg.prog:
        miles[X+42] = lambda: flag(M_DN)
        miles[X+43] = lambda: flag(M_W1)
        miles[X+44] = lambda: flag(M_W2)
        miles[X+45] = lambda: flag(M_W3)
    def setup_rest():
        a("""
        s_load_dwordx2 s[20:21], s[0:1], 48
        s_load_dwordx2 s[24:25], s[0:1], 56
        s_load_dwordx2 s[4:5], s[0:1], 8
        s_load_dwordx2 s[8:9], s[0:1], 16
        s_load_dwordx2 s[28:29], s[0:1], 64
        s_load_dwordx2 s[16:17], s[0:1], 32
        """)
        if cfg.pf == 'l':
            a("s_cmp_lg_u32 s3, 3\ns_cbranch_scc1 L_nopf")
            code_prefetch(31, 9, 32)
            a("L_nopf:")
        a(f"""
        s_cmp_lg_u32 s3, 0
        s_cbranch_scc1 L_noinit
        v_lshlrev_b32 v4, 2, v0
        v_add_u32 v4, {FLAGS}, v4
        v_mov_b32 v5, 0
        s_mov_b64 exec, 0xffff
        ds_write_b32 v4, v5           ; progress flags start at zero
        s_mov_b64 exec, -1
L_noinit:
        v_mul_u32_u24 v5, 3584, v1
        v_add_u32 v11, v5, v2              ; gate/up: row stride 3584
        v_lshl_add_u32 v12, v1, 10, v2     ; wo/down: row stride 1024
        s_mov_b32 s22, {512*1792*2}
        s_mov_b32 s23, s39
        s_mov_b32 s26, s22
        s_mov_b32 s27, s39
        s_mov_b32 s30, s22
        s_mov_b32 s31, s39
        s_lshl_b32 s6, 1, 27
        s_mov_b32 s7, s39
        s_mov_b32 s10, s6
        s_mov_b32 s11, s39
        s_mov_b32 s18, s14
        s_mov_b32 s19, s39
        s_lshr_b32 s53, s50, 4        ; b
        s_and_b32 s54, s50, 15        ; split
        s_add_u32 s57, s51, {cfg.cgshift}
        s_and_b32 s57, s57, 7
        s_lshl_b32 s57, s57, 7
        s_lshl3_add_u32 s58, s52, s49      ; u
        s_cmp_ge_u32 s58, 28
        s_cselect_b32 s59, {OOB}, 0
        s_lshl3_add_u32 s56, s51, s3
        s_mulk_i32 s56, {8*3584}
        s_lshl_b32 s60, s58, 7
        s_add_u32 s56, s56, s60
        s_add_u32 s56, s56, s59
        v_lshrrev_b32 v1, 4, v0
        v_and_b32 v2, 15, v0
        v_xor_b32 v3, v2, v1
        v_lshlrev_b32 v3, 4, v3
        v_lshl_add_u32 v13, v1, 8, v3
        v_xor_b32 v14, 64, v13
        v_xor_b32 v15, 128, v13
        v_xor_b32 v16, 192, v13
        v_lshrrev_b32 v3, 1, v2
        v_xor_b32 v3, v3, v1
        v_lshlrev_b32 v3, 5, v3
        v_and_b32 v4, 1, v0
        v_lshl_add_u32 v3, v4, 4, v3
        v_lshl_add_u32 v17, v1, 8, v3
        v_xor_b32 v18, 128, v17
        s_lshl_b32 s62, s53, 3
        s_add_u32 s62, s62, s49
        s_lshl_b32 s62, s62, 23            ; (b*8+h) * 8MB
        s_add_u32 s62, s62, {28672*256}
        """)
        if cfg.kv == 'table':
            a(f"""
            s_load_dwordx2 s[98:99], s[0:1], 88
            s_lshl2_add_u32 s92, s2, s3
            s_lshl_b32 s92, s92, 2
            s_add_u32 s92, s92, {0x500100}
            s_waitcnt lgkmcnt(0)
            s_load_dword s93, s[98:99], s92
            s_add_u32 s98, s98, {0x500000}
            s_addc_u32 s99, s99, 0
            s_load_dwordx8 s[84:91], s[98:99], 0
            s_waitcnt lgkmcnt(0)
            s_add_u32 s62, s62, s93
            """)
        elif cfg.kv:
            a("s_mov_b32 s63, 0")
            bits = [(3, 0), (3, 1), (54, 0), (54, 1), (54, 2), (54, 3), (49, 0), (49, 1), (49, 2), (53, 0)]
            for (r, b), m in zip(bits, cfg.kv[4:]):
                if m: a(f"s_bitcmp1_b32 s{r}, {b}\ns_cselect_b32 s93, {m}, 0\ns_xor_b32 s63, s63, s93")
            a("s_add_u32 s62, s62, s63")
        contig = cfg.kvmap == 'contig'
        if cfg.kv: a("s_mov_b32 s63, 0")
        else: a(f"s_lshl_b32 s63, s54, {16 if contig else 12}\ns_add_u32 s62, s62, s63")
        if cfg.kv: pass
        elif cfg.perm == "s": a("s_xor_b32 s63, s3, s54")
        elif cfg.perm == "none": a("s_mov_b32 s63, s3")
        elif cfg.perm == "sh": a("s_add_u32 s63, s54, s49\ns_and_b32 s63, s63, 15\ns_xor_b32 s63, s63, s3")
        elif cfg.perm == "hb": a("s_lshl_b32 s63, s53, 3\ns_add_u32 s63, s63, s49\ns_xor_b32 s63, s63, s3")
        a(f"""
        s_lshl_b32 s63, s63, {12 if contig else 16}
        s_add_u32 s62, s62, s63
        s_lshl_b32 s63, s49, 2
        s_add_u32 s63, s63, s52
        s_lshl_b32 s63, s63, 4
        s_add_u32 s63, s63, s3
        s_lshl_b32 s63, s63, 13
        s_add_u32 s63, s63, s57
        s_lshl_b32 s60, s58, 3
        s_add_u32 s60, s60, s3
        s_lshl_b32 s60, s60, 13
        s_add_u32 s60, s60, s57
        s_add_u32 s60, s60, s59
        s_lshl_b32 s58, s3, 2
        s_add_u32 s58, s58, {FLAGS}
        v_mov_b32 v20, s58
        v_lshlrev_b32 v22, 2, v2
        v_add_u32 v22, {FLAGS}, v22
        s_lshl_b32 s58, s3, 12             ; lw*4096
        s_waitcnt lgkmcnt(0)
        """)
        if cfg.tlb == 's':
            a(f"""
            s_cmp_lg_u32 s3, 1
            s_cbranch_scc1 L_notlb
            s_load_dword s97, s[4:5], s62
            s_load_dword s97, s[8:9], s62
            s_and_b32 s95, s63, 0x3fffff
            s_load_dword s97, s[16:17], s95
            s_load_dword s97, s[28:29], 0
            s_load_dword s97, s[24:25], 0
L_notlb:
            """)
    setup_done = [False]; barrier_done = [False]
    def maybe_setup():
        if not setup_done[0] and n[0] == X + 4:
            setup_rest(); setup_done[0] = True
        if not barrier_done[0] and n[0] == D0:
            a("s_barrier"); stamp(1); barrier_done[0] = True
    steps = []
    def wsteps(srd, v, soff, step, cnt, ldsbase, first=False):
        for i in range(cnt):
            def f(i=i):
                maybe_setup()
                if i == 0:
                    if not first: a(f"s_add_u32 m0, s61, {ldsbase}")
                    so = f"s{soff}"
                elif first:
                    a(f"s_addk_i32 m0, 4096\ns_add_u32 s{soff}, s{soff}, s47"); so = f"s{soff}"
                else:
                    a(f"s_add_u32 m0, s61, {ldsbase + i*4096}\ns_add_u32 s46, s{soff}, {i*step}"); so = "s46"
                pre_issue()
                a(f"buffer_load_dwordx4 v{v}, s[{srd}:{srd+3}], {so} offen {cfg.pol} lds")
                post_issue()
            steps.append(f)
    def kvsteps(srd, regs, ldsbase, isv):
        for i in range(4):
            for cc in range(4):
                def f(i=i, cc=cc):
                    if cc == 0 and isv and i == 2 and not cfg.streamonly and 'a' not in cfg.abl:
                        if cfg.earlywar:
                            w = L("ew")
                            a(f"s_waitcnt lgkmcnt(0)\nv_cmp_gt_u32 vcc, {C_TILE}, v23\ns_and_b64 vcc, vcc, 0xff0\ns_cbranch_vccz {w}")
                            spin(23, 22, 0xff0, C_TILE)
                            a(f"{w}:")
                        else: spin(23, 22, 0xff0, C_TILE)
                    if cfg.earlywar and cc == 2 and isv and i == 1 and not cfg.streamonly: a("ds_read_b32 v23, v22")
                    maybe_setup()
                    if cc == 0: a(f"s_add_u32 m0, s58, {ldsbase + i*16384}")
                    else: a("s_addk_i32 m0, 1024")
                    c = (cfg.kv[2] if i & 1 else 0) ^ (cfg.kv[3] if i & 2 else 0) ^ (cfg.kv[0] if cc & 1 else 0) ^ (cfg.kv[1] if cc & 2 else 0)
                    a(f"s_xor_b32 s96, s62, {c}")
                    pre_issue()
                    a(f"buffer_load_dwordx4 v{regs[cc % len(regs)]}, s[{srd}:{srd+3}], s96 offen {cfg.pol} lds")
                    post_issue()
                steps.append(f)
    wsteps(12, 10, 55, 32*8192, 4, WQ_L, first=True)
    wsteps(20, 11, 56, 32*3584, 2, G_L)
    wsteps(24, 11, 56, 32*3584, 2, U_L)
    kvsteps(4, [13, 14, 15, 16], K_L, False)
    kvsteps(8, [17, 18], V_L, True)
    wsteps(28, 12, 60, 32*1024, 2, DN_L)
    wsteps(16, 12, 63, 32*1024, 4, WO_L)
    head, V, DN, WO = steps[:24], steps[24:40], steps[40:42], steps[42:46]
    order = [('h', f) for f in head]
    for q in range(4):
        if cfg.dnpos == q: order += [('d', f) for f in DN]
        if q == 3: order += [('w', f) for f in WO[:cfg.wopos]]
        order += [('v%d' % q, f) for f in V[4*q:4*q+4]]
    if cfg.dnpos == 4: order += [('d', f) for f in DN]
    order += [('w', f) for f in WO[cfg.wopos:]]
    steps = [f for _, f in order]
    last = {k: i + 1 for i, (k, _) in enumerate(order)}
    if not cfg.prog:
        for old, new in ((28, 'v0'), (32, 'v1'), (36, 'v2'), (40, 'v3')):
            miles[('n', X + last[new])] = miles.pop(X + old)
        for k in [k for k in miles if isinstance(k, tuple)]: miles[k[1]] = miles.pop(k)
    def finish():
        assert n[0] == 46 + X and barrier_done[0]
        for k in sorted(miles):
            a(f"s_waitcnt vmcnt({46+X-k})"); miles[k]()
        miles.clear()
        a("s_waitcnt vmcnt(0)")
        flag(M_END)
        stamp(4)
        if cfg.diag:
            a("s_load_dwordx2 s[32:33], s[0:1], 88"); srd_tail(32, WS_BYTES)
            a("s_getreg_b32 s80, hwreg(HW_REG_HW_ID)")
            dump_stamps(9)
        a("s_endpgm")
    if not cfg.adapt:
        for f in steps: f()
        finish()
    else:
        at, levels = cfg.adapt
        for f in steps[:at - X]: f()
        a("s_memrealtime s[98:99]\ns_waitcnt lgkmcnt(0)\ns_sub_u32 s98, s98, s100")
        for li, (ticks, dep) in enumerate(levels):
            a(f"s_cmp_gt_u32 s98, {ticks}\ns_cbranch_scc1 L_late{li}")
        saved = (n[0], landed[0], dict(miles))
        for li, (ticks, dep) in enumerate([(None, None)] + list(levels)):
            n[0], landed[0] = saved[0], saved[1]; miles.clear(); miles.update(saved[2])
            if li: a(f"L_late{li-1}:")
            Dover[0] = dep
            for f in steps[at - X:]: f()
            finish()

    a("L_compute:")
    incompute[0] = True
    a("""
    s_load_dwordx2 s[32:33], s[0:1], 88
    s_load_dwordx4 s[40:43], s[0:1], 72
    v_lshlrev_b32 v7, 4, v0           ; l*16
    s_sub_u32 s55, s3, 4
    """)
    stamp(0)
    if cfg.pf == 'c':
        a("s_cmp_lg_u32 s55, 7\ns_cbranch_scc1 L_nopf")
        code_prefetch(122, 7, 112)
        a("L_nopf:")
    a("s_barrier")
    if cfg.streamonly: a("s_endpgm")
    if cfg.prio: a(f"s_setprio {cfg.prio}")
    srd_tail(36, 2048); srd_tail(32, WS_BYTES)
    a(f"""
    s_lshr_b32 s53, s50, 4        ; b
    s_and_b32 s54, s50, 15        ; split
    s_waitcnt lgkmcnt(0)
    s_mov_b64 s[24:25], s[42:43]  ; d_debug
    s_movk_i32 s26, 256
    s_mov_b32 s27, s39
    s_movk_i32 s42, 2048
    s_mov_b32 s43, s39
    s_load_dword s44, s[32:33], 0
    v_and_b32 v1, 15, v0              ; J
    v_lshrrev_b32 v2, 4, v0           ; G
    v_and_b32 v120, 3, v0
    v_lshl_add_u32 v120, v120, 2, v2
    v_lshlrev_b32 v120, 1, v120       ; final stage: byte offset of this lane's column
    s_bfe_u32 s30, s2, 0x40003
    s_and_b32 s29, s2, 3
    s_lshl2_add_u32 s30, s30, s29     ; c: index of the 16 outputs this workgroup finishes
    s_and_b32 s29, s2, 0x84
    s_xor_b32 s29, s29, {cfg.fin}     ; nonzero: not a finishing workgroup
    s_mov_b32 s22, s29
    s_lshr_b32 s56, s30, 1
    s_lshl_b32 s56, s56, 2
    s_and_b32 s58, s30, 1
    s_or_b32 s56, s56, s58
    s_lshl_b32 s56, s56, 12
    s_add_u32 s28, s56, {cfg.fr}
    s_cmp_lg_u32 s55, 4
    s_cbranch_scc1 L_noxr
    s_cmp_lg_u32 s29, 0
    s_cbranch_scc1 L_noxr
    s_lshr_b32 s56, s30, 3            ; cg'
    s_lshl_b32 s56, s56, 6
    s_and_b32 s58, s30, 3
    s_lshl_b32 s58, s58, 4
    s_add_u32 s56, s56, s58
    s_bfe_u32 s58, s30, 0x10002
    s_lshl_b32 s58, s58, 9
    s_add_u32 s56, s56, s58           ; element index of first column
    s_lshl_b32 s31, s56, 1
    buffer_load_ushort v121, v120, s[36:39], s31 offen
    s_add_u32 s56, s28, 8192
    v_lshlrev_b32 v118, 6, v0
    {"" if 'F' in cfg.abl or cfg.preF != 'start' else f"buffer_load_dword v119, v118, s[32:35], s28 offen {cfg.preFpol}"}
    {"" if 'F' in cfg.abl or cfg.preF != 'start' else f"buffer_load_dword v119, v118, s[32:35], s56 offen {cfg.preFpol}"}
L_noxr:
    """)
    if cfg.preF == 'split':
        a(f"""
        s_cmp_lg_u32 s55, 6
        s_cbranch_scc1 L_nosp
        s_and_b32 s56, s2, 4
        s_cbranch_scc1 L_nosp
        v_lshlrev_b32 v118, 6, v0
        s_lshr_b32 s56, s2, 7
        s_lshl_b32 s56, s56, 13
        s_add_u32 s56, s56, s28
        buffer_load_dword v119, v118, s[32:35], s56 offen {cfg.preFpol}
L_nosp:
        """)
    if cfg.preF == 'slack':

        a(f"""
        s_cmp_lg_u32 s55, 6
        s_cbranch_scc1 L_nosk
        s_and_b32 s56, s2, 0xc4
        s_cmp_lg_u32 s56, 0xc4
        s_cbranch_scc1 L_nosk
        v_lshlrev_b32 v118, 6, v0
        s_add_u32 s56, s28, 8192
        buffer_load_dword v119, v118, s[32:35], s28 offen {cfg.preFpol}
        buffer_load_dword v119, v118, s[32:35], s56 offen {cfg.preFpol}
        s_sub_u32 s58, s28, {16*16384}
        s_sub_u32 s56, s56, {16*16384}
        buffer_load_dword v119, v118, s[32:35], s58 offen {cfg.preFpol}
        buffer_load_dword v119, v118, s[32:35], s56 offen {cfg.preFpol}
L_nosk:
        """)
    a(f"""
    """)
    a(f"""
    v_lshlrev_b32 v4, 2, v1
    v_add_u32 v4, {FLAGS}, v4
    s_lshl_b32 s56, s55, 2
    s_add_u32 s56, s56, {FLAGS+16}
    v_mov_b32 v6, s56
    v_mov_b32 v3, 0xffffff00
    s_lshl_b32 s62, s49, 2
    s_add_u32 s62, s62, s52           ; 4h+rg
    s_and_b32 s56, s55, 3             ; mt
    v_lshrrev_b32 v8, 2, v1
    v_lshl_add_u32 v8, v2, 2, v8      ; r
    v_bfe_u32 v9, v8, 1, 2
    v_xor_b32 v9, s56, v9
    v_lshlrev_b32 v9, 5, v9
    v_and_b32 v10, 3, v1
    v_lshlrev_b32 v11, 3, v10         ; (i&3)*8
    v_add_u32 v9, v9, v11
    v_lshl_add_u32 v15, v8, 7, v9     ; vT
    v_and_b32 v10, 1, v1
    v_mul_u32_u24 v12, {XNS}, v10
    v_lshl_add_u32 v12, v2, 3, v12    ; (j&1)*XNS + g*8
    ; first publish slot: q partial (cw<4) or gate/up partial
    s_lshl_b32 s57, s49, 14
    s_lshl_b32 s58, s52, 11
    s_add_u32 s57, s57, s58
    s_lshl_b32 s58, s51, 8
    s_add_u32 s57, s57, s58
    s_add_u32 s57, s57, {QA}
    s_lshl_b32 s58, s62, 13
    s_lshl_b32 s59, s51, 10
    s_add_u32 s58, s58, s59
    s_add_u32 s58, s58, {GA}
    s_lshl_b32 s59, s52, 8
    s_lshl_b32 s60, s51, 7
    s_cmp_lt_u32 s55, 4
    s_cselect_b32 s57, s57, s58
    s_cselect_b32 s59, s59, s60
    s_mov_b32 s60, {WQ_L}
    s_cselect_b32 s60, s60, {G_L}
    s_cselect_b32 s61, 13, 8
    s_mov_b32 s63, 0x00030003
    s_cselect_b32 s63, s63, 0x000f000f
    s_lshl_b32 s56, s56, 6
    s_add_u32 s57, s57, s56           ; publish soffset (near)
    s_add_u32 s59, s59, {XN}
    v_add_u32 v12, s59, v12
    v_add_u32 v9, s60, v15
    v_lshlrev_b32 v13, s61, v1
    v_lshl_add_u32 v13, v2, 4, v13    ; publish voffset
    """)
    if cfg.pre1:
        a("s_mov_b32 exec_lo, s63\ns_mov_b32 exec_hi, s63\nbuffer_load_dword v123, v13, s[32:35], s57 offen\ns_mov_b64 exec, -1")
    def cflag(val):
        a(f"v_mov_b32 v5, {val}\ns_mov_b64 exec, 1\nds_write_b32 v6, v5\ns_mov_b64 exec, -1")
    def wait(mask, val, body=None): spin(5, 4, mask, val, body)
    def allreduce(x, t, op):
        for d in ("quad_perm:[1,0,3,2]", "quad_perm:[2,3,0,1]", "row_half_mirror", "row_mirror"):
            a(f"{op}_dpp v{x}, v{x}, v{x} {d} row_mask:0xf bank_mask:0xf")
        a(f"v_mov_b32 v{t}, v{x}\nv_permlane16_swap_b32 v{x}, v{t}\n{op} v{x}, v{x}, v{t}")
        a(f"v_mov_b32 v{t}, v{x}\nv_permlane32_swap_b32 v{x}, v{t}\n{op} v{x}, v{x}, v{t}")
    def unpack(src, dst, n):
        for i in range(n):
            a(f"v_lshlrev_b32 v{dst+2*i}, 16, v{src+i}\nv_and_b32 v{dst+2*i+1}, 0xffff0000, v{src+i}")
    def pack(src, dst, n):
        for i in range(n):
            a(f"v_cvt_pk_bf16_f32 v{dst+i}, v{src+2*i}, v{src+2*i+1}")
    def rbf(x, d=None):
        d = x if d is None else d
        a(f"v_cvt_pk_bf16_f32 v{d}, v{x}, v{x}\nv_lshlrev_b32 v{d}, 16, v{d}")
    def tag(src, dst, last=48):
        for i in range(4):
            a(f"v_and_or_b32 v{dst+i}, v{src+i}, v3, s{45+i if i < 3 else last}")
    def check(regs, last=97, masked=False, t=5):
        for k, r in enumerate(regs):
            for i in range(4): a(f"v_xor_b32 v{r+i}, s{45+i if i < 3 else last}, v{r+i}")
            if masked:
                if k == 0: a(f"v_or3_b32 v{t}, v{r}, v{r+1}, v{r+2}\nv_mov_b32 v127, v{r+3}")
                else: a(f"v_or3_b32 v{t}, v{t}, v{r}, v{r+1}\nv_or_b32 v{t}, v{t}, v{r+2}\nv_or_b32 v127, v127, v{r+3}")
            elif k == 0: a(f"v_or3_b32 v{t}, v{r}, v{r+1}, v{r+2}\nv_or_b32 v{t}, v{t}, v{r+3}")
            else: a(f"v_or3_b32 v{t}, v{t}, v{r}, v{r+1}\nv_or3_b32 v{t}, v{t}, v{r+2}, v{r+3}")
        if masked: a(f"v_and_or_b32 v{t}, v127, s101, v{t}")
        a(f"v_and_b32 v{t}, 0xff, v{t}\nv_cmp_ne_u32 vcc, 0, v{t}")
    def issue(loads, soffs):
        if 'q' in cfg.abl and len(loads) == 4: return
        if 'h' in cfg.abl and len(loads) == 8: return
        if 'm' in cfg.abl and loads[0][0] == 80: return
        for (r, va, si, imm) in loads:
            a(f"buffer_load_dwordx4 v[{r}:{r+3}], v{va}, s[32:35], s{soffs[si]} offen offset:{imm} sc1")
    def poll(loads, soffs, each=None, pre_issued=None, **kw):
        top, chk, done = L("p"), L("pc"), L("pd")
        a("s_mov_b32 s59, 0")
        if pre_issued is not None: a(f"s_waitcnt vmcnt({pre_issued})\ns_branch {chk}")
        a(f"{top}:\ns_add_u32 s59, s59, 1")
        if each: each()
        issue(loads, soffs)
        a(f"s_waitcnt vmcnt(0)\n{chk}:")
        check([r for (r, _, _, _) in loads], **kw)
        if 'r' in cfg.abl: a(f"{done}:")
        else: a(f"s_cbranch_vccz {done}\ns_cmp_lt_u32 s59, {cfg.NMAX}\ns_cbranch_scc1 {top}\n{done}:")
    def mstore(r, va, so):
        f, d = L("ms"), L("md")
        a(f"s_cmp_lg_u32 s98, 0\ns_cbranch_scc1 {f}\nbuffer_store_dwordx4 v[{r}:{r+3}], v{va}, s[32:35], s{so} offen {NP}\ns_branch {d}\n{f}:\nbuffer_store_dwordx4 v[{r}:{r+3}], v{va}, s[32:35], s{so} offen sc1\n{d}:")
    def far_first():
        t = L("ff")
        a(f"s_cmp_lg_u32 s95, 0\ns_cbranch_scc1 {t}\ns_mov_b32 s95, 1\ns_mov_b32 exec_lo, s63\ns_mov_b32 exec_hi, s63\nbuffer_store_dwordx4 v[52:55], v13, s[32:35], s58 offen sc1\ns_mov_b64 exec, -1\n{t}:")

    if 'a' in cfg.abl: a("s_endpgm")
    a("s_cmp_ge_u32 s55, 2\ns_cbranch_scc1 L_noln")
    a(f"s_mul_i32 s56, s55, {XNS}\ns_add_u32 s56, s56, {XN}\nv_add_u32 v14, s56, v7")
    wait(0xf, M_X)
    a("ds_read_b128 v[16:19], v14\ns_waitcnt lgkmcnt(0)")
    stamp(1)
    unpack(16, 20, 4)
    a("""
    v_add_f32 v28, v20, v21
    v_add_f32 v29, v22, v23
    v_add_f32 v30, v24, v25
    v_add_f32 v31, v26, v27
    v_add_f32 v28, v28, v29
    v_add_f32 v30, v30, v31
    v_add_f32 v28, v28, v30
    """)
    allreduce(28, 29, "v_add_f32")
    a("v_mul_f32 v28, 0x3b000000, v28")
    for i in range(8): a(f"v_sub_f32 v{32+i}, v{20+i}, v28")
    a("v_mul_f32 v29, v32, v32\nv_mul_f32 v30, v33, v33")
    for i in range(2, 8, 2): a(f"v_fmac_f32 v29, v{32+i}, v{32+i}\nv_fmac_f32 v30, v{33+i}, v{33+i}")
    a("v_add_f32 v29, v29, v30")
    rbf(28)
    for i in range(8): a(f"v_sub_f32 v{32+i}, v{20+i}, v28")
    allreduce(29, 30, "v_add_f32")
    pack(32, 16, 4)
    a("v_mul_f32 v29, 0x3b000000, v29")
    rbf(29)
    a("v_add_f32 v29, 0x3727c5ac, v29")
    rbf(29)
    a("v_sqrt_f32 v29, v29")
    unpack(16, 32, 4)
    rbf(29)
    a("v_rcp_f32 v29, v29")
    for i in range(8): a(f"v_mul_f32 v{32+i}, v{32+i}, v29")
    pack(32, 16, 4)
    a("ds_write_b128 v14, v[16:19]")
    cflag(C_XN)
    a("L_noln:")
    a(f"""
    s_waitcnt lgkmcnt(0)
    s_add_u32 s44, s44, 0x01010101
    s_and_b32 s45, s44, 0xff
    s_bfe_u32 s46, s44, 0x80008
    s_bfe_u32 s47, s44, 0x80010
    s_lshr_b32 s48, s44, 24
    s_getreg_b32 s96, hwreg(HW_REG_XCC_ID, 0, 4)
    s_xor_b32 s96, s96, s48           ; byte 3 of the first hand-off's tag carries the die id
    s_mov_b32 s97, s96
    s_mov_b32 s98, 0
    s_mov_b32 s101, -1
    s_mov_b32 s95, 0
    s_add_u32 s58, s57, {MIR}
    v_and_b32 v10, 2, v1
    v_cmp_ne_u32 s[60:61], 0, v10
    """)
    wait(0x30, C_XN)
    a("s_cmp_ge_u32 s55, 4\ns_cbranch_scc1 L_gu")
    for k in range(4): a(f"ds_read2_b64 v[{32+4*k}:{35+4*k}], v12 offset0:{8*k} offset1:{8*k+4}")
    wait(0xf, M_WQ)
    stamp(2)
    for k in range(4):
        for t in range(2): a(f"ds_read_b64_tr_b16 v[{16+4*k+2*t}:{17+4*k+2*t}], v9 offset:{k*4096+t*2048}")
    cflag(C_TILE)
    a("s_waitcnt lgkmcnt(0)")
    for k in range(4):
        a(f"v_mfma_f32_16x16x32_bf16 v[48:51], v[{16+4*k}:{19+4*k}], v[{32+4*k}:{35+4*k}], {'0' if k==0 else 'v[48:51]'}")
    a("s_branch L_pub1")
    a("L_gu:")
    for k in range(2): a(f"ds_read2_b64 v[{32+4*k}:{35+4*k}], v12 offset0:{8*k} offset1:{8*k+4}")
    wait(0xf, M_GU)
    stamp(2)
    for m in range(2):
        for k in range(2):
            for t in range(2): a(f"ds_read_b64_tr_b16 v[{16+8*m+4*k+2*t}:{17+8*m+4*k+2*t}], v9 offset:{m*8192+k*4096+t*2048}")
    cflag(C_TILE)
    a("s_waitcnt lgkmcnt(0)")
    for k in range(2):
        a(f"v_mfma_f32_16x16x32_bf16 v[48:51], v[{16+4*k}:{19+4*k}], v[{32+4*k}:{35+4*k}], {'0' if k==0 else 'v[48:51]'}")
        a(f"v_mfma_f32_16x16x32_bf16 v[56:59], v[{24+4*k}:{27+4*k}], v[{32+4*k}:{35+4*k}], {'0' if k==0 else 'v[56:59]'}")
    for i in range(4): a(f"v_cndmask_b32 v{48+i}, v{48+i}, v{56+i}, s[60:61]")
    a("L_pub1:\ns_nop 7")
    tag(48, 52, 96)
    a("s_mov_b32 exec_lo, s63\ns_mov_b32 exec_hi, s63")
    if 'P' not in cfg.abl: a(f"buffer_store_dwordx4 v[52:55], v13, s[32:35], s57 offen {NP}")
    a("s_mov_b64 exec, -1")
    stamp(3)
    if 'x' in cfg.abl: a("s_endpgm")
    def scalar_touch(sides, lab):
        a(f"""
        s_cmp_lt_u32 s55, 4
        s_cbranch_scc1 {lab}
        s_cmp_lg_u32 s22, 0
        s_cbranch_scc1 {lab}
        s_sub_u32 s4, s55, 4
        s_lshl_b32 s4, s4, 10
        s_add_u32 s4, s4, s28
        s_add_u32 s6, s32, s4
        s_addc_u32 s7, s33, 0
        """)
        for k, sd in enumerate(sides):
            if k: a("s_waitcnt lgkmcnt(0)")
            for i in range(8): a(f"s_load_dword s23, s[6:7], {sd*8192 + i*128}")
        a(f"{lab}:")
    if cfg.preF == 'scalar': scalar_touch((0, 1) if cfg.side == 'auto' and cfg.force is None else (cfg.side if cfg.side != 'auto' else cfg.force,), "L_nost")
    if cfg.side == 'auto':
        a(f"""
        s_cmp_lt_u32 s55, 4
        s_cbranch_scc1 L_noprobe
        s_cmp_lg_u32 s2, {cfg.leader}
        s_cbranch_scc1 L_noprobe
        s_lshl_b32 s4, s55, 7
        s_and_b32 s5, s55, 1
        s_lshl_b32 s5, s5, 13
        s_add_u32 s4, s4, s5
        s_add_u32 s4, s4, {cfg.fr + PROBE}
        s_xor_b32 s5, s4, 0x2000
        s_add_u32 s6, s32, s4
        s_addc_u32 s7, s33, 0
        s_add_u32 s8, s32, s5
        s_addc_u32 s9, s33, 0
        s_load_dword s10, s[6:7], 0 glc
        s_load_dword s11, s[8:9], 0 glc
        s_mov_b32 s16, 0
        s_waitcnt lgkmcnt(0)
        """)
        for r in range(cfg.rounds):
            a("""
            s_memtime s[12:13]
            s_waitcnt lgkmcnt(0)
            s_load_dword s10, s[6:7], 0 glc
            s_waitcnt lgkmcnt(0)
            s_memtime s[14:15]
            s_waitcnt lgkmcnt(0)
            s_load_dword s10, s[8:9], 0 glc
            s_waitcnt lgkmcnt(0)
            s_memtime s[18:19]
            s_waitcnt lgkmcnt(0)
            s_lshl_b32 s14, s14, 1
            s_sub_u32 s14, s14, s12
            s_sub_u32 s14, s14, s18          ; first - second
            s_add_u32 s16, s16, s14
            """)
        a(f"""
        s_sub_u32 s14, 0, s16
        s_bitcmp1_b32 s55, 0
        s_cselect_b32 s16, s14, s16
        s_min_i32 s16, s16, 2047
        s_max_i32 s16, s16, -2047
        s_add_u32 s16, s16, {(1 << 20) + 2048}
        v_mov_b32 v5, s16
        s_mov_b64 exec, 1
        ds_add_rtn_u32 v16, v4, v5 offset:60
        s_waitcnt lgkmcnt(0)
        v_readfirstlane_b32 s14, v16
        s_add_u32 s14, s14, s16
        s_lshr_b32 s15, s14, 20
        s_cmp_lg_u32 s15, 4
        s_cbranch_scc1 L_noprobe2
        s_and_b32 s14, s14, 0xfffff
        s_cmp_gt_u32 s14, {4*2048}
        s_cselect_b32 s14, {'1, 2' if inv else '2, 1'}
        v_mov_b32 v16, s14
        v_mov_b32 v17, 0
        buffer_store_dword v16, v17, s[24:27], 0 offen sc1
L_noprobe2:
        s_mov_b64 exec, -1
L_noprobe:
        """)
    a(f"""
    v_and_b32 v10, 3, v1
    v_mul_u32_u24 v9, {QBS}, v10
    v_lshl_add_u32 v9, v2, 4, v9
    v_add_u32 v9, {QB}, v9
    s_lshl_b32 s56, s55, 13
    v_xor_b32 v12, v1, v2
    v_lshlrev_b32 v12, 4, v12
    v_lshl_add_u32 v12, v1, 8, v12
    v_add_u32 v12, s56, v12           ; K operand address, step 0
    v_xor_b32 v62, 64, v12
    v_xor_b32 v63, 128, v12
    v_xor_b32 v64, 192, v12
    """)
    a("s_cmp_ge_u32 s55, 2\ns_cbranch_scc1 L_noq")
    a(f"""
    s_lshl_b32 s56, s55, 10
    v_add_u32 v126, s56, v7
    s_lshl_b32 s99, s49, 14
    s_lshl_b32 s100, s53, 13
    s_add_u32 s99, s99, s100
    s_add_u32 s99, s99, {QA}
    s_add_u32 s100, s99, 4096
    s_lshl_b32 s56, s55, 1
    v_lshrrev_b32 v14, 5, v0
    v_add_u32 v14, s56, v14
    v_mul_u32_u24 v14, {QBS}, v14
    v_and_b32 v16, 31, v0
    v_lshl_add_u32 v14, v16, 3, v14
    v_add_u32 v14, {QB}, v14
    """)
    if cfg.qtrig: wait(0xf, cfg.qtrig)
    def q_each():
        t = L("qe")
        a(f"s_cmp_lt_u32 s59, {cfg.N0}\ns_cbranch_scc1 {t}")
        a("v_mov_b32 v5, 1\ns_mov_b64 exec, 1\nds_write_b32 v4, v5 offset:56\ns_mov_b64 exec, -1")
        far_first()
        a(f"s_xor_b32 s98, s98, {MIR}\ns_xor_b32 s99, s99, {MIR}\ns_xor_b32 s100, s100, {MIR}\ns_xor_b32 s101, s101, 15\n{t}:")
    poll([(16, 126, 0, 0), (20, 126, 0, 2048), (24, 126, 1, 0), (28, 126, 1, 2048)], [99, 100], each=q_each, last=96, masked=True)
    a("v_and_b32 v127, 15, v127\nv_cmp_ne_u32 vcc, 0, v127\ns_cbranch_vccnz L_remote\ns_mov_b32 s98, 0\nL_remote:")
    for r in (19, 23, 27, 31): a(f"v_and_b32 v{r}, v{r}, v3")
    for i in range(4): a(f"v_add_f32 v{16+i}, v{16+i}, v{20+i}\nv_add_f32 v{24+i}, v{24+i}, v{28+i}")
    for i in range(4): a(f"v_add_f32 v{16+i}, v{16+i}, v{24+i}")
    pack(16, 20, 2)
    a("ds_write_b64 v14, v[20:21]")
    a("v_mov_b32 v5, s98\ns_mov_b64 exec, 1\nds_write_b32 v6, v5 offset:32\ns_mov_b64 exec, -1")
    cflag(C_Q)
    a("L_noq:")
    stamp(4)
    if 'y' in cfg.abl: a("s_endpgm")
    def watch():
        t = L("wt")
        a(f"v_cmp_ne_u32 vcc, 0, v5\ns_and_b64 vcc, vcc, 0x4000\ns_cbranch_vccz {t}")
        far_first()
        a(f"{t}:")
    wait(0x30, C_Q, watch)
    a(f"v_cmp_ne_u32 vcc, 0, v5\ns_and_b64 vcc, vcc, 0x3000\ns_mov_b32 s98, 0\ns_mov_b32 s101, -1\ns_cbranch_vccz L_near\ns_mov_b32 s98, {MIR}\ns_mov_b32 s97, s48\ns_mov_b32 s101, 0xfffffff0")
    far_first()
    a("L_near:")
    for st in range(4): a(f"ds_read_b128 v[{16+4*st}:{19+4*st}], v9 offset:{64*st}")
    wait(0xf, M_K)
    stamp(5)
    ka = [12, 62, 63, 64]
    for tt in range(2):
        for st in range(4):
            r = 32 + 16*tt + 4*st
            if r == 52: r = 92
            if r == 60: r = 88
            a(f"ds_read_b128 v[{r}:{r+3}], v{ka[st]} offset:{tt*4096}")
    a(f"""
    v_lshlrev_b32 v9, 5, v10
    v_add_u32 v9, {MX}, v9
    s_lshl_b32 s56, s55, 2
    v_add_u32 v12, s56, v9
    s_lshl_b32 s56, s55, 8
    v_lshlrev_b32 v13, 6, v2
    v_lshl_add_u32 v13, v10, 4, v13
    v_add_u32 v13, {PB}, v13
    v_add_u32 v14, s56, v13
    s_waitcnt lgkmcnt(0)
    """)
    for st in range(4):
        for tt in range(2):
            r = 32 + 16*tt + 4*st; d = 68 + 4*tt
            if r == 52: r = 92
            if r == 60: r = 88
            a(f"v_mfma_f32_16x16x32_bf16 v[{d}:{d+3}], v[{r}:{r+3}], v[{16+4*st}:{19+4*st}], {'0' if st==0 else f'v[{d}:{d+3}]'}")
    pack(68, 32, 4)
    unpack(32, 36, 4)
    for i in range(8): a(f"v_mul_f32 v{36+i}, 0x3db504f3, v{36+i}")
    pack(36, 32, 4)
    unpack(32, 36, 4)
    a("""
    v_max3_f32 v56, v36, v37, v38
    v_max3_f32 v57, v39, v40, v41
    v_max3_f32 v56, v56, v42, v43
    v_max_f32 v56, v56, v57
    v_mov_b32 v57, v56
    v_permlane16_swap_b32 v56, v57
    v_max_f32 v56, v56, v57
    v_mov_b32 v57, v56
    v_permlane32_swap_b32 v56, v57
    v_max_f32 v56, v56, v57
    s_mov_b64 exec, 15
    ds_write_b32 v12, v56
    """)
    cflag(C_MAX)
    wait(0xff0, C_MAX)
    a(f"""
    ds_read_b128 v[44:47], v9
    ds_read_b128 v[48:51], v9 offset:16
    s_mov_b32 s56, {LOG2E}
    s_waitcnt lgkmcnt(0)
    v_max3_f32 v56, v44, v45, v46
    v_max3_f32 v57, v47, v48, v49
    v_max3_f32 v56, v56, v50, v51
    v_max_f32 v56, v56, v57           ; m
    v_mul_f32 v57, s56, v56
    """)
    for i in range(8): a(f"v_fma_f32 v{36+i}, v{36+i}, s56, -v57")
    for i in range(8): a(f"v_exp_f32 v{36+i}, v{36+i}")
    pack(36, 32, 4)
    exmask16(0xf)
    a("ds_write_b128 v14, v[32:35]")
    cflag(C_P)
    a(f"""
    v_and_b32 v9, 7, v8
    v_xor_b32 v9, s55, v9
    v_lshlrev_b32 v9, 5, v9
    v_add_u32 v9, v9, v11
    v_lshl_add_u32 v9, v8, 8, v9
    v_add_u32 v9, {V_L}, v9
    v_lshlrev_b32 v12, 14, v1
    v_lshl_add_u32 v12, v2, 4, v12    ; o publish: head*16384 + g*16
    s_lshl_b32 s56, s49, 16
    s_lshl_b32 s57, s50, 9
    s_add_u32 s56, s56, s57
    s_lshl_b32 s57, s55, 6
    s_add_u32 s56, s56, s57
    s_add_u32 s56, s56, {OA}          ; o publish soffset
    s_add_u32 s56, s56, s98
    """)
    if cfg.pretouch:
        exmask16(0xf)
        a("buffer_load_dword v123, v12, s[32:35], s56 offen\ns_mov_b64 exec, -1")
    wait(0xff0, C_P)
    for kb in range(8): a(f"ds_read_b128 v[{16+4*kb}:{19+4*kb}], v13 offset:{kb*256}")
    a("s_waitcnt lgkmcnt(0)")
    stamp(6)
    if 'z' in cfg.abl: a("s_endpgm")
    a("s_cmp_lg_u32 s55, 3\ns_cbranch_scc1 L_nol")
    for i in range(4): a(f"v_mov_b32 v{52+i}, 0x3f803f80")
    for kb in range(8):
        a(f"v_mfma_f32_16x16x32_bf16 v[60:63], v[52:55], v[{16+4*kb}:{19+4*kb}], {'0' if kb==0 else 'v[60:63]'}")
    a(f"""
    v_lshlrev_b32 v13, 9, v0
    s_lshl_b32 s57, s49, 11
    s_lshl_b32 s58, s50, 4
    s_add_u32 s57, s57, s58
    s_add_u32 s57, s57, {MA}
    s_add_u32 s57, s57, s98
    v_mov_b32 v58, 0
    v_mov_b32 v59, 0
    v_mov_b32 v57, v60
    """)
    tag(56, 60, 97)
    a("s_mov_b64 exec, 15")
    mstore(60, 13, 57)
    a("s_mov_b64 exec, -1")
    a("L_nol:")
    def wbl2(lab):
        a(f"s_cmp_lg_u32 s55, 7\ns_cbranch_scc1 {lab}\ns_cmp_lt_u32 s50, {cfg.wbj}\ns_cbranch_scc1 {lab}\nbuffer_wbl2 sc1\n{lab}:")
    if 'P' in cfg.wb: wbl2("L_nowb1")
    a(f"""
    v_lshrrev_b32 v10, 3, v0          ; ss
    v_and_b32 v14, 7, v0              ; gi
    v_lshlrev_b32 v13, 4, v10
    v_lshlrev_b32 v10, 9, v10
    v_lshl_add_u32 v10, v14, 4, v10
    s_lshr_b32 s60, s55, 2            ; b'
    s_and_b32 s61, s55, 3             ; dq
    s_lshl_b32 s58, s62, 1
    s_add_u32 s58, s58, s60           ; (4h+rg)*2 + b'
    s_lshl_b32 s57, s58, 8
    s_add_u32 s57, s57, {MA}
    s_add_u32 s57, s57, s98
    s_lshl_b32 s58, s58, 13
    s_lshl_b32 s91, s61, 7
    s_add_u32 s58, s58, s91
    s_add_u32 s58, s58, {OA}          ; o soffset
    s_add_u32 s58, s58, s98
    s_add_u32 s91, s58, 4096
    s_mul_i32 s60, s60, {OBS}
    s_lshl_b32 s61, s61, 6
    s_add_u32 s60, s60, s61
    s_add_u32 s60, s60, {OB}
    v_lshlrev_b32 v14, 3, v14
    v_lshl_add_u32 v14, v2, 1, v14
    v_add_u32 v14, s60, v14
    ; projection-stage addresses
    v_and_b32 v93, 1, v1
    v_mul_u32_u24 v90, {OBS}, v93
    v_lshl_add_u32 v90, v2, 3, v90
    v_add_u32 v90, {OB}, v90          ; o operand
    v_mul_u32_u24 v91, {HBS}, v93
    v_lshl_add_u32 v91, v2, 3, v91
    v_add_u32 v91, {HB}, v91          ; h operand
    v_add_u32 v15, {WO_L}, v15
    v_lshlrev_b32 v92, 15, v93
    v_bfe_u32 v93, v1, 1, 1
    v_lshl_add_u32 v92, v93, 6, v92
    v_lshl_add_u32 v92, v2, 4, v92    ; b*32768 + kind*64 + g*16
    v_cmp_ne_u32 s[60:61], 0, v93
    s_lshl_b32 s92, s51, 16
    s_and_b32 s93, s55, 2
    s_lshl_b32 s93, s93, 1
    s_and_b32 s59, s55, 1
    s_or_b32 s93, s93, s59
    s_lshl_b32 s93, s93, 12
    s_add_u32 s92, s92, s93
    s_lshl_b32 s93, s62, 7
    s_add_u32 s92, s92, s93
    s_add_u32 s92, s92, {cfg.fr}
    """)
    if cfg.preF == 'st':
        a("s_cmp_ge_u32 s55, 4\ns_cbranch_scc1 L_nops")
        exmask16(0xf)
        a(f"v_mov_b32 v96, 0\nv_mov_b32 v97, 0\nv_mov_b32 v98, 0\nv_mov_b32 v99, 0\nbuffer_store_dwordx4 v[96:99], v92, s[32:35], s92 offen {cfg.fst}\ns_mov_b64 exec, -1\nL_nops:")
    a(f"""
    v_mov_b32 v94, 0
    s_mov_b64 exec, 0x20f
    v_mov_b32 v94, {M_DN}             ; thresholds: down tile landed, h written (M_DN == C_H)
    s_mov_b64 exec, -1
    """)
    assert M_DN == C_H
    def pv(m):
        for kk in range(2):
            kb = 2*m + kk
            for t in range(2):
                r = 64 + 4*kk + 2*t
                a(f"ds_read_b64_tr_b16 v[{r}:{r+1}], v9 offset:{kb*8192+t*4096}")
        for kk in range(2):
            kb = 2*m + kk
            a(f"s_waitcnt lgkmcnt({2 if kk == 0 and not cfg.diag else 0})")
            a(f"v_mfma_f32_16x16x32_bf16 v[72:75], v[{64+4*kk}:{67+4*kk}], v[{16+4*kb}:{19+4*kb}], {'0' if kb==0 else 'v[72:75]'}")
    ml = [(80, 13, 0, 0), (84, 13, 0, 128)]
    hl = [(96+4*k if k < 6 else 48+4*(k-6), 7, k//4, (k % 4)*1024) for k in range(8)]
    a(f"""
    s_cmp_lg_u32 s55, 5
    s_cbranch_scc1 L_noh0
    s_lshl_b32 s99, s62, 13
    s_add_u32 s99, s99, {GA}
    s_add_u32 s99, s99, s98
    s_add_u32 s100, s99, 4096
    """)
    issue(hl, [99, 100])
    a("L_noh0:")
    wait(0xf, M_V1); pv(0)
    wait(0xf, M_V2); pv(1)
    issue(ml, [57])
    def side_load():
        if cfg.side == 'auto' and cfg.force is None:
            a("v_mov_b32 v123, 0\nv_mov_b32 v122, 1")
            if cfg.sidewave != 'all': a("s_cmp_ge_u32 s55, 5\ns_cbranch_scc1 L_nosl")
            a("s_mov_b64 exec, 1\nbuffer_load_dword v122, v123, s[24:27], 0 offen sc1\ns_mov_b64 exec, -1")
            if cfg.sidewave != 'all': a("L_nosl:")
    if cfg.sideat == 'V2': side_load()
    wait(0xf, M_V3); pv(2)
    if cfg.sideat == 'V3': side_load()
    stamp(7)
    if 'v' in cfg.abl: a("s_endpgm")
    a("s_barrier")
    stamp(8)
    pv(3)
    tag(72, 76, 97)
    exmask16(0xf)
    mstore(76, 12, 56)
    cflag(C_PUB)
    tstamp(1)
    a("s_cmp_lg_u32 s55, 5\ns_cbranch_scc1 L_noh")
    a(f"""
    v_mul_u32_u24 v124, {HBS}, v2
    v_lshl_add_u32 v124, v1, 3, v124
    v_add_u32 v124, {HB}, v124
    """)
    poll(hl, [99, 100], pre_issued=1, last=96, masked=True)
    for (r, _, _, _) in hl: a(f"v_and_b32 v{r+3}, v{r+3}, v3")
    b = 96
    for i in range(4):
        a(f"v_add_f32 v{b+i}, v{b+i}, v{b+4+i}\nv_add_f32 v{b+8+i}, v{b+8+i}, v{b+12+i}\nv_add_f32 v{b+16+i}, v{b+16+i}, v{b+20+i}\nv_add_f32 v{48+i}, v{48+i}, v{52+i}")
    for i in range(4): a(f"v_add_f32 v{b+i}, v{b+i}, v{b+8+i}\nv_add_f32 v{b+16+i}, v{b+16+i}, v{48+i}")
    for i in range(4): a(f"v_add_f32 v{b+i}, v{b+i}, v{b+16+i}")
    pack(b, 56, 2)
    a("v_mov_b32 v58, v56\nv_mov_b32 v59, v57\nv_permlane32_swap_b32 v56, v58\nv_permlane32_swap_b32 v57, v59")
    unpack(56, 24, 2)
    unpack(58, 28, 2)
    for i in range(4): a(f"v_mul_f32 v{24+i}, 0xbfb8aa3b, v{24+i}")
    for i in range(4): a(f"v_exp_f32 v{24+i}, v{24+i}")
    for i in range(4): a(f"v_add_f32 v{24+i}, 1.0, v{24+i}")
    for i in range(4): a(f"v_rcp_f32 v{24+i}, v{24+i}")
    pack(24, 56, 2)
    unpack(56, 24, 2)
    for i in range(4): a(f"v_mul_f32 v{24+i}, v{24+i}, v{28+i}")
    pack(24, 56, 2)
    a("s_mov_b64 exec, 0xffffffff\nds_write_b64 v124, v[56:57]\ns_mov_b64 exec, -1")
    cflag(C_H)
    a("L_noh:")
    poll(ml, [57], pre_issued=1)
    a(f"""
    s_mov_b32 s59, {LOG2E}
    v_max_f32 v88, v80, v84
    v_max_f32_dpp v88, v88, v88 row_ror:8 row_mask:0xf bank_mask:0xf
    v_mov_b32 v89, v88
    v_permlane16_swap_b32 v88, v89
    v_max_f32 v88, v88, v89
    v_mov_b32 v89, v88
    v_permlane32_swap_b32 v88, v89
    v_max_f32 v88, v88, v89
    v_sub_f32 v80, v80, v88
    v_sub_f32 v84, v84, v88
    v_mul_f32 v80, s59, v80
    v_mul_f32 v84, s59, v84
    v_exp_f32 v80, v80
    v_exp_f32 v84, v84
    v_mul_f32 v88, v80, v81
    v_fmac_f32 v88, v84, v85
    v_add_f32_dpp v88, v88, v88 row_ror:8 row_mask:0xf bank_mask:0xf
    v_mov_b32 v89, v88
    v_permlane16_swap_b32 v88, v89
    v_add_f32 v88, v88, v89
    v_mov_b32 v89, v88
    v_permlane32_swap_b32 v88, v89
    v_add_f32 v88, v88, v89
    v_rcp_f32 v88, v88
    v_mul_f32 v80, v80, v88
    v_mul_f32 v84, v84, v88
    """)
    if cfg.side == 'auto' and cfg.force is None:
        a(f"""
        s_mov_b32 s59, 0
L_side:
        v_readfirstlane_b32 s29, v122
        s_add_u32 s59, s59, 1
        s_cmp_lg_u32 s29, 0
        s_cbranch_scc1 L_sideok
        s_cmp_ge_u32 s59, {cfg.NMAX}
        s_cbranch_scc1 L_sideok
        buffer_load_dword v122, v123, s[24:27], 0 offen sc1
        s_waitcnt vmcnt(0)
        s_branch L_side
L_sideok:
        s_and_b32 s29, s29, 2
        s_lshl_b32 s29, s29, 12
        """)
    else: a(f"s_mov_b32 s29, {(cfg.side if cfg.force is None else cfg.force)*8192}")
    a("s_add_u32 s92, s92, s29\ns_add_u32 s28, s28, s29")
    tstamp(2)
    wait(0xff0, C_PUB)
    tstamp(3)
    oA = [(16, 10, 0, 0), (20, 10, 1, 0)]
    def reduce_scatter(r):
        a(f"""
        v_permlane32_swap_b32 v{r}, v{r+2}
        v_permlane32_swap_b32 v{r+1}, v{r+3}
        v_add_f32 v{r}, v{r}, v{r+2}
        v_add_f32 v{r+1}, v{r+1}, v{r+3}
        v_permlane16_swap_b32 v{r}, v{r+1}
        v_add_f32 v{r}, v{r}, v{r+1}
        v_add_f32_dpp v{r}, v{r}, v{r} row_ror:8 row_mask:0xf bank_mask:0xf
        """)
    if not cfg.tail2:
        poll([(16, 10, 0, 0), (20, 10, 1, 0)], [58, 91], t=95)
        stamp(9)
        a("ds_read_b32 v5, v4")
        for i in range(4): a(f"v_mul_f32 v{16+i}, v{16+i}, v80")
        for i in range(4): a(f"v_fmac_f32 v{16+i}, v{20+i}, v84")
        reduce_scatter(16)
        a("v_cvt_pk_bf16_f32 v16, v16, v16\nds_write_b16 v14, v16")
        a("s_cmp_ge_u32 s55, 4\ns_cbranch_scc1 L_final")
        a(f"s_waitcnt lgkmcnt({0 if cfg.diag else 1})\nv_cmp_gt_u32 vcc, v94, v5\ns_cbranch_vccz L_tiles")
        spin(5, 4, None, "v94")
        a("L_tiles:")
        tstamp(4)
        for k in range(2): a(f"ds_read2_b64 v[{56+4*k}:{59+4*k}], v91 offset0:{8*k} offset1:{8*k+4}")
        for k in range(2):
            for t in range(2): a(f"ds_read_b64_tr_b16 v[{32+4*k+2*t}:{33+4*k+2*t}], v15 offset:{16384+k*4096+t*2048}")
        for k in range(4):
            for t in range(2): a(f"ds_read_b64_tr_b16 v[{96+4*k+2*t}:{97+4*k+2*t}], v15 offset:{k*4096+t*2048}")
        a(f"s_waitcnt lgkmcnt({0 if cfg.diag else 14})\ns_barrier")
        stamp(10)
        a("s_waitcnt lgkmcnt(11)")
        for k in range(4): a(f"ds_read2_b64 v[{40+4*k}:{43+4*k}], v90 offset0:{8*k} offset1:{8*k+4}")
        a(f"s_waitcnt lgkmcnt({0 if cfg.diag else 12})")
        for k in range(2):
            a(f"v_mfma_f32_16x16x32_bf16 v[68:71], v[{32+4*k}:{35+4*k}], v[{56+4*k}:{59+4*k}], {'0' if k==0 else 'v[68:71]'}")
        for k in range(4):
            a(f"s_waitcnt lgkmcnt({0 if cfg.diag else 3-k})")
            a(f"v_mfma_f32_16x16x32_bf16 v[64:67], v[{96+4*k}:{99+4*k}], v[{40+4*k}:{43+4*k}], {'0' if k==0 else 'v[64:67]'}")
        exmask16(0xf)
        for i in range(4): a(f"v_cndmask_b32 v{64+i}, v{64+i}, v{68+i}, s[60:61]")
        tag(64, 68, 48)
        a(f"buffer_store_dwordx4 v[68:71], v92, s[32:35], s92 offen {cfg.fst}")
    else:
        issue(oA, [58, 91])
        a("s_cmp_ge_u32 s55, 4\ns_cbranch_scc1 L_nopre")
        for i in range(40, 64): a(f"v_mov_b32 v{i}, 0")
        if not cfg.prog and not cfg.dnearly: wait(0xf, M_END)
        spin(5, 4, None, "v94")
        exmask16(0xc)
        for k in range(2): a(f"ds_read2_b64 v[{56+4*k}:{59+4*k}], v91 offset0:{8*k} offset1:{8*k+4}")
        a("s_mov_b64 exec, -1")
        for k in range(2):
            for t in range(2): a(f"ds_read_b64_tr_b16 v[{32+4*k+2*t}:{33+4*k+2*t}], v15 offset:{16384+k*4096+t*2048}")
        if cfg.dnearly:
            wait(0xf, M_END)
            for kk in range(2):
                a(f"v_mfma_f32_16x16x32_bf16 v[64:67], v[{32+4*kk}:{35+4*kk}], v[{56+4*kk}:{59+4*kk}], {'0' if kk==0 else 'v[64:67]'}")
        for k in range(4):
            if cfg.prog:
                wait(0xf, M_W1 + k)
                if k == 0:
                    for kk in range(2):
                        a(f"v_mfma_f32_16x16x32_bf16 v[64:67], v[{32+4*kk}:{35+4*kk}], v[{56+4*kk}:{59+4*kk}], {'0' if kk==0 else 'v[64:67]'}")
            if k == 3: tstamp(4)
            for t in range(2): a(f"ds_read_b64_tr_b16 v[{96+4*k+2*t}:{97+4*k+2*t}], v15 offset:{k*4096+t*2048}")
        a("L_nopre:")
        if not cfg.omask: poll(oA, [58, 91], pre_issued=0)
        else:
            a("s_waitcnt vmcnt(0)")
            check([16, 20])
            a("s_cbranch_vccz L_ook\ns_mov_b32 s59, 0")
            for k, r in enumerate((16, 20)):
                a(f"v_or3_b32 v5, v{r}, v{r+1}, v{r+2}\nv_or_b32 v5, v5, v{r+3}\nv_and_b32 v5, 0xff, v5\nv_cmp_ne_u32 s[{4+2*k}:{5+2*k}], 0, v5")
            a("L_om:")
            for k, (r, so) in enumerate(((16, 58), (20, 91))):
                a(f"s_mov_b64 exec, s[{4+2*k}:{5+2*k}]\ns_cbranch_execz L_oms{k}\nbuffer_load_dwordx4 v[{r}:{r+3}], v10, s[32:35], s{so} offen sc1\nL_oms{k}:")
            a("s_add_u32 s59, s59, 1\ns_waitcnt vmcnt(0)")
            for k, r in enumerate((16, 20)):
                a(f"s_mov_b64 exec, s[{4+2*k}:{5+2*k}]")
                check([r])
                a(f"s_mov_b64 s[{4+2*k}:{5+2*k}], vcc")
            a(f"s_or_b64 s[8:9], s[4:5], s[6:7]\ns_cbranch_scc0 L_omd\ns_cmp_lt_u32 s59, {cfg.NMAX}\ns_cbranch_scc1 L_om\nL_omd:\ns_mov_b64 exec, -1\nL_ook:")
        stamp(9)
        for i in range(0, 4, 2): a(f"v_pk_mul_f32 v[{16+i}:{17+i}], v[{16+i}:{17+i}], v[80:81] op_sel_hi:[1,0]")
        for i in range(0, 4, 2): a(f"v_pk_fma_f32 v[{16+i}:{17+i}], v[{20+i}:{21+i}], v[84:85], v[{16+i}:{17+i}] op_sel_hi:[1,0,1]")
        reduce_scatter(16)
        a("v_cvt_pk_bf16_f32 v16, v16, v16\nds_write_b16 v14, v16")
        a("s_cmp_ge_u32 s55, 4\ns_cbranch_scc1 L_final")
        if not cfg.prog and not cfg.dnearly:
            a("s_waitcnt lgkmcnt(9)")
            for k in range(2):
                a(f"v_mfma_f32_16x16x32_bf16 v[64:67], v[{32+4*k}:{35+4*k}], v[{56+4*k}:{59+4*k}], {'0' if k==0 else 'v[64:67]'}")
        exmask16(0x3)
        a("s_waitcnt lgkmcnt(0)\ns_barrier")
        stamp(10)
        for k in range(4): a(f"ds_read2_b64 v[{40+4*k}:{43+4*k}], v90 offset0:{8*k} offset1:{8*k+4}")
        a("s_mov_b64 exec, -1")
        for k in range(4):
            a(f"s_waitcnt lgkmcnt({0 if cfg.diag else 3-k})")
            a(f"v_mfma_f32_16x16x32_bf16 v[64:67], v[{96+4*k}:{99+4*k}], v[{40+4*k}:{43+4*k}], v[64:67]")
        exmask16(0xf)
        tag(64, 68, 48)
        a(f"buffer_store_dwordx4 v[68:71], v92, s[32:35], s92 offen {cfg.fst}")
    stamp(11)
    dump_stamps(12)
    a("s_endpgm")
    a("L_final:\ns_waitcnt lgkmcnt(0)\ns_barrier")
    stamp(10)
    if 'O' in cfg.wb: wbl2("L_nowb2")
    a("s_cmp_lg_u32 s55, 4\ns_cbranch_scc1 L_fin_exit\ns_cmp_lg_u32 s22, 0\ns_cbranch_scc1 L_fin_exit")
    a("s_mov_b32 s57, s28\ns_mov_b32 s59, 0")
    def fsum(b, d):
        if cfg.pkadd:
            for i in (0, 2): a(f"v_pk_add_f32 v[{b+i}:{b+i+1}], v[{b+i}:{b+i+1}], v[{b+4+i}:{b+5+i}]\nv_pk_add_f32 v[{b+8+i}:{b+9+i}], v[{b+8+i}:{b+9+i}], v[{b+12+i}:{b+13+i}]")
            for i in (0, 2): a(f"v_pk_add_f32 v[{d+i}:{d+i+1}], v[{b+i}:{b+i+1}], v[{b+8+i}:{b+9+i}]")
        else:
            for i in range(4): a(f"v_add_f32 v{b+i}, v{b+i}, v{b+4+i}\nv_add_f32 v{b+8+i}, v{b+8+i}, v{b+12+i}")
            for i in range(4): a(f"v_add_f32 v{d+i}, v{b+i}, v{b+8+i}")
    def fissue(base):
        for k in range(4): a(f"buffer_load_dwordx4 v[{base+4*k}:{base+3+4*k}], v7, s[32:35], s57 offen offset:{k*1024} {cfg.fld}")
    if cfg.fmode == 'plain':
        a("L_fp:")
        fissue(16)
        a("s_add_u32 s59, s59, 1\ns_waitcnt vmcnt(0)")
        if cfg.diag == 2:
            a("s_cmp_lg_u32 s59, 1\ns_cbranch_scc1 L_nf1")
            tstamp(5)
            a("L_nf1:")
        check([16, 20, 24, 28], 48)
        a(f"s_cbranch_vccz L_fok\ns_cmp_lt_u32 s59, {cfg.NMAX}\ns_cbranch_scc1 L_fp\nL_fok:")
        if cfg.diag == 2: a("s_mov_b32 s76, s59")
    elif cfg.fmode == 'pipe':
        fissue(16)
        a("L_fp:")
        fissue(32)
        a("s_add_u32 s59, s59, 1\ns_waitcnt vmcnt(4)")
        check([16, 20, 24, 28], 48)
        a("s_cbranch_vccz L_fok")
        fissue(16)
        a("s_waitcnt vmcnt(4)")
        check([32, 36, 40, 44], 48)
        a(f"s_cbranch_vccz L_fok2\ns_cmp_lt_u32 s59, {cfg.NMAX}\ns_cbranch_scc1 L_fp\nL_fok2:")
        stamp(11)
        fsum(32, 48)
        a("s_branch L_fmath\nL_fok:")
    elif cfg.fmode == 'mask':
        for k in range(4): a(f"s_mov_b64 s[{4+2*k}:{5+2*k}], -1")
        a("L_fp:")
        for k in range(4):
            a(f"s_mov_b64 exec, s[{4+2*k}:{5+2*k}]\ns_cbranch_execz L_fs{k}\nbuffer_load_dwordx4 v[{16+4*k}:{19+4*k}], v7, s[32:35], s57 offen offset:{k*1024} {cfg.fld}\nL_fs{k}:")
        a("s_add_u32 s59, s59, 1\ns_waitcnt vmcnt(0)")
        for k in range(4):
            a(f"s_mov_b64 exec, s[{4+2*k}:{5+2*k}]")
            check([16+4*k], 48)
            a(f"s_mov_b64 s[{4+2*k}:{5+2*k}], vcc")
        a(f"s_or_b64 s[12:13], s[4:5], s[6:7]\ns_or_b64 s[14:15], s[8:9], s[10:11]\ns_or_b64 s[12:13], s[12:13], s[14:15]\ns_cbranch_scc0 L_fok\ns_cmp_lt_u32 s59, {cfg.NMAX}\ns_cbranch_scc1 L_fp\nL_fok:\ns_mov_b64 exec, -1")
    stamp(11)
    fsum(16, 48)
    a("L_fmath:")
    reduce_scatter(48)
    a("v_mov_b32_dpp v49, v48 row_ror:4 row_mask:0xf bank_mask:0xf")
    a("v_cvt_pk_bf16_f32 v48, v48, v49\nv_lshlrev_b32 v121, 16, v121\nv_and_b32 v49, 0xffff0000, v48\nv_lshlrev_b32 v48, 16, v48")
    a(f"""
    v_mul_f32 v50, 0xbfb8aa3b, v49
    v_exp_f32 v50, v50
    v_add_f32 v50, 1.0, v50
    v_rcp_f32 v50, v50
    v_mul_f32 v49, v49, v50
    """)
    rbf(49)
    a("v_mul_f32 v48, v48, v49")
    rbf(48)
    a("v_add_f32 v48, v121, v48\nv_cvt_pk_bf16_f32 v48, v48, v48")
    exmask16(0xf)
    a("buffer_store_short v48, v120, s[40:43], s31 offen")
    a("s_cmp_lg_u32 s30, 0\ns_cbranch_scc1 L_fin_exit\nv_mov_b32 v52, s44\nv_mov_b32 v53, 0\ns_mov_b64 exec, 1\nbuffer_store_dword v52, v53, s[32:35], 0 offen sc1")
    if cfg.amp:
        a("s_memrealtime s[88:89]\ns_waitcnt lgkmcnt(0)")
        i, k = cfg.amp
        if i is None: a(f"s_add_u32 s90, s64, {k}")
        else: a(f"s_sub_u32 s90, s{64+2*i}, s64\ns_mul_i32 s90, s90, {k}\ns_add_u32 s90, s90, s64")
        a("L_amp:\ns_memrealtime s[92:93]\ns_waitcnt lgkmcnt(0)\ns_sub_u32 s91, s92, s90\ns_cmp_lt_i32 s91, 0\ns_cbranch_scc1 L_amp")
    a("L_fin_exit:")
    stamp(12)
    dump_stamps(13)
    a("L_exit:\ns_endpgm\nL_codeend:")
    body = a.text()
    head = f"""; Fused decode step: layernorm -> (q projection, sliding-window GQA attention, o projection) gated by a GLU branch.
; One launch, 256 workgroups of 12 waves: waves 0-3 stream weights and K/V into LDS, waves 4-11 compute.
; @launch grid=(256,1,1) block=(768,1,1) lds=163840
.amdgcn_target "amdgcn-amd-amdhsa--gfx950"
.text
.globl {NAME}
.p2align 8
.type {NAME},@function
{NAME}:
"""
    tail = f"""
.section .rodata,"a"
.p2align 6
.amdhsa_kernel {NAME}
  .amdhsa_next_free_vgpr 128
  .amdhsa_next_free_sgpr 102
  .amdhsa_accum_offset 128
  .amdhsa_group_segment_fixed_size 0
  .amdhsa_kernarg_size 96
  .amdhsa_user_sgpr_count 2
  .amdhsa_user_sgpr_kernarg_segment_ptr 1
  .amdhsa_system_sgpr_workgroup_id_x 1
  .amdhsa_float_denorm_mode_32 3
.end_amdhsa_kernel
"""
    return head + body + tail

if __name__ == "__main__":
    kw = {}
    out = "recurrent_scan__sliding_block_cached__glu_gated_glu__decode.s"
    for arg in sys.argv[1:]:
        if arg.startswith("out="): out = arg[4:]; continue
        k, v = arg.split("=")
        try: v = eval(v)
        except Exception: pass
        kw[k] = v
    open(out, "w").write(gen(Cfg(**kw)))
    print("wrote", out)
```

```python
import sys
from asmlib import Asm

NAME = "recurrent_scan__sliding_block_cached__glu_gated_glu__decode_kernel"

K_L, V_L = 0, 65536
WQ_L, G_L, U_L = 98304, 114688, 122880
WO_L, DN_L = 131072, 147456
SM = 155648
FLAGS, MX, HB, OB, QB, XN, PB = SM, SM+64, SM+256, SM+640, SM+1280, SM+2560, SM+4864
HBS, OBS, QBS, XNS = 192, 320, 320, 1088
QA, GA, MA, OA, MIR, FR, DIAG = 0x10000, 0x30000, 0x70000, 0x80000, 0x100000, 0x200000, 0x400000
WS_BYTES = 0x8000000
PROBE = 0x80000
LOG2E = "0x3fb8aa3b"
OOB = 0x40000000
M_X, M_WQ, M_GU, M_K, M_V1, M_V2, M_V3, M_DN, M_W1, M_W2, M_W3, M_END = 1, 2, 3, 4, 5, 6, 7, 8, 9, 10, 11, 12
C_XN, C_TILE, C_Q, C_MAX, C_P, C_PUB, C_H = 1, 2, 3, 4, 5, 6, 8

class Cfg:
    D = 6
    D0 = None
    diag = False
    N0 = 64
    NMAX = 400000
    perm = "s"
    pf = 'c'
    safe = False
    pol = 'nt'
    prio = 2
    kvmap = 'contig'
    fmode = 'pipe'
    near_pol = ''
    cgshift = 0
    probe = None
    side = 'auto'
    adapt = None
    lprio = 3
    earlywar = True
    abl = ''
    prog = False
    dnpos = 4
    wopos = 0
    dnearly = True
    omask = False
    outpol = ''
    race = 0
    rstep = 256
    rank = 0
    hsplit = 1
    fuse = True
    trim = True
    trim2 = True
    epol = 'sc1'
    tr = True
    cmap = True
    mir = 0x200000
    fwait = False
    tlb = ''
    pkadd = True
    rounds = 1
    fin = 0
    force = None
    sidewave = 'five'
    sideat = 'V2'
    leader = None
    qtrig = 3
    fmap = None
    tail2 = True
    Dk = 5
    Dv = None
    Dt = 5
    kv = [x << 10 for x in [8,16,1,512,4,2,64,32,128,258,0,512,16,0]]
    preout = 'st'
    pre1 = False
    pretouch = False
    fst = 'sc1'
    fld = 'sc1'
    wb = ''
    wbj = 31
    preF = 'split'
    preFpol = 'sc1'
    fr = 0x100000
    streamonly = False
    amp = None
    def __init__(self, **kw):
        for k, v in kw.items():
            assert hasattr(self, k), k
            setattr(self, k, v)

def gen(cfg):
    global MIR
    MIR = cfg.mir
    a = Asm()
    if cfg.leader is None: cfg.leader = cfg.fin ^ 0x80
    inv = ((cfg.leader ^ cfg.fin) & 4) != 0
    incompute = [False]
    def stamp(i):
        if cfg.diag == 2 and incompute[0] and 1 <= i <= 6: return
        if cfg.diag: a(f"s_memrealtime s[{64+2*i}:{65+2*i}]")
    def tstamp(i):
        if cfg.diag == 2: a(f"s_memrealtime s[{64+2*i}:{65+2*i}]")
    def dump_stamps(n):
        if not cfg.diag or cfg.amp: return
        a("s_waitcnt lgkmcnt(0)")
        a("s_mov_b64 exec, -1")
        a("v_mov_b32 v125, 0")
        for i in range(n):
            a(f"v_writelane_b32 v125, s{64+2*i}, {i}")
        a(f"s_mul_i32 s62, s2, {12*64}\ns_lshl_b32 s63, s3, 6\ns_add_u32 s62, s62, s63\ns_add_u32 s62, s62, {DIAG}")
        a("v_lshlrev_b32 v124, 2, v0\ns_mov_b64 exec, 0xffff")
        a("buffer_store_dword v125, v124, s[32:35], s62 offen")
    def srd_tail(r, n):
        a(f"s_mov_b32 s{r+2}, {n}\ns_mov_b32 s{r+3}, 0x20000")
    def exmask16(m):
        v = hex(m | (m << 16)); a(f"s_mov_b32 exec_lo, {v}\ns_mov_b32 exec_hi, {v}")
    lab = [0]
    def L(p):
        lab[0] += 1
        return f"L{p}{lab[0]}"
    def spin(vdst, vaddr, mask, val, body=None):
        w = L("w")
        if cfg.safe: a("s_mov_b32 s94, 0")
        a(f"{w}:\nds_read_b32 v{vdst}, v{vaddr}")
        if cfg.safe: a(f"s_add_u32 s94, s94, 1\ns_bitcmp1_b32 s94, 20\ns_cbranch_scc1 {w}x")
        a("s_waitcnt lgkmcnt(0)")
        if body: body()
        a(f"v_cmp_gt_u32 vcc, {val}, v{vdst}")
        if mask is not None: a(f"s_and_b64 vcc, vcc, {hex(mask)}")
        if 's' in cfg.abl and incompute[0]: a(f"s_cbranch_vccz {w}y\ns_sleep 1\ns_branch {w}\n{w}y:")
        else: a(f"s_cbranch_vccnz {w}")
        if cfg.safe: a(f"{w}x:\ns_waitcnt lgkmcnt(0)")
    NP = cfg.near_pol
    def code_prefetch(vt, v16, dst):
        a(f"""
        s_getpc_b64 s[60:61]
L_pc:
        s_sub_u32 s60, s60, L_pc-{NAME}
        s_subb_u32 s61, s61, 0
        s_lshl_b32 s58, s51, 10
        v_add_u32 v{vt}, s58, v{v16}
        v_cmp_gt_u32 vcc, L_codeend-{NAME}, v{vt}
        s_and_saveexec_b64 s[58:59], vcc
        s_cbranch_execz L_nopf2
        global_load_dwordx4 v[{dst}:{dst+3}], v{vt}, s[60:61]
L_nopf2:
        s_mov_b64 exec, -1
        v_add_u32 v{vt}, 8192, v{vt}
        v_cmp_gt_u32 vcc, L_codeend-{NAME}, v{vt}
        s_and_saveexec_b64 s[58:59], vcc
        s_cbranch_execz L_nopf3
        global_load_dwordx4 v[{dst+4}:{dst+7}], v{vt}, s[60:61]
L_nopf3:
        s_mov_b64 exec, -1
        """)

    a(f"""
    s_load_dwordx2 s[36:37], s[0:1], 0
    s_load_dwordx2 s[12:13], s[0:1], 24
    s_cmpk_ge_u32 s2, 256
    s_cbranch_scc1 L_exit
    v_lshrrev_b32 v1, 6, v0
    v_and_b32 v0, 63, v0
    s_lshr_b32 s50, s2, 3         ; j
    v_readfirstlane_b32 s3, v1    ; wave
    s_and_b32 s49, s2, 7          ; h
    s_and_b32 s51, s50, 7         ; cg
    s_lshr_b32 s52, s50, 3        ; rg
    s_cmp_ge_u32 s3, 4
    s_cbranch_scc1 L_compute
    """)
    stamp(0)
    if cfg.adapt: a("s_memrealtime s[100:101]")
    a(f"""
    s_movk_i32 s38, 2048
    {"s_setprio %d" % cfg.lprio if cfg.lprio else ""}
    s_lshl_b32 s39, 1, 17
    v_lshlrev_b32 v9, 4, v0
    s_and_b32 s56, s3, 1
    s_lshl_b32 s57, s56, 10
    s_mulk_i32 s56, {XNS}
    s_add_u32 m0, s56, {XN}
    s_lshl_b32 s14, 1, 22
    s_mov_b32 s15, s39
    v_and_b32 v2, 7, v0
    v_lshlrev_b32 v2, 4, v2
    s_waitcnt lgkmcnt(0)
    buffer_load_dwordx4 v9, s[36:39], s57 offen lds
    v_lshrrev_b32 v3, 4, v0
    v_lshlrev_b32 v3, 5, v3
    v_xor_b32 v2, v2, v3
    v_lshrrev_b32 v1, 3, v0            ; r = l>>3
    v_lshl_add_u32 v10, v1, 13, v2     ; wq: row stride 8192
    s_lshl4_add_u32 s55, s52, s3
    s_lshl_b32 s55, s55, 6
    s_add_u32 s55, s55, s49
    s_lshl3_add_u32 s55, s55, s51
    s_lshl_b32 s55, s55, 7
    s_lshl_b32 s61, s3, 10             ; lw*1024
    s_add_u32 m0, s61, {WQ_L}
    s_lshl_b32 s47, 1, 18
    """)
    stamp(6)
    n = [1]
    X = 1
    D = cfg.D
    D0 = cfg.D0 or D
    landed = [0]
    Dover = [None]
    miles = {}
    def flag(val):
        a(f"v_mov_b32 v21, {val}\ns_mov_b64 exec, 1\nds_write_b32 v20, v21\ns_mov_b64 exec, -1")
    def pre_issue():
        i = n[0]
        if i >= D0:
            Dn = D
            if i >= X + 8 and cfg.Dk: Dn = cfg.Dk
            if i >= X + 24 and cfg.Dv: Dn = cfg.Dv
            if i >= X + last['v3'] and cfg.Dt: Dn = cfg.Dt
            if Dover[0]: Dn = Dover[0]
            Dn = int(Dn) + (1 if (Dn != int(Dn) and i & 1) else 0)
            want = i - Dn + 1
            if want > landed[0]:
                a(f"s_waitcnt vmcnt({i - want})")
                landed[0] = want
    def post_issue():
        n[0] += 1
        for k in sorted(miles):
            if k <= landed[0]: miles.pop(k)()
    miles[1] = lambda: (flag(M_X), stamp(7))
    miles[X+4] = lambda: flag(M_WQ)
    miles[X+8] = lambda: flag(M_GU)
    miles[X+24] = lambda: (flag(M_K), stamp(5))
    miles[X+28] = lambda: flag(M_V1)
    miles[X+32] = lambda: flag(M_V2)
    miles[X+36] = lambda: flag(M_V3)
    miles[X+40] = lambda: (stamp(3), a("s_barrier"))
    if cfg.dnearly: miles[X+42] = lambda: flag(M_DN)
    if cfg.prog:
        miles[X+42] = lambda: flag(M_DN)
        miles[X+43] = lambda: flag(M_W1)
        miles[X+44] = lambda: flag(M_W2)
        miles[X+45] = lambda: flag(M_W3)
    def setup_rest():
        a("""
        s_load_dwordx2 s[20:21], s[0:1], 48
        s_load_dwordx2 s[24:25], s[0:1], 56
        s_load_dwordx2 s[4:5], s[0:1], 8
        s_load_dwordx2 s[8:9], s[0:1], 16
        s_load_dwordx2 s[28:29], s[0:1], 64
        s_load_dwordx2 s[16:17], s[0:1], 32
        """)
        if cfg.pf == 'l':
            a("s_cmp_lg_u32 s3, 3\ns_cbranch_scc1 L_nopf")
            code_prefetch(31, 9, 32)
            a("L_nopf:")
        a(f"""
        s_cmp_lg_u32 s3, 0
        s_cbranch_scc1 L_noinit
        v_lshlrev_b32 v4, 2, v0
        v_add_u32 v4, {FLAGS}, v4
        v_mov_b32 v5, 0
        s_mov_b64 exec, 0xffff
        ds_write_b32 v4, v5           ; progress flags start at zero
        s_mov_b64 exec, -1
L_noinit:
        v_mul_u32_u24 v5, 3584, v1
        v_add_u32 v11, v5, v2              ; gate/up: row stride 3584
        v_lshl_add_u32 v12, v1, 10, v2     ; wo/down: row stride 1024
        s_mov_b32 s22, {512*1792*2}
        s_mov_b32 s23, s39
        s_mov_b32 s26, s22
        s_mov_b32 s27, s39
        s_mov_b32 s30, s22
        s_mov_b32 s31, s39
        s_lshl_b32 s6, 1, 27
        s_mov_b32 s7, s39
        s_mov_b32 s10, s6
        s_mov_b32 s11, s39
        s_mov_b32 s18, s14
        s_mov_b32 s19, s39
        s_lshr_b32 s53, s50, 4        ; b
        s_and_b32 s54, s50, 15        ; split
        s_add_u32 s57, s51, {cfg.cgshift}
        s_and_b32 s57, s57, 7
        s_lshl_b32 s57, s57, 7
        s_lshl3_add_u32 s58, s52, s49      ; u
        s_cmp_ge_u32 s58, 28
        s_cselect_b32 s59, {OOB}, 0
        s_lshl3_add_u32 s56, s51, s3
        s_mulk_i32 s56, {8*3584}
        s_lshl_b32 s60, s58, 7
        s_add_u32 s56, s56, s60
        s_add_u32 s56, s56, s59
        v_lshrrev_b32 v1, 4, v0
        v_and_b32 v2, 15, v0
        v_xor_b32 v3, v2, v1
        v_lshlrev_b32 v3, 4, v3
        v_lshl_add_u32 v13, v1, 8, v3
        v_xor_b32 v14, 64, v13
        v_xor_b32 v15, 128, v13
        v_xor_b32 v16, 192, v13
        v_lshrrev_b32 v3, 1, v2
        v_xor_b32 v3, v3, v1
        v_lshlrev_b32 v3, 5, v3
        v_and_b32 v4, 1, v0
        v_lshl_add_u32 v3, v4, 4, v3
        v_lshl_add_u32 v17, v1, 8, v3
        v_xor_b32 v18, 128, v17
        s_lshl_b32 s62, s53, 3
        s_add_u32 s62, s62, s49
        s_lshl_b32 s62, s62, 23            ; (b*8+h) * 8MB
        s_add_u32 s62, s62, {28672*256}
        """)
        if cfg.kv == 'table':
            a(f"""
            s_load_dwordx2 s[98:99], s[0:1], 88
            s_lshl2_add_u32 s92, s2, s3
            s_lshl_b32 s92, s92, 2
            s_add_u32 s92, s92, {0x500100}
            s_waitcnt lgkmcnt(0)
            s_load_dword s93, s[98:99], s92
            s_add_u32 s98, s98, {0x500000}
            s_addc_u32 s99, s99, 0
            s_load_dwordx8 s[84:91], s[98:99], 0
            s_waitcnt lgkmcnt(0)
            s_add_u32 s62, s62, s93
            """)
        elif cfg.kv:
            a("s_mov_b32 s63, 0")
            bits = [(3, 0), (3, 1), (54, 0), (54, 1), (54, 2), (54, 3), (49, 0), (49, 1), (49, 2), (53, 0)]
            for (r, b), m in zip(bits, cfg.kv[4:]):
                if m: a(f"s_bitcmp1_b32 s{r}, {b}\ns_cselect_b32 s93, {m}, 0\ns_xor_b32 s63, s63, s93")
            a("s_add_u32 s62, s62, s63")
        contig = cfg.kvmap == 'contig'
        if cfg.kv: a("s_mov_b32 s63, 0")
        else: a(f"s_lshl_b32 s63, s54, {16 if contig else 12}\ns_add_u32 s62, s62, s63")
        if cfg.kv: pass
        elif cfg.perm == "s": a("s_xor_b32 s63, s3, s54")
        elif cfg.perm == "none": a("s_mov_b32 s63, s3")
        elif cfg.perm == "sh": a("s_add_u32 s63, s54, s49\ns_and_b32 s63, s63, 15\ns_xor_b32 s63, s63, s3")
        elif cfg.perm == "hb": a("s_lshl_b32 s63, s53, 3\ns_add_u32 s63, s63, s49\ns_xor_b32 s63, s63, s3")
        a(f"""
        s_lshl_b32 s63, s63, {12 if contig else 16}
        s_add_u32 s62, s62, s63
        s_lshl_b32 s63, s49, 2
        s_add_u32 s63, s63, s52
        s_lshl_b32 s63, s63, 4
        s_add_u32 s63, s63, s3
        s_lshl_b32 s63, s63, 13
        s_add_u32 s63, s63, s57
        s_lshl_b32 s60, s58, 3
        s_add_u32 s60, s60, s3
        s_lshl_b32 s60, s60, 13
        s_add_u32 s60, s60, s57
        s_add_u32 s60, s60, s59
        s_lshl_b32 s58, s3, 2
        s_add_u32 s58, s58, {FLAGS}
        v_mov_b32 v20, s58
        v_lshlrev_b32 v22, 2, v2
        v_add_u32 v22, {FLAGS}, v22
        s_lshl_b32 s58, s3, 12             ; lw*4096
        s_waitcnt lgkmcnt(0)
        """)
        if cfg.tlb == 's':
            a(f"""
            s_cmp_lg_u32 s3, 1
            s_cbranch_scc1 L_notlb
            s_load_dword s97, s[4:5], s62
            s_load_dword s97, s[8:9], s62
            s_and_b32 s95, s63, 0x3fffff
            s_load_dword s97, s[16:17], s95
            s_load_dword s97, s[28:29], 0
            s_load_dword s97, s[24:25], 0
L_notlb:
            """)
    setup_done = [False]; barrier_done = [False]
    def maybe_setup():
        if not setup_done[0] and n[0] == X + 4:
            setup_rest(); setup_done[0] = True
        if not barrier_done[0] and n[0] == D0:
            a("s_barrier"); stamp(1); barrier_done[0] = True
    steps = []
    def wsteps(srd, v, soff, step, cnt, ldsbase, first=False):
        for i in range(cnt):
            def f(i=i):
                maybe_setup()
                if i == 0:
                    if not first: a(f"s_add_u32 m0, s61, {ldsbase}")
                    so = f"s{soff}"
                elif first:
                    a(f"s_addk_i32 m0, 4096\ns_add_u32 s{soff}, s{soff}, s47"); so = f"s{soff}"
                else:
                    a(f"s_add_u32 m0, s61, {ldsbase + i*4096}\ns_add_u32 s46, s{soff}, {i*step}"); so = "s46"
                pre_issue()
                a(f"buffer_load_dwordx4 v{v}, s[{srd}:{srd+3}], {so} offen {cfg.pol} lds")
                post_issue()
            steps.append(f)
    def kvsteps(srd, regs, ldsbase, isv):
        for i in range(4):
            for cc in range(4):
                def f(i=i, cc=cc):
                    if cc == 0 and isv and i == 2 and not cfg.streamonly and 'a' not in cfg.abl:
                        if cfg.earlywar:
                            w = L("ew")
                            a(f"s_waitcnt lgkmcnt(0)\nv_cmp_gt_u32 vcc, {C_TILE}, v23\ns_and_b64 vcc, vcc, 0xff0\ns_cbranch_vccz {w}")
                            spin(23, 22, 0xff0, C_TILE)
                            a(f"{w}:")
                        else: spin(23, 22, 0xff0, C_TILE)
                    if cfg.earlywar and cc == 2 and isv and i == 1 and not cfg.streamonly: a("ds_read_b32 v23, v22")
                    maybe_setup()
                    if cc == 0: a(f"s_add_u32 m0, s58, {ldsbase + i*16384}")
                    else: a("s_addk_i32 m0, 1024")
                    c = (cfg.kv[2] if i & 1 else 0) ^ (cfg.kv[3] if i & 2 else 0) ^ (cfg.kv[0] if cc & 1 else 0) ^ (cfg.kv[1] if cc & 2 else 0)
                    a(f"s_xor_b32 s96, s62, {c}")
                    pre_issue()
                    a(f"buffer_load_dwordx4 v{regs[cc % len(regs)]}, s[{srd}:{srd+3}], s96 offen {cfg.pol} lds")
                    post_issue()
                steps.append(f)
    wsteps(12, 10, 55, 32*8192, 4, WQ_L, first=True)
    wsteps(20, 11, 56, 32*3584, 2, G_L)
    wsteps(24, 11, 56, 32*3584, 2, U_L)
    kvsteps(4, [13, 14, 15, 16], K_L, False)
    kvsteps(8, [17, 18], V_L, True)
    wsteps(28, 12, 60, 32*1024, 2, DN_L)
    wsteps(16, 12, 63, 32*1024, 4, WO_L)
    head, V, DN, WO = steps[:24], steps[24:40], steps[40:42], steps[42:46]
    order = [('h', f) for f in head]
    for q in range(4):
        if cfg.dnpos == q: order += [('d', f) for f in DN]
        if q == 3: order += [('w', f) for f in WO[:cfg.wopos]]
        order += [('v%d' % q, f) for f in V[4*q:4*q+4]]
    if cfg.dnpos == 4: order += [('d', f) for f in DN]
    order += [('w', f) for f in WO[cfg.wopos:]]
    steps = [f for _, f in order]
    last = {k: i + 1 for i, (k, _) in enumerate(order)}
    if not cfg.prog:
        for old, new in ((28, 'v0'), (32, 'v1'), (36, 'v2'), (40, 'v3')):
            miles[('n', X + last[new])] = miles.pop(X + old)
        for k in [k for k in miles if isinstance(k, tuple)]: miles[k[1]] = miles.pop(k)
    def finish():
        assert n[0] == 46 + X and barrier_done[0]
        for k in sorted(miles):
            a(f"s_waitcnt vmcnt({46+X-k})"); miles[k]()
        miles.clear()
        a("s_waitcnt vmcnt(0)")
        flag(M_END)
        stamp(4)
        if cfg.diag:
            a("s_load_dwordx2 s[32:33], s[0:1], 88"); srd_tail(32, WS_BYTES)
            a("s_getreg_b32 s80, hwreg(HW_REG_HW_ID)")
            dump_stamps(9)
        a("s_endpgm")
    if not cfg.adapt:
        for f in steps: f()
        finish()
    else:
        at, levels = cfg.adapt
        for f in steps[:at - X]: f()
        a("s_memrealtime s[98:99]\ns_waitcnt lgkmcnt(0)\ns_sub_u32 s98, s98, s100")
        for li, (ticks, dep) in enumerate(levels):
            a(f"s_cmp_gt_u32 s98, {ticks}\ns_cbranch_scc1 L_late{li}")
        saved = (n[0], landed[0], dict(miles))
        for li, (ticks, dep) in enumerate([(None, None)] + list(levels)):
            n[0], landed[0] = saved[0], saved[1]; miles.clear(); miles.update(saved[2])
            if li: a(f"L_late{li-1}:")
            Dover[0] = dep
            for f in steps[at - X:]: f()
            finish()

    a("L_compute:")
    incompute[0] = True
    a("""
    s_load_dwordx2 s[32:33], s[0:1], 88
    s_load_dwordx4 s[40:43], s[0:1], 72
    v_lshlrev_b32 v7, 4, v0           ; l*16
    s_sub_u32 s55, s3, 4
    """)
    stamp(0)
    if cfg.pf == 'c':
        a("s_cmp_lg_u32 s55, 7\ns_cbranch_scc1 L_nopf")
        code_prefetch(122, 7, 112)
        a("L_nopf:")
    a("s_barrier")
    if cfg.streamonly: a("s_endpgm")
    if cfg.prio: a(f"s_setprio {cfg.prio}")
    srd_tail(36, 2048); srd_tail(32, WS_BYTES)
    a(f"""
    s_lshr_b32 s53, s50, 4        ; b
    s_and_b32 s54, s50, 15        ; split
    s_waitcnt lgkmcnt(0)
    s_mov_b64 s[24:25], s[42:43]  ; d_debug
    s_movk_i32 s26, 256
    s_mov_b32 s27, s39
    s_movk_i32 s42, 2048
    s_mov_b32 s43, s39
    s_load_dword s44, s[32:33], 0
    v_and_b32 v1, 15, v0              ; J
    v_lshrrev_b32 v2, 4, v0           ; G
    """)
    if cfg.tr: a("v_and_b32 v120, 7, v0\nv_lshrrev_b32 v119, 5, v0\nv_lshlrev_b32 v119, 10, v119\nv_lshl_add_u32 v120, v120, 1, v119     ; final stage: byte offset of this lane's output")
    else: a("v_and_b32 v120, 3, v0\nv_lshl_add_u32 v120, v120, 2, v2\nv_lshlrev_b32 v120, 1, v120")
    if cfg.tr: a("s_bfe_u32 s30, s2, 0x10006\ns_and_b32 s29, s2, 3\ns_lshl2_add_u32 s30, s30, s29\ns_bfe_u32 s29, s2, 0x30003\ns_lshl3_add_u32 s30, s30, s29     ; c: index of the 8 columns this workgroup finishes")
    elif cfg.cmap: a("s_bfe_u32 s30, s2, 0x20005\ns_and_b32 s29, s2, 3\ns_lshl2_add_u32 s30, s30, s29\ns_bfe_u32 s29, s2, 0x20003\ns_lshl2_add_u32 s30, s30, s29     ; c: index of the 16 outputs this workgroup finishes")
    else: a("s_bfe_u32 s30, s2, 0x40003\ns_and_b32 s29, s2, 3\ns_lshl2_add_u32 s30, s30, s29")
    a(f"""
    s_and_b32 s29, s2, 0x84
    s_xor_b32 s29, s29, {cfg.fin}     ; nonzero: not a finishing workgroup
    s_mov_b32 s22, s29
    s_lshr_b32 s56, s30, 1
    s_lshl_b32 s56, s56, 2
    s_and_b32 s58, s30, 1
    s_or_b32 s56, s56, s58
    s_lshl_b32 s56, s56, 12
    s_add_u32 s28, s56, {cfg.fr}
    s_cmp_lg_u32 s55, 4
    s_cbranch_scc1 L_noxr
    s_cmp_lg_u32 s29, 0
    s_cbranch_scc1 L_noxr
    """)
    if cfg.tr: a("s_lshl_b32 s31, s30, 4")
    else: a("""
    s_lshr_b32 s56, s30, 3            ; cg'
    s_lshl_b32 s56, s56, 6
    s_and_b32 s58, s30, 3
    s_lshl_b32 s58, s58, 4
    s_add_u32 s56, s56, s58
    s_bfe_u32 s58, s30, 0x10002
    s_lshl_b32 s58, s58, 9
    s_add_u32 s56, s56, s58           ; element index of first column
    s_lshl_b32 s31, s56, 1
    """)
    def outmask():
        if cfg.tr: a("s_mov_b32 exec_lo, 0xff\ns_mov_b32 exec_hi, 0xff")
        else: exmask16(0xf)
    a(f"""
    buffer_load_ushort v121, v120, s[36:39], s31 offen
    {"buffer_load_ushort v119, v120, s[40:43], s31 offen" if cfg.preout is True else ""}
    """)
    if cfg.preout == 'st':
        a("v_mov_b32 v119, 0")
        outmask()
        a("buffer_store_short v119, v120, s[40:43], s31 offen\ns_mov_b64 exec, -1")
    a(f"""
    s_add_u32 s56, s28, 8192
    v_lshlrev_b32 v118, 6, v0
    {"" if 'F' in cfg.abl or cfg.preF != 'start' else f"buffer_load_dword v119, v118, s[32:35], s28 offen {cfg.preFpol}"}
    {"" if 'F' in cfg.abl or cfg.preF != 'start' else f"buffer_load_dword v119, v118, s[32:35], s56 offen {cfg.preFpol}"}
L_noxr:
    """)
    if cfg.tlb.startswith('v'):
        a(f"""
        s_cmp_lg_u32 s55, 5
        s_cbranch_scc1 L_notlb
        s_load_dwordx4 s[4:7], s[0:1], 8
        s_load_dwordx2 s[8:9], s[0:1], 32
        s_load_dwordx2 s[10:11], s[0:1], 64
        s_lshl3_add_u32 s58, s53, s49
        s_lshl_b32 s58, s58, 23
        s_add_u32 s58, s58, {28672*256}
        v_mov_b32 v110, s58
        s_lshl2_add_u32 s58, s49, s52
        s_lshl_b32 s58, s58, 17
        v_mov_b32 v111, s58
        v_mov_b32 v112, 0
        s_mov_b64 exec, 1
        s_waitcnt lgkmcnt(0)
        {"global_load_dword v113, v110, s[4:5]" if 'k' in cfg.tlb else ""}
        global_load_dword v113, v110, s[6:7]
        global_load_dword v113, v111, s[8:9]
        global_load_dword v113, v112, s[10:11]
        s_mov_b64 exec, -1
L_notlb:
        """)
    if cfg.preF == 'split':
        a(f"""
        s_cmp_lg_u32 s55, 6
        s_cbranch_scc1 L_nosp
        s_and_b32 s56, s2, 4
        s_cbranch_scc1 L_nosp
        v_lshlrev_b32 v118, 6, v0
        s_lshr_b32 s56, s2, 7
        s_lshl_b32 s56, s56, 13
        s_add_u32 s56, s56, s28
        buffer_load_dword v119, v118, s[32:35], s56 offen {cfg.preFpol}
L_nosp:
        """)
    if cfg.preF == 'slack':

        a(f"""
        s_cmp_lg_u32 s55, 6
        s_cbranch_scc1 L_nosk
        s_and_b32 s56, s2, 0xc4
        s_cmp_lg_u32 s56, 0xc4
        s_cbranch_scc1 L_nosk
        v_lshlrev_b32 v118, 6, v0
        s_add_u32 s56, s28, 8192
        buffer_load_dword v119, v118, s[32:35], s28 offen {cfg.preFpol}
        buffer_load_dword v119, v118, s[32:35], s56 offen {cfg.preFpol}
        s_sub_u32 s58, s28, {16*16384}
        s_sub_u32 s56, s56, {16*16384}
        buffer_load_dword v119, v118, s[32:35], s58 offen {cfg.preFpol}
        buffer_load_dword v119, v118, s[32:35], s56 offen {cfg.preFpol}
L_nosk:
        """)
    a(f"""
    """)
    a(f"""
    v_lshlrev_b32 v4, 2, v1
    v_add_u32 v4, {FLAGS}, v4
    s_lshl_b32 s56, s55, 2
    s_add_u32 s56, s56, {FLAGS+16}
    v_mov_b32 v6, s56
    v_mov_b32 v3, 0xffffff00
    s_lshl_b32 s62, s49, 2
    s_add_u32 s62, s62, s52           ; 4h+rg
    s_and_b32 s56, s55, 3             ; mt
    v_lshrrev_b32 v8, 2, v1
    v_lshl_add_u32 v8, v2, 2, v8      ; r
    v_bfe_u32 v9, v8, 1, 2
    v_xor_b32 v9, s56, v9
    v_lshlrev_b32 v9, 5, v9
    v_and_b32 v10, 3, v1
    v_lshlrev_b32 v11, 3, v10         ; (i&3)*8
    v_add_u32 v9, v9, v11
    v_lshl_add_u32 v15, v8, 7, v9     ; vT
    v_and_b32 v10, 1, v1
    v_mul_u32_u24 v12, {XNS}, v10
    v_lshl_add_u32 v12, v2, 3, v12    ; (j&1)*XNS + g*8
    ; first publish slot: q partial (cw<4) or gate/up partial
    s_lshl_b32 s57, s49, 14
    s_lshl_b32 s58, s52, 11
    s_add_u32 s57, s57, s58
    s_lshl_b32 s58, s51, 8
    s_add_u32 s57, s57, s58
    s_add_u32 s57, s57, {QA}
    s_lshl_b32 s58, s62, 13
    s_lshl_b32 s59, s51, 10
    s_add_u32 s58, s58, s59
    s_add_u32 s58, s58, {GA}
    s_lshl_b32 s59, s52, 8
    s_lshl_b32 s60, s51, 7
    s_cmp_lt_u32 s55, 4
    s_cselect_b32 s57, s57, s58
    s_cselect_b32 s59, s59, s60
    s_mov_b32 s60, {WQ_L}
    s_cselect_b32 s60, s60, {G_L}
    s_cselect_b32 s61, 13, 8
    s_mov_b32 s63, 0x00030003
    s_cselect_b32 s63, s63, 0x000f000f
    s_lshl_b32 s56, s56, 6
    s_add_u32 s57, s57, s56           ; publish soffset (near)
    s_add_u32 s59, s59, {XN}
    v_add_u32 v12, s59, v12
    v_add_u32 v9, s60, v15
    v_lshlrev_b32 v13, s61, v1
    v_lshl_add_u32 v13, v2, 4, v13    ; publish voffset
    """)
    if cfg.pre1:
        a("s_mov_b32 exec_lo, s63\ns_mov_b32 exec_hi, s63\nbuffer_load_dword v125, v13, s[32:35], s57 offen\ns_mov_b64 exec, -1")
    def cflag(val):
        a(f"v_mov_b32 v5, {val}\ns_mov_b64 exec, 1\nds_write_b32 v6, v5\ns_mov_b64 exec, -1")
    def wait(mask, val, body=None): spin(5, 4, mask, val, body)
    def allreduce(x, t, op):
        for d in ("quad_perm:[1,0,3,2]", "quad_perm:[2,3,0,1]", "row_half_mirror", "row_mirror"):
            a(f"{op}_dpp v{x}, v{x}, v{x} {d} row_mask:0xf bank_mask:0xf")
        a(f"v_mov_b32 v{t}, v{x}\nv_permlane16_swap_b32 v{x}, v{t}\n{op} v{x}, v{x}, v{t}")
        a(f"v_mov_b32 v{t}, v{x}\nv_permlane32_swap_b32 v{x}, v{t}\n{op} v{x}, v{x}, v{t}")
    def unpack(src, dst, n):
        for i in range(n):
            a(f"v_lshlrev_b32 v{dst+2*i}, 16, v{src+i}\nv_and_b32 v{dst+2*i+1}, 0xffff0000, v{src+i}")
    def pack(src, dst, n):
        for i in range(n):
            a(f"v_cvt_pk_bf16_f32 v{dst+i}, v{src+2*i}, v{src+2*i+1}")
    def rbf(x, d=None):
        d = x if d is None else d
        if cfg.trim2: a(f"v_cvt_pk_bf16_f32 v{d}, 0, v{x}")
        else: a(f"v_cvt_pk_bf16_f32 v{d}, v{x}, v{x}\nv_lshlrev_b32 v{d}, 16, v{d}")
    def tag(src, dst, last=48):
        for i in range(4):
            a(f"v_and_or_b32 v{dst+i}, v{src+i}, v3, s{45+i if i < 3 else last}")
    def check(regs, last=97, masked=False, t=5):
        for k, r in enumerate(regs):
            for i in range(4): a(f"v_xor_b32 v{r+i}, s{45+i if i < 3 else last}, v{r+i}")
            if masked:
                if k == 0: a(f"v_or3_b32 v{t}, v{r}, v{r+1}, v{r+2}\nv_mov_b32 v127, v{r+3}")
                else: a(f"v_or3_b32 v{t}, v{t}, v{r}, v{r+1}\nv_or_b32 v{t}, v{t}, v{r+2}\nv_or_b32 v127, v127, v{r+3}")
            elif k == 0: a(f"v_or3_b32 v{t}, v{r}, v{r+1}, v{r+2}\nv_or_b32 v{t}, v{t}, v{r+3}")
            else: a(f"v_or3_b32 v{t}, v{t}, v{r}, v{r+1}\nv_or3_b32 v{t}, v{t}, v{r+2}, v{r+3}")
        if masked: a(f"v_and_or_b32 v{t}, v127, s101, v{t}")
        a(f"v_and_b32 v{t}, 0xff, v{t}\nv_cmp_ne_u32 vcc, 0, v{t}")
    def issue(loads, soffs):
        if 'q' in cfg.abl and len(loads) == 4: return
        if 'h' in cfg.abl and len(loads) == 8: return
        if 'm' in cfg.abl and loads[0][0] == 80: return
        for (r, va, si, imm) in loads:
            a(f"buffer_load_dwordx4 v[{r}:{r+3}], v{va}, s[32:35], s{soffs[si]} offen offset:{imm} sc1")
    def poll(loads, soffs, each=None, pre_issued=None, **kw):
        top, chk, done = L("p"), L("pc"), L("pd")
        a("s_mov_b32 s59, 0")
        if pre_issued is not None: a(f"s_waitcnt vmcnt({pre_issued})\ns_branch {chk}")
        a(f"{top}:\ns_add_u32 s59, s59, 1")
        if each: each()
        issue(loads, soffs)
        a(f"s_waitcnt vmcnt(0)\n{chk}:")
        check([r for (r, _, _, _) in loads], **kw)
        if 'r' in cfg.abl: a(f"{done}:")
        else: a(f"s_cbranch_vccz {done}\ns_cmp_lt_u32 s59, {cfg.NMAX}\ns_cbranch_scc1 {top}\n{done}:")
    def pm(d, w, x, c):
        A, Bm = (x, w) if cfg.tr else (w, x)
        a(f"v_mfma_f32_16x16x32_bf16 v[{d}:{d+3}], v[{A}:{A+3}], v[{Bm}:{Bm+3}], {c}")
    def mstore(r, va, so):
        f, d = L("ms"), L("md")
        a(f"s_cmp_lg_u32 s98, 0\ns_cbranch_scc1 {f}\nbuffer_store_dwordx4 v[{r}:{r+3}], v{va}, s[32:35], s{so} offen {NP}\ns_branch {d}\n{f}:\nbuffer_store_dwordx4 v[{r}:{r+3}], v{va}, s[32:35], s{so} offen sc1\n{d}:")
    def far_first():
        t = L("ff")
        a(f"s_cmp_lg_u32 s95, 0\ns_cbranch_scc1 {t}\ns_mov_b32 s95, 1\ns_mov_b32 exec_lo, s63\ns_mov_b32 exec_hi, s63\nbuffer_store_dwordx4 v[52:55], v13, s[32:35], s58 offen sc1\ns_mov_b64 exec, -1\n{t}:")

    if 'a' in cfg.abl: a("s_endpgm")
    a("s_cmp_ge_u32 s55, 2\ns_cbranch_scc1 L_noln")
    a(f"s_mul_i32 s56, s55, {XNS}\ns_add_u32 s56, s56, {XN}\nv_add_u32 v14, s56, v7")
    wait(0xf, M_X)
    a("ds_read_b128 v[16:19], v14\ns_waitcnt lgkmcnt(0)")
    stamp(1)
    unpack(16, 20, 4)
    a("""
    v_add_f32 v28, v20, v21
    v_add_f32 v29, v22, v23
    v_add_f32 v30, v24, v25
    v_add_f32 v31, v26, v27
    v_add_f32 v28, v28, v29
    v_add_f32 v30, v30, v31
    v_add_f32 v28, v28, v30
    """)
    allreduce(28, 29, "v_add_f32")
    a("v_mul_f32 v28, 0x3b000000, v28")
    for i in range(8): a(f"v_sub_f32 v{32+i}, v{20+i}, v28")
    a("v_mul_f32 v29, v32, v32\nv_mul_f32 v30, v33, v33")
    for i in range(2, 8, 2): a(f"v_fmac_f32 v29, v{32+i}, v{32+i}\nv_fmac_f32 v30, v{33+i}, v{33+i}")
    a("v_add_f32 v29, v29, v30")
    rbf(28)
    for i in range(8): a(f"v_sub_f32 v{32+i}, v{20+i}, v28")
    allreduce(29, 30, "v_add_f32")
    pack(32, 16, 4)
    a("v_mul_f32 v29, 0x3b000000, v29")
    rbf(29)
    a("v_add_f32 v29, 0x3727c5ac, v29")
    rbf(29)
    a("v_sqrt_f32 v29, v29")
    unpack(16, 32, 4)
    rbf(29)
    a("v_rcp_f32 v29, v29")
    for i in range(8): a(f"v_mul_f32 v{32+i}, v{32+i}, v29")
    pack(32, 16, 4)
    a("ds_write_b128 v14, v[16:19]")
    cflag(C_XN)
    a("L_noln:")
    a(f"""
    s_waitcnt lgkmcnt(0)
    s_add_u32 s44, s44, 0x01010101
    s_and_b32 s45, s44, 0xff
    s_bfe_u32 s46, s44, 0x80008
    s_bfe_u32 s47, s44, 0x80010
    s_lshr_b32 s48, s44, 24
    s_getreg_b32 s96, hwreg(HW_REG_XCC_ID, 0, 4)
    s_xor_b32 s96, s96, s48           ; byte 3 of the first hand-off's tag carries the die id
    s_mov_b32 s97, s96
    s_mov_b32 s98, 0
    s_mov_b32 s101, -1
    s_mov_b32 s95, 0
    s_add_u32 s58, s57, {MIR}
    v_and_b32 v10, 2, v1
    v_cmp_ne_u32 s[60:61], 0, v10
    """)
    wait(0x30, C_XN)
    a("s_cmp_ge_u32 s55, 4\ns_cbranch_scc1 L_gu")
    for k in range(4): a(f"ds_read2_b64 v[{32+4*k}:{35+4*k}], v12 offset0:{8*k} offset1:{8*k+4}")
    wait(0xf, M_WQ)
    stamp(2)
    for k in range(4):
        for t in range(2): a(f"ds_read_b64_tr_b16 v[{16+4*k+2*t}:{17+4*k+2*t}], v9 offset:{k*4096+t*2048}")
    cflag(C_TILE)
    a("s_waitcnt lgkmcnt(0)")
    for k in range(4):
        a(f"v_mfma_f32_16x16x32_bf16 v[48:51], v[{16+4*k}:{19+4*k}], v[{32+4*k}:{35+4*k}], {'0' if k==0 else 'v[48:51]'}")
    a("s_branch L_pub1")
    a("L_gu:")
    for k in range(2): a(f"ds_read2_b64 v[{32+4*k}:{35+4*k}], v12 offset0:{8*k} offset1:{8*k+4}")
    wait(0xf, M_GU)
    stamp(2)
    for m in range(2):
        for k in range(2):
            for t in range(2): a(f"ds_read_b64_tr_b16 v[{16+8*m+4*k+2*t}:{17+8*m+4*k+2*t}], v9 offset:{m*8192+k*4096+t*2048}")
    cflag(C_TILE)
    a("s_waitcnt lgkmcnt(0)")
    for k in range(2):
        a(f"v_mfma_f32_16x16x32_bf16 v[48:51], v[{16+4*k}:{19+4*k}], v[{32+4*k}:{35+4*k}], {'0' if k==0 else 'v[48:51]'}")
        a(f"v_mfma_f32_16x16x32_bf16 v[56:59], v[{24+4*k}:{27+4*k}], v[{32+4*k}:{35+4*k}], {'0' if k==0 else 'v[56:59]'}")
    for i in range(4): a(f"v_cndmask_b32 v{48+i}, v{48+i}, v{56+i}, s[60:61]")
    a("L_pub1:\ns_nop 7")
    tag(48, 52, 96)
    a("s_mov_b32 exec_lo, s63\ns_mov_b32 exec_hi, s63")
    if 'P' not in cfg.abl: a(f"buffer_store_dwordx4 v[52:55], v13, s[32:35], s57 offen {NP}")
    a("s_mov_b64 exec, -1")
    stamp(3)
    if 'x' in cfg.abl: a("s_endpgm")
    def scalar_touch(sides, lab):
        a(f"""
        s_cmp_lt_u32 s55, 4
        s_cbranch_scc1 {lab}
        s_cmp_lg_u32 s22, 0
        s_cbranch_scc1 {lab}
        s_sub_u32 s4, s55, 4
        s_lshl_b32 s4, s4, 10
        s_add_u32 s4, s4, s28
        s_add_u32 s6, s32, s4
        s_addc_u32 s7, s33, 0
        """)
        for k, sd in enumerate(sides):
            if k: a("s_waitcnt lgkmcnt(0)")
            for i in range(8): a(f"s_load_dword s23, s[6:7], {sd*8192 + i*128}")
        a(f"{lab}:")
    if cfg.preF == 'scalar': scalar_touch((0, 1) if cfg.side == 'auto' and cfg.force is None else (cfg.side if cfg.side != 'auto' else cfg.force,), "L_nost")
    if cfg.side == 'auto':
        a(f"""
        s_cmp_lt_u32 s55, 4
        s_cbranch_scc1 L_noprobe
        s_cmp_lg_u32 s2, {cfg.leader}
        s_cbranch_scc1 L_noprobe
        {"s_and_b32 s4, s55, 2" if cfg.race else "s_mov_b32 s4, s55"}
        s_lshl_b32 s4, s4, {9 if cfg.race else 7}
        s_and_b32 s5, s55, 1
        s_lshl_b32 s5, s5, 13
        s_add_u32 s4, s4, s5
        s_add_u32 s4, s4, {cfg.fr + PROBE}
        s_xor_b32 s5, s4, 0x2000
        s_add_u32 s6, s32, s4
        s_addc_u32 s7, s33, 0
        s_add_u32 s8, s32, s5
        s_addc_u32 s9, s33, 0
        s_load_dword s10, s[6:7], 0 glc
        s_load_dword s11, s[8:9], 0 glc
        s_mov_b32 s16, 0
        s_waitcnt lgkmcnt(0)
        """)
        if cfg.race:
            for r in range(1, cfg.race): a(f"s_load_dword s10, s[6:7], {r*cfg.rstep} glc")
            a("s_waitcnt lgkmcnt(0)")
            a("v_mov_b32 v5, 1\ns_mov_b64 exec, 1\nds_add_u32 v4, v5 offset:60\ns_mov_b64 exec, -1")
            wait(0x8000, 4)
            for r in range(cfg.race): a(f"s_load_dword s10, s[6:7], {r*cfg.rstep} glc\ns_waitcnt lgkmcnt(0)")
            a(f"""
            v_mov_b32 v5, 16
            s_mov_b64 exec, 1
            ds_add_rtn_u32 v16, v4, v5 offset:60
            s_waitcnt lgkmcnt(0)
            v_readfirstlane_b32 s14, v16
            s_lshr_b32 s14, s14, 4
            s_cmp_lg_u32 s14, {cfg.rank}
            s_cbranch_scc1 L_noprobe2
            s_and_b32 s14, s55, 1
            {"s_xor_b32 s14, s14, 1" if inv else ""}
            s_add_u32 s14, s14, 1
            v_mov_b32 v16, s14
            v_mov_b32 v17, 0
            buffer_store_dword v16, v17, s[24:27], 0 offen sc1
L_noprobe2:
            s_mov_b64 exec, -1
L_noprobe:
            """)
        for r in range(cfg.rounds if not cfg.race else 0):
            a("""
            s_memtime s[12:13]
            s_waitcnt lgkmcnt(0)
            s_load_dword s10, s[6:7], 0 glc
            s_waitcnt lgkmcnt(0)
            s_memtime s[14:15]
            s_waitcnt lgkmcnt(0)
            s_load_dword s10, s[8:9], 0 glc
            s_waitcnt lgkmcnt(0)
            s_memtime s[18:19]
            s_waitcnt lgkmcnt(0)
            s_lshl_b32 s14, s14, 1
            s_sub_u32 s14, s14, s12
            s_sub_u32 s14, s14, s18          ; first - second
            s_add_u32 s16, s16, s14
            """)
        if not cfg.race: a(f"""
        s_sub_u32 s14, 0, s16
        s_bitcmp1_b32 s55, 0
        s_cselect_b32 s16, s14, s16
        s_min_i32 s16, s16, 2047
        s_max_i32 s16, s16, -2047
        s_add_u32 s16, s16, {(1 << 20) + 2048}
        v_mov_b32 v5, s16
        s_mov_b64 exec, 1
        ds_add_rtn_u32 v16, v4, v5 offset:60
        s_waitcnt lgkmcnt(0)
        v_readfirstlane_b32 s14, v16
        s_add_u32 s14, s14, s16
        s_lshr_b32 s15, s14, 20
        s_cmp_lg_u32 s15, 4
        s_cbranch_scc1 L_noprobe2
        s_and_b32 s14, s14, 0xfffff
        s_cmp_gt_u32 s14, {4*2048}
        s_cselect_b32 s14, {'1, 2' if inv else '2, 1'}
        v_mov_b32 v16, s14
        v_mov_b32 v17, 0
        buffer_store_dword v16, v17, s[24:27], 0 offen sc1
L_noprobe2:
        s_mov_b64 exec, -1
L_noprobe:
        """)
    a(f"""
    v_and_b32 v10, 3, v1
    v_mul_u32_u24 v9, {QBS}, v10
    v_lshl_add_u32 v9, v2, 4, v9
    v_add_u32 v9, {QB}, v9
    s_lshl_b32 s56, s55, 13
    v_xor_b32 v12, v1, v2
    v_lshlrev_b32 v12, 4, v12
    v_lshl_add_u32 v12, v1, 8, v12
    v_add_u32 v12, s56, v12           ; K operand address, step 0
    v_xor_b32 v62, 64, v12
    v_xor_b32 v63, 128, v12
    v_xor_b32 v64, 192, v12
    """)
    a("s_cmp_ge_u32 s55, 2\ns_cbranch_scc1 L_noq")
    a(f"""
    s_lshl_b32 s56, s55, 10
    v_add_u32 v126, s56, v7
    s_lshl_b32 s99, s49, 14
    s_lshl_b32 s100, s53, 13
    s_add_u32 s99, s99, s100
    s_add_u32 s99, s99, {QA}
    s_add_u32 s100, s99, 4096
    s_lshl_b32 s56, s55, 1
    v_lshrrev_b32 v14, 5, v0
    v_add_u32 v14, s56, v14
    v_mul_u32_u24 v14, {QBS}, v14
    v_and_b32 v16, 31, v0
    v_lshl_add_u32 v14, v16, 3, v14
    v_add_u32 v14, {QB}, v14
    """)
    if cfg.qtrig: wait(0xf, cfg.qtrig)
    def q_each():
        t = L("qe")
        a(f"s_cmp_lt_u32 s59, {cfg.N0}\ns_cbranch_scc1 {t}")
        a("v_mov_b32 v5, 1\ns_mov_b64 exec, 1\nds_write_b32 v4, v5 offset:56\ns_mov_b64 exec, -1")
        far_first()
        a(f"s_xor_b32 s98, s98, {MIR}\ns_xor_b32 s99, s99, {MIR}\ns_xor_b32 s100, s100, {MIR}\ns_xor_b32 s101, s101, 15\n{t}:")
    poll([(16, 126, 0, 0), (20, 126, 0, 2048), (24, 126, 1, 0), (28, 126, 1, 2048)], [99, 100], each=q_each, last=96, masked=True)
    a("v_and_b32 v127, 15, v127\nv_cmp_ne_u32 vcc, 0, v127\ns_cbranch_vccnz L_remote\ns_mov_b32 s98, 0\nL_remote:")
    for r in (19, 23, 27, 31): a(f"v_and_b32 v{r}, v{r}, v3")
    for i in range(4): a(f"v_add_f32 v{16+i}, v{16+i}, v{20+i}\nv_add_f32 v{24+i}, v{24+i}, v{28+i}")
    for i in range(4): a(f"v_add_f32 v{16+i}, v{16+i}, v{24+i}")
    pack(16, 20, 2)
    a("ds_write_b64 v14, v[20:21]")
    a("v_mov_b32 v5, s98\ns_mov_b64 exec, 1\nds_write_b32 v6, v5 offset:32\ns_mov_b64 exec, -1")
    cflag(C_Q)
    a("L_noq:")
    stamp(4)
    if 'y' in cfg.abl: a("s_endpgm")
    def watch():
        t = L("wt")
        a(f"v_cmp_ne_u32 vcc, 0, v5\ns_and_b64 vcc, vcc, 0x4000\ns_cbranch_vccz {t}")
        far_first()
        a(f"{t}:")
    wait(0x30, C_Q, watch)
    a(f"v_cmp_ne_u32 vcc, 0, v5\ns_and_b64 vcc, vcc, 0x3000\ns_mov_b32 s98, 0\ns_mov_b32 s101, -1\ns_cbranch_vccz L_near\ns_mov_b32 s98, {MIR}\ns_mov_b32 s97, s48\ns_mov_b32 s101, 0xfffffff0")
    far_first()
    a("L_near:")
    for st in range(4): a(f"ds_read_b128 v[{16+4*st}:{19+4*st}], v9 offset:{64*st}")
    wait(0xf, M_K)
    stamp(5)
    ka = [12, 62, 63, 64]
    for tt in range(2):
        for st in range(4):
            r = 32 + 16*tt + 4*st
            if r == 52: r = 92
            if r == 60: r = 88
            a(f"ds_read_b128 v[{r}:{r+3}], v{ka[st]} offset:{tt*4096}")
    a(f"""
    v_lshlrev_b32 v9, 5, v10
    v_add_u32 v9, {MX}, v9
    s_lshl_b32 s56, s55, 2
    v_add_u32 v12, s56, v9
    s_lshl_b32 s56, s55, 8
    v_lshlrev_b32 v13, 6, v2
    v_lshl_add_u32 v13, v10, 4, v13
    v_add_u32 v13, {PB}, v13
    v_add_u32 v14, s56, v13
    s_waitcnt lgkmcnt(0)
    """)
    for st in range(4):
        for tt in range(2):
            r = 32 + 16*tt + 4*st; d = 68 + 4*tt
            if r == 52: r = 92
            if r == 60: r = 88
            a(f"v_mfma_f32_16x16x32_bf16 v[{d}:{d+3}], v[{r}:{r+3}], v[{16+4*st}:{19+4*st}], {'0' if st==0 else f'v[{d}:{d+3}]'}")
    if cfg.trim2:
        for i in range(8): rbf(68+i, 36+i)
        for i in range(8): a(f"v_mul_f32 v{36+i}, 0x3db504f3, v{36+i}")
        for i in range(8): rbf(36+i)
    else:
        pack(68, 32, 4)
        unpack(32, 36, 4)
        for i in range(8): a(f"v_mul_f32 v{36+i}, 0x3db504f3, v{36+i}")
        pack(36, 32, 4)
        unpack(32, 36, 4)
    a("""
    v_max3_f32 v56, v36, v37, v38
    v_max3_f32 v57, v39, v40, v41
    v_max3_f32 v56, v56, v42, v43
    v_max_f32 v56, v56, v57
    v_mov_b32 v57, v56
    v_permlane16_swap_b32 v56, v57
    v_max_f32 v56, v56, v57
    v_mov_b32 v57, v56
    v_permlane32_swap_b32 v56, v57
    v_max_f32 v56, v56, v57
    s_mov_b64 exec, 15
    ds_write_b32 v12, v56
    """)
    cflag(C_MAX)
    wait(0xff0, C_MAX)
    a(f"""
    ds_read_b128 v[44:47], v9
    ds_read_b128 v[48:51], v9 offset:16
    s_mov_b32 s56, {LOG2E}
    s_waitcnt lgkmcnt(0)
    v_max3_f32 v56, v44, v45, v46
    v_max3_f32 v57, v47, v48, v49
    v_max3_f32 v56, v56, v50, v51
    v_max_f32 v56, v56, v57           ; m
    v_mul_f32 v57, s56, v56
    """)
    for i in range(8): a(f"v_fma_f32 v{36+i}, v{36+i}, s56, -v57")
    for i in range(8): a(f"v_exp_f32 v{36+i}, v{36+i}")
    pack(36, 32, 4)
    exmask16(0xf)
    a("ds_write_b128 v14, v[32:35]")
    cflag(C_P)
    a(f"""
    v_and_b32 v9, 7, v8
    v_xor_b32 v9, s55, v9
    v_lshlrev_b32 v9, 5, v9
    v_add_u32 v9, v9, v11
    v_lshl_add_u32 v9, v8, 8, v9
    v_add_u32 v9, {V_L}, v9
    v_lshlrev_b32 v12, 14, v1
    v_lshl_add_u32 v12, v2, 4, v12    ; o publish: head*16384 + g*16
    s_lshl_b32 s56, s49, 16
    s_lshl_b32 s57, s50, 9
    s_add_u32 s56, s56, s57
    s_lshl_b32 s57, s55, 6
    s_add_u32 s56, s56, s57
    s_add_u32 s56, s56, {OA}          ; o publish soffset
    s_add_u32 s56, s56, s98
    """)
    if cfg.pretouch == 'st':
        a("s_xor_b32 s57, s45, 0xff")
        for i in range(4): a(f"v_mov_b32 v{76+i}, s57")
        exmask16(0xf)
        a("buffer_store_dwordx4 v[76:79], v12, s[32:35], s56 offen\ns_mov_b64 exec, -1")
    elif cfg.pretouch:
        exmask16(0xf)
        a("buffer_load_dword v125, v12, s[32:35], s56 offen\ns_mov_b64 exec, -1")
    wait(0xff0, C_P)
    for kb in range(8): a(f"ds_read_b128 v[{16+4*kb}:{19+4*kb}], v13 offset:{kb*256}")
    a("s_waitcnt lgkmcnt(0)")
    stamp(6)
    if 'z' in cfg.abl: a("s_endpgm")
    a("s_cmp_lg_u32 s55, 3\ns_cbranch_scc1 L_nol")
    for i in range(4): a(f"v_mov_b32 v{52+i}, 0x3f803f80")
    for kb in range(8):
        a(f"v_mfma_f32_16x16x32_bf16 v[60:63], v[52:55], v[{16+4*kb}:{19+4*kb}], {'0' if kb==0 else 'v[60:63]'}")
    a(f"""
    v_lshlrev_b32 v13, 9, v0
    s_lshl_b32 s57, s49, 11
    s_lshl_b32 s58, s50, 4
    s_add_u32 s57, s57, s58
    s_add_u32 s57, s57, {MA}
    s_add_u32 s57, s57, s98
    v_mov_b32 v58, 0
    v_mov_b32 v59, 0
    v_mov_b32 v57, v60
    """)
    tag(56, 60, 97)
    a("s_mov_b64 exec, 15")
    mstore(60, 13, 57)
    a("s_mov_b64 exec, -1")
    a("L_nol:")
    def wbl2(lab):
        a(f"s_cmp_lg_u32 s55, 7\ns_cbranch_scc1 {lab}\ns_cmp_lt_u32 s50, {cfg.wbj}\ns_cbranch_scc1 {lab}\nbuffer_wbl2 sc1\n{lab}:")
    if 'P' in cfg.wb: wbl2("L_nowb1")
    a(f"""
    v_lshrrev_b32 v10, 3, v0          ; ss
    v_and_b32 v14, 7, v0              ; gi
    v_lshlrev_b32 v13, 4, v10
    v_lshlrev_b32 v10, 9, v10
    v_lshl_add_u32 v10, v14, 4, v10
    s_lshr_b32 s60, s55, 2            ; b'
    s_and_b32 s61, s55, 3             ; dq
    s_lshl_b32 s58, s62, 1
    s_add_u32 s58, s58, s60           ; (4h+rg)*2 + b'
    s_lshl_b32 s57, s58, 8
    s_add_u32 s57, s57, {MA}
    s_add_u32 s57, s57, s98
    s_lshl_b32 s58, s58, 13
    s_lshl_b32 s91, s61, 7
    s_add_u32 s58, s58, s91
    s_add_u32 s58, s58, {OA}          ; o soffset
    s_add_u32 s58, s58, s98
    s_add_u32 s91, s58, 4096
    s_mul_i32 s60, s60, {OBS}
    s_lshl_b32 s61, s61, 6
    s_add_u32 s60, s60, s61
    s_add_u32 s60, s60, {OB}
    """)
    if cfg.trim: a("v_lshrrev_b32 v93, 2, v14\nv_and_b32 v14, 3, v14\nv_lshlrev_b32 v14, 4, v14\nv_lshl_add_u32 v14, v93, 3, v14")
    else: a("v_lshlrev_b32 v14, 3, v14")
    a(f"""
    v_lshl_add_u32 v14, v2, 1, v14
    v_add_u32 v14, s60, v14
    ; projection-stage addresses
    v_and_b32 v93, 1, v1
    v_mul_u32_u24 v90, {OBS}, v93
    v_lshl_add_u32 v90, v2, {4 if cfg.trim else 3}, v90
    v_add_u32 v90, {OB}, v90          ; o operand
    v_mul_u32_u24 v91, {HBS}, v93
    v_lshl_add_u32 v91, v2, 3, v91
    v_add_u32 v91, {HB}, v91          ; h operand
    v_add_u32 v15, {WO_L}, v15
    """)
    if cfg.tr: a("v_bfe_u32 v93, v0, 3, 1\nv_and_b32 v92, 7, v0\nv_lshlrev_b32 v92, 4, v92\nv_lshl_add_u32 v92, v93, 12, v92")
    else: a("v_lshlrev_b32 v92, 15, v93\nv_bfe_u32 v93, v1, 1, 1\nv_lshl_add_u32 v92, v93, 6, v92\nv_lshl_add_u32 v92, v2, 4, v92    ; b*32768 + kind*64 + g*16")
    a(f"""
    v_cmp_ne_u32 s[60:61], 0, v93
    s_lshl_b32 s92, s51, 16
    """)
    if cfg.tr: a("s_lshl_b32 s93, s55, 14")
    else: a("s_and_b32 s93, s55, 2\ns_lshl_b32 s93, s93, 1\ns_and_b32 s59, s55, 1\ns_or_b32 s93, s93, s59\ns_lshl_b32 s93, s93, 12")
    a(f"""
    s_add_u32 s92, s92, s93
    s_lshl_b32 s93, s62, 7
    s_add_u32 s92, s92, s93
    s_add_u32 s92, s92, {cfg.fr}
    """)
    if cfg.preF == 'st':
        a("s_cmp_ge_u32 s55, 4\ns_cbranch_scc1 L_nops")
        exmask16(0xf)
        a(f"v_mov_b32 v96, 0\nv_mov_b32 v97, 0\nv_mov_b32 v98, 0\nv_mov_b32 v99, 0\nbuffer_store_dwordx4 v[96:99], v92, s[32:35], s92 offen {cfg.fst}\ns_mov_b64 exec, -1\nL_nops:")
    a(f"""
    v_mov_b32 v94, 0
    s_mov_b64 exec, 0x20f
    v_mov_b32 v94, {M_DN}             ; thresholds: down tile landed, h written (M_DN == C_H)
    s_mov_b64 exec, -1
    """)
    assert M_DN == C_H
    def pv(m):
        for kk in range(2):
            kb = 2*m + kk
            for t in range(2):
                r = 64 + 4*kk + 2*t
                a(f"ds_read_b64_tr_b16 v[{r}:{r+1}], v9 offset:{kb*8192+t*4096}")
        for kk in range(2):
            kb = 2*m + kk
            a(f"s_waitcnt lgkmcnt({2 if kk == 0 and not cfg.diag else 0})")
            a(f"v_mfma_f32_16x16x32_bf16 v[72:75], v[{64+4*kk}:{67+4*kk}], v[{16+4*kb}:{19+4*kb}], {'0' if kb==0 else 'v[72:75]'}")
    ml = [(80, 13, 0, 0), (84, 13, 0, 128)]
    hl = [(96+4*k if k < 6 else 48+4*(k-6), 7, k//4, (k % 4)*1024) for k in range(8)]
    a(f"""
    s_cmp_lg_u32 s55, 5
    s_cbranch_scc1 L_noh0
    s_lshl_b32 s99, s62, 13
    s_add_u32 s99, s99, {GA}
    s_add_u32 s99, s99, s98
    s_add_u32 s100, s99, 4096
    """)
    hp = [hl[i*8//cfg.hsplit:(i+1)*8//cfg.hsplit] for i in range(cfg.hsplit)]
    issue(hp[0], [99, 100])
    a("L_noh0:")
    def hpiece(i):
        if i < len(hp):
            a(f"s_cmp_lg_u32 s55, 5\ns_cbranch_scc1 L_nohp{i}")
            issue(hp[i], [99, 100])
            a(f"L_nohp{i}:")
    wait(0xf, M_V1); pv(0)
    hpiece(1)
    wait(0xf, M_V2); pv(1)
    hpiece(2)
    issue(ml, [57])
    def side_load():
        if cfg.side == 'auto' and cfg.force is None:
            a("v_mov_b32 v123, 0\nv_mov_b32 v122, 1")
            if cfg.sidewave != 'all': a("s_cmp_ge_u32 s55, 5\ns_cbranch_scc1 L_nosl")
            a("s_mov_b64 exec, 1\nbuffer_load_dword v122, v123, s[24:27], 0 offen sc1\ns_mov_b64 exec, -1")
            if cfg.sidewave != 'all': a("L_nosl:")
    if cfg.sideat == 'V2': side_load()
    wait(0xf, M_V3); pv(2)
    if cfg.sideat == 'V3': side_load()
    stamp(7)
    if 'v' in cfg.abl: a("s_endpgm")
    a("s_barrier")
    stamp(8)
    pv(3)
    if cfg.trim:
        exmask16(0xf)
        a(f"v_mov_b32 v5, {C_PUB}\ns_cmp_lg_u32 s98, 0")
        tag(72, 76, 97)
        a("s_cbranch_scc1 L_ofar\nbuffer_store_dwordx4 v[76:79], v12, s[32:35], s56 offen\nL_ostored:\ns_mov_b64 exec, 1\nds_write_b32 v6, v5\ns_mov_b64 exec, -1")
    else:
        tag(72, 76, 97)
        exmask16(0xf)
        mstore(76, 12, 56)
        cflag(C_PUB)
    tstamp(1)
    a("s_cmp_lg_u32 s55, 5\ns_cbranch_scc1 L_noh")
    a(f"""
    v_mul_u32_u24 v124, {HBS}, v2
    v_lshl_add_u32 v124, v1, 3, v124
    v_add_u32 v124, {HB}, v124
    """)
    poll(hl, [99, 100], pre_issued=1, last=96, masked=True)
    for (r, _, _, _) in hl: a(f"v_and_b32 v{r+3}, v{r+3}, v3")
    b = 96
    for i in range(4):
        a(f"v_add_f32 v{b+i}, v{b+i}, v{b+4+i}\nv_add_f32 v{b+8+i}, v{b+8+i}, v{b+12+i}\nv_add_f32 v{b+16+i}, v{b+16+i}, v{b+20+i}\nv_add_f32 v{48+i}, v{48+i}, v{52+i}")
    for i in range(4): a(f"v_add_f32 v{b+i}, v{b+i}, v{b+8+i}\nv_add_f32 v{b+16+i}, v{b+16+i}, v{48+i}")
    for i in range(4): a(f"v_add_f32 v{b+i}, v{b+i}, v{b+16+i}")
    pack(b, 56, 2)
    a("v_mov_b32 v58, v56\nv_mov_b32 v59, v57\nv_permlane32_swap_b32 v56, v58\nv_permlane32_swap_b32 v57, v59")
    unpack(56, 24, 2)
    unpack(58, 28, 2)
    for i in range(4): a(f"v_mul_f32 v{24+i}, 0xbfb8aa3b, v{24+i}")
    for i in range(4): a(f"v_exp_f32 v{24+i}, v{24+i}")
    for i in range(4): a(f"v_add_f32 v{24+i}, 1.0, v{24+i}")
    for i in range(4): a(f"v_rcp_f32 v{24+i}, v{24+i}")
    pack(24, 56, 2)
    unpack(56, 24, 2)
    for i in range(4): a(f"v_mul_f32 v{24+i}, v{24+i}, v{28+i}")
    pack(24, 56, 2)
    a("s_mov_b64 exec, 0xffffffff\nds_write_b64 v124, v[56:57]\ns_mov_b64 exec, -1")
    cflag(C_H)
    a("L_noh:")
    poll(ml, [57], pre_issued=1)
    a(f"""
    s_mov_b32 s59, {LOG2E}
    v_max_f32 v88, v80, v84
    v_max_f32_dpp v88, v88, v88 row_ror:8 row_mask:0xf bank_mask:0xf
    v_mov_b32 v89, v88
    v_permlane16_swap_b32 v88, v89
    v_max_f32 v88, v88, v89
    v_mov_b32 v89, v88
    v_permlane32_swap_b32 v88, v89
    v_max_f32 v88, v88, v89
    v_sub_f32 v80, v80, v88
    v_sub_f32 v84, v84, v88
    v_mul_f32 v80, s59, v80
    v_mul_f32 v84, s59, v84
    v_exp_f32 v80, v80
    v_exp_f32 v84, v84
    v_mul_f32 v88, v80, v81
    v_fmac_f32 v88, v84, v85
    v_add_f32_dpp v88, v88, v88 row_ror:8 row_mask:0xf bank_mask:0xf
    v_mov_b32 v89, v88
    v_permlane16_swap_b32 v88, v89
    v_add_f32 v88, v88, v89
    v_mov_b32 v89, v88
    v_permlane32_swap_b32 v88, v89
    v_add_f32 v88, v88, v89
    v_rcp_f32 v88, v88
    v_mul_f32 v80, v80, v88
    v_mul_f32 v84, v84, v88
    """)
    if cfg.side == 'auto' and cfg.force is None:
        a(f"""
        s_mov_b32 s59, 0
L_side:
        v_readfirstlane_b32 s29, v122
        s_add_u32 s59, s59, 1
        s_cmp_lg_u32 s29, 0
        s_cbranch_scc1 L_sideok
        s_cmp_ge_u32 s59, {cfg.NMAX}
        s_cbranch_scc1 L_sideok
        buffer_load_dword v122, v123, s[24:27], 0 offen sc1
        s_waitcnt vmcnt(0)
        s_branch L_side
L_sideok:
        s_and_b32 s29, s29, 2
        s_lshl_b32 s29, s29, 12
        """)
    else: a(f"s_mov_b32 s29, {(cfg.side if cfg.force is None else cfg.force)*8192}")
    a("s_add_u32 s92, s92, s29\ns_add_u32 s28, s28, s29")
    tstamp(2)
    wait(0xff0, C_PUB)
    tstamp(3)
    oA = [(16, 10, 0, 0), (20, 10, 1, 0)]
    def reduce_scatter(r):
        a(f"""
        v_permlane32_swap_b32 v{r}, v{r+2}
        v_permlane32_swap_b32 v{r+1}, v{r+3}
        v_add_f32 v{r}, v{r}, v{r+2}
        v_add_f32 v{r+1}, v{r+1}, v{r+3}
        v_permlane16_swap_b32 v{r}, v{r+1}
        v_add_f32 v{r}, v{r}, v{r+1}
        v_add_f32_dpp v{r}, v{r}, v{r} row_ror:8 row_mask:0xf bank_mask:0xf
        """)
    if not cfg.tail2:
        poll([(16, 10, 0, 0), (20, 10, 1, 0)], [58, 91], t=95)
        stamp(9)
        a("ds_read_b32 v5, v4")
        for i in range(4): a(f"v_mul_f32 v{16+i}, v{16+i}, v80")
        for i in range(4): a(f"v_fmac_f32 v{16+i}, v{20+i}, v84")
        reduce_scatter(16)
        a("v_cvt_pk_bf16_f32 v16, v16, v16\nds_write_b16 v14, v16")
        a("s_cmp_ge_u32 s55, 4\ns_cbranch_scc1 L_final")
        a(f"s_waitcnt lgkmcnt({0 if cfg.diag else 1})\nv_cmp_gt_u32 vcc, v94, v5\ns_cbranch_vccz L_tiles")
        spin(5, 4, None, "v94")
        a("L_tiles:")
        tstamp(4)
        for k in range(2): a(f"ds_read2_b64 v[{56+4*k}:{59+4*k}], v91 offset0:{8*k} offset1:{8*k+4}")
        for k in range(2):
            for t in range(2): a(f"ds_read_b64_tr_b16 v[{32+4*k+2*t}:{33+4*k+2*t}], v15 offset:{16384+k*4096+t*2048}")
        for k in range(4):
            for t in range(2): a(f"ds_read_b64_tr_b16 v[{96+4*k+2*t}:{97+4*k+2*t}], v15 offset:{k*4096+t*2048}")
        a(f"s_waitcnt lgkmcnt({0 if cfg.diag else 14})\ns_barrier")
        stamp(10)
        a("s_waitcnt lgkmcnt(11)")
        for k in range(4): a(f"ds_read2_b64 v[{40+4*k}:{43+4*k}], v90 offset0:{8*k} offset1:{8*k+4}")
        a(f"s_waitcnt lgkmcnt({0 if cfg.diag else 12})")
        for k in range(2):
            a(f"v_mfma_f32_16x16x32_bf16 v[68:71], v[{32+4*k}:{35+4*k}], v[{56+4*k}:{59+4*k}], {'0' if k==0 else 'v[68:71]'}")
        for k in range(4):
            a(f"s_waitcnt lgkmcnt({0 if cfg.diag else 3-k})")
            a(f"v_mfma_f32_16x16x32_bf16 v[64:67], v[{96+4*k}:{99+4*k}], v[{40+4*k}:{43+4*k}], {'0' if k==0 else 'v[64:67]'}")
        exmask16(0xf)
        for i in range(4): a(f"v_cndmask_b32 v{64+i}, v{64+i}, v{68+i}, s[60:61]")
        tag(64, 68, 48)
        a(f"buffer_store_dwordx4 v[68:71], v92, s[32:35], s92 offen {cfg.fst}")
    else:
        issue(oA, [58, 91])
        a("s_cmp_ge_u32 s55, 4\ns_cbranch_scc1 L_nopre")
        for i in range(40, 64): a(f"v_mov_b32 v{i}, 0")
        if not cfg.prog and not cfg.dnearly: wait(0xf, M_END)
        spin(5, 4, None, "v94")
        exmask16(0xc)
        for k in range(2): a(f"ds_read2_b64 v[{56+4*k}:{59+4*k}], v91 offset0:{8*k} offset1:{8*k+4}")
        a("s_mov_b64 exec, -1")
        for k in range(2):
            for t in range(2): a(f"ds_read_b64_tr_b16 v[{32+4*k+2*t}:{33+4*k+2*t}], v15 offset:{16384+k*4096+t*2048}")
        if cfg.dnearly:
            wait(0xf, M_END)
            for kk in range(0 if cfg.trim2 else 2):
                pm(64, 32+4*kk, 56+4*kk, '0' if kk==0 else 'v[64:67]')
        for k in range(4):
            if cfg.prog:
                wait(0xf, M_W1 + k)
                if k == 0:
                    for kk in range(2):
                        pm(64, 32+4*kk, 56+4*kk, '0' if kk==0 else 'v[64:67]')
            if k == 3: tstamp(4)
            for t in range(2): a(f"ds_read_b64_tr_b16 v[{96+4*k+2*t}:{97+4*k+2*t}], v15 offset:{k*4096+t*2048}")
        if cfg.dnearly and cfg.trim2:
            for kk in range(2):
                pm(64, 32+4*kk, 56+4*kk, '0' if kk==0 else 'v[64:67]')
        a("L_nopre:")
        if cfg.fuse:
            a("s_mov_b32 s59, 0\ns_waitcnt vmcnt(0)\nL_ochk:")
            for k, r in enumerate((16, 20)):
                for i in range(4): a(f"v_xor_b32 v{r+i}, s{45+i if i < 3 else 97}, v{r+i}")
            a("""
            v_pk_mul_f32 v[24:25], v[16:17], v[80:81] op_sel_hi:[1,0]
            v_pk_mul_f32 v[26:27], v[18:19], v[80:81] op_sel_hi:[1,0]
            v_pk_fma_f32 v[24:25], v[20:21], v[84:85], v[24:25] op_sel_hi:[1,0,1]
            v_pk_fma_f32 v[26:27], v[22:23], v[84:85], v[26:27] op_sel_hi:[1,0,1]
            v_or3_b32 v5, v16, v17, v18
            v_or3_b32 v5, v5, v19, v20
            v_permlane32_swap_b32 v24, v26
            v_permlane32_swap_b32 v25, v27
            v_add_f32 v24, v24, v26
            v_add_f32 v25, v25, v27
            v_or3_b32 v5, v5, v21, v22
            v_or_b32 v5, v5, v23
            v_permlane16_swap_b32 v24, v25
            v_add_f32 v24, v24, v25
            v_and_b32 v5, 0xff, v5
            v_cmp_ne_u32 vcc, 0, v5
            v_add_f32_dpp v24, v24, v24 row_ror:8 row_mask:0xf bank_mask:0xf
            v_cvt_pk_bf16_f32 v24, v24, v24
            s_cbranch_vccnz L_oretry
L_ogood:
            ds_write_b16 v14, v24
            """)
            stamp(9)
        else:
            if not cfg.omask: poll(oA, [58, 91], pre_issued=0)
            else:
                a("s_waitcnt vmcnt(0)")
                check([16, 20])
                a("s_cbranch_vccz L_ook\ns_mov_b32 s59, 0")
                for k, r in enumerate((16, 20)):
                    a(f"v_or3_b32 v5, v{r}, v{r+1}, v{r+2}\nv_or_b32 v5, v5, v{r+3}\nv_and_b32 v5, 0xff, v5\nv_cmp_ne_u32 s[{4+2*k}:{5+2*k}], 0, v5")
                a("L_om:")
                for k, (r, so) in enumerate(((16, 58), (20, 91))):
                    a(f"s_mov_b64 exec, s[{4+2*k}:{5+2*k}]\ns_cbranch_execz L_oms{k}\nbuffer_load_dwordx4 v[{r}:{r+3}], v10, s[32:35], s{so} offen sc1\nL_oms{k}:")
                a("s_add_u32 s59, s59, 1\ns_waitcnt vmcnt(0)")
                for k, r in enumerate((16, 20)):
                    a(f"s_mov_b64 exec, s[{4+2*k}:{5+2*k}]")
                    check([r])
                    a(f"s_mov_b64 s[{4+2*k}:{5+2*k}], vcc")
                a(f"s_or_b64 s[8:9], s[4:5], s[6:7]\ns_cbranch_scc0 L_omd\ns_cmp_lt_u32 s59, {cfg.NMAX}\ns_cbranch_scc1 L_om\nL_omd:\ns_mov_b64 exec, -1\nL_ook:")
            stamp(9)
            for i in range(0, 4, 2): a(f"v_pk_mul_f32 v[{16+i}:{17+i}], v[{16+i}:{17+i}], v[80:81] op_sel_hi:[1,0]")
            for i in range(0, 4, 2): a(f"v_pk_fma_f32 v[{16+i}:{17+i}], v[{20+i}:{21+i}], v[84:85], v[{16+i}:{17+i}] op_sel_hi:[1,0,1]")
            reduce_scatter(16)
            a("v_cvt_pk_bf16_f32 v16, v16, v16\nds_write_b16 v14, v16")
        a("s_cmp_ge_u32 s55, 4\ns_cbranch_scc1 L_final")
        if not cfg.prog and not cfg.dnearly:
            a("s_waitcnt lgkmcnt(9)")
            for k in range(2):
                a(f"v_mfma_f32_16x16x32_bf16 v[64:67], v[{32+4*k}:{35+4*k}], v[{56+4*k}:{59+4*k}], {'0' if k==0 else 'v[64:67]'}")
        exmask16(0x3)
        a("s_waitcnt lgkmcnt(0)\ns_barrier")
        stamp(10)
        for k in range(4):
            if cfg.trim: a(f"ds_read_b128 v[{40+4*k}:{43+4*k}], v90 offset:{64*k}")
            else: a(f"ds_read2_b64 v[{40+4*k}:{43+4*k}], v90 offset0:{8*k} offset1:{8*k+4}")
        a("s_mov_b64 exec, -1")
        for k in range(4):
            a(f"s_waitcnt lgkmcnt({0 if cfg.diag else 3-k})")
            pm(64, 96+4*k, 40+4*k, 'v[64:67]')
        if cfg.tr: a("s_mov_b64 exec, 0xffff")
        else: exmask16(0xf)
        tag(64, 68, 48)
        a(f"buffer_store_dwordx4 v[68:71], v92, s[32:35], s92 offen {cfg.fst}")
        if cfg.fwait: a("v_mov_b32 v5, 9\ns_mov_b64 exec, 1\nds_write_b32 v6, v5")
    stamp(11)
    dump_stamps(12)
    a("s_endpgm")
    if cfg.trim: a("L_ofar:\nbuffer_store_dwordx4 v[76:79], v12, s[32:35], s56 offen sc1\ns_branch L_ostored")
    if cfg.fuse:
        a(f"L_oretry:\ns_add_u32 s59, s59, 1\ns_cmp_ge_u32 s59, {cfg.NMAX}\ns_cbranch_scc1 L_ogood")
        issue(oA, [58, 91])
        a("s_waitcnt vmcnt(0)\ns_branch L_ochk")
    a("L_final:\ns_waitcnt lgkmcnt(0)\ns_barrier")
    stamp(10)
    if 'O' in cfg.wb: wbl2("L_nowb2")
    a("s_cmp_lg_u32 s55, 4\ns_cbranch_scc1 L_fin_exit\ns_cmp_lg_u32 s22, 0\ns_cbranch_scc1 L_fin_exit")
    a("s_mov_b32 s57, s28\ns_mov_b32 s59, 0")
    if cfg.fwait: wait(0xf0, 9)
    def fsum(b, d):
        if cfg.pkadd:
            for i in (0, 2): a(f"v_pk_add_f32 v[{b+i}:{b+i+1}], v[{b+i}:{b+i+1}], v[{b+4+i}:{b+5+i}]\nv_pk_add_f32 v[{b+8+i}:{b+9+i}], v[{b+8+i}:{b+9+i}], v[{b+12+i}:{b+13+i}]")
            for i in (0, 2): a(f"v_pk_add_f32 v[{d+i}:{d+i+1}], v[{b+i}:{b+i+1}], v[{b+8+i}:{b+9+i}]")
        else:
            for i in range(4): a(f"v_add_f32 v{b+i}, v{b+i}, v{b+4+i}\nv_add_f32 v{b+8+i}, v{b+8+i}, v{b+12+i}")
            for i in range(4): a(f"v_add_f32 v{d+i}, v{b+i}, v{b+8+i}")
    def fissue(base):
        for k in range(4): a(f"buffer_load_dwordx4 v[{base+4*k}:{base+3+4*k}], v7, s[32:35], s57 offen offset:{k*1024} {cfg.fld}")
    if cfg.fmode == 'plain':
        a("L_fp:")
        fissue(16)
        a("s_add_u32 s59, s59, 1\ns_waitcnt vmcnt(0)")
        if cfg.diag == 2:
            a("s_cmp_lg_u32 s59, 1\ns_cbranch_scc1 L_nf1")
            tstamp(5)
            a("L_nf1:")
        check([16, 20, 24, 28], 48)
        a(f"s_cbranch_vccz L_fok\ns_cmp_lt_u32 s59, {cfg.NMAX}\ns_cbranch_scc1 L_fp\nL_fok:")
        if cfg.diag == 2: a("s_mov_b32 s76, s59")
    elif cfg.fmode == 'pipe' and cfg.trim:
        def fcheck(b):
            for k in range(4):
                for i in range(4): a(f"v_xor_b32 v{b+4*k+i}, s{45+i}, v{b+4*k+i}")
            for i in (0, 2): a(f"v_pk_add_f32 v[{52+i}:{53+i}], v[{b+i}:{b+i+1}], v[{b+4+i}:{b+5+i}]\nv_pk_add_f32 v[{56+i}:{57+i}], v[{b+8+i}:{b+9+i}], v[{b+12+i}:{b+13+i}]")
            a(f"""
            v_or3_b32 v5, v{b}, v{b+1}, v{b+2}
            v_pk_add_f32 v[48:49], v[52:53], v[56:57]
            v_pk_add_f32 v[50:51], v[54:55], v[58:59]
            v_or3_b32 v5, v5, v{b+3}, v{b+4}
            v_or3_b32 v5, v5, v{b+5}, v{b+6}
            v_permlane32_swap_b32 v48, v{49 if cfg.tr else 50}
            v_permlane32_swap_b32 v{50 if cfg.tr else 49}, v51
            v_add_f32 v48, v48, v{49 if cfg.tr else 50}
            v_add_f32 v49, v{50 if cfg.tr else 49}, v51
            v_or3_b32 v5, v5, v{b+7}, v{b+8}
            v_or3_b32 v5, v5, v{b+9}, v{b+10}
            v_permlane16_swap_b32 v48, v49
            v_add_f32 v48, v48, v49
            v_or3_b32 v5, v5, v{b+11}, v{b+12}
            v_or3_b32 v5, v5, v{b+13}, v{b+14}
            v_add_f32_dpp v48, v48, v48 row_ror:8 row_mask:0xf bank_mask:0xf
            v_or_b32 v5, v5, v{b+15}
            v_and_b32 v5, 0xff, v5
            v_cmp_ne_u32 vcc, 0, v5
            {"v_mov_b32 v49, v48" if cfg.tr else "v_mov_b32_dpp v49, v48 row_ror:4 row_mask:0xf bank_mask:0xf"}
            """)
        a("v_lshlrev_b32 v121, 16, v121")
        fissue(16)
        a("L_fp:")
        fissue(32)
        a("s_add_u32 s59, s59, 1\ns_waitcnt vmcnt(4)")
        fcheck(16)
        a("s_cbranch_vccz L_fok")
        fissue(16)
        a("s_waitcnt vmcnt(4)")
        fcheck(32)
        a(f"s_cbranch_vccz L_fok\ns_cmp_lt_u32 s59, {cfg.NMAX}\ns_cbranch_scc1 L_fp\nL_fok:")
    elif cfg.fmode == 'pipe':
        fissue(16)
        a("L_fp:")
        fissue(32)
        a("s_add_u32 s59, s59, 1\ns_waitcnt vmcnt(4)")
        check([16, 20, 24, 28], 48)
        a("s_cbranch_vccz L_fok")
        fissue(16)
        a("s_waitcnt vmcnt(4)")
        check([32, 36, 40, 44], 48)
        a(f"s_cbranch_vccz L_fok2\ns_cmp_lt_u32 s59, {cfg.NMAX}\ns_cbranch_scc1 L_fp\nL_fok2:")
        stamp(11)
        fsum(32, 48)
        a("s_branch L_fmath\nL_fok:")
    elif cfg.fmode == 'mask':
        for k in range(4): a(f"s_mov_b64 s[{4+2*k}:{5+2*k}], -1")
        a("L_fp:")
        for k in range(4):
            a(f"s_mov_b64 exec, s[{4+2*k}:{5+2*k}]\ns_cbranch_execz L_fs{k}\nbuffer_load_dwordx4 v[{16+4*k}:{19+4*k}], v7, s[32:35], s57 offen offset:{k*1024} {cfg.fld}\nL_fs{k}:")
        a("s_add_u32 s59, s59, 1\ns_waitcnt vmcnt(0)")
        for k in range(4):
            a(f"s_mov_b64 exec, s[{4+2*k}:{5+2*k}]")
            check([16+4*k], 48)
            a(f"s_mov_b64 s[{4+2*k}:{5+2*k}], vcc")
        a(f"s_or_b64 s[12:13], s[4:5], s[6:7]\ns_or_b64 s[14:15], s[8:9], s[10:11]\ns_or_b64 s[12:13], s[12:13], s[14:15]\ns_cbranch_scc0 L_fok\ns_cmp_lt_u32 s59, {cfg.NMAX}\ns_cbranch_scc1 L_fp\nL_fok:\ns_mov_b64 exec, -1")
    stamp(11)
    if not cfg.trim:
        fsum(16, 48)
        a("L_fmath:")
        reduce_scatter(48)
        a("v_mov_b32_dpp v49, v48 row_ror:4 row_mask:0xf bank_mask:0xf\nv_lshlrev_b32 v121, 16, v121")
    if cfg.trim2:
        if cfg.tr: a("s_nop 0\nv_permlane16_swap_b32 v48, v49")
        a("v_cvt_pk_bf16_f32 v49, 0, v49\nv_cvt_pk_bf16_f32 v48, 0, v48")
        outmask()
    else: a("v_cvt_pk_bf16_f32 v48, v48, v49\nv_and_b32 v49, 0xffff0000, v48\nv_lshlrev_b32 v48, 16, v48")
    a(f"""
    v_mul_f32 v50, 0xbfb8aa3b, v49
    v_exp_f32 v50, v50
    v_add_f32 v50, 1.0, v50
    v_rcp_f32 v50, v50
    v_mul_f32 v49, v49, v50
    """)
    rbf(49)
    a("v_mul_f32 v48, v48, v49")
    rbf(48)
    a("v_add_f32 v48, v121, v48\nv_cvt_pk_bf16_f32 v48, v48, v48")
    if not cfg.trim2: exmask16(0xf)
    a(f"buffer_store_short v48, v120, s[40:43], s31 offen {cfg.outpol}")
    a("s_cmp_lg_u32 s30, 0\ns_cbranch_scc1 L_fin_exit\nv_mov_b32 v52, s44\nv_mov_b32 v53, 0\ns_mov_b64 exec, 1\nbuffer_store_dword v52, v53, s[32:35], 0 offen " + cfg.epol)
    if cfg.amp:
        a("s_memrealtime s[88:89]\ns_waitcnt lgkmcnt(0)")
        i, k = cfg.amp
        if i is None: a(f"s_add_u32 s90, s64, {k}")
        else: a(f"s_sub_u32 s90, s{64+2*i}, s64\ns_mul_i32 s90, s90, {k}\ns_add_u32 s90, s90, s64")
        a("L_amp:\ns_memrealtime s[92:93]\ns_waitcnt lgkmcnt(0)\ns_sub_u32 s91, s92, s90\ns_cmp_lt_i32 s91, 0\ns_cbranch_scc1 L_amp")
    a("L_fin_exit:")
    stamp(12)
    dump_stamps(13)
    a("L_exit:\ns_endpgm\nL_codeend:")
    body = a.text()
    head = f"""; Fused decode step: layernorm -> (q projection, sliding-window GQA attention, o projection) gated by a GLU branch.
; One launch, 256 workgroups of 12 waves: waves 0-3 stream weights and K/V into LDS, waves 4-11 compute.
; @launch grid=(256,1,1) block=(768,1,1) lds=163840
.amdgcn_target "amdgcn-amd-amdhsa--gfx950"
.text
.globl {NAME}
.p2align 8
.type {NAME},@function
{NAME}:
"""
    tail = f"""
.section .rodata,"a"
.p2align 6
.amdhsa_kernel {NAME}
  .amdhsa_next_free_vgpr 128
  .amdhsa_next_free_sgpr 102
  .amdhsa_accum_offset 128
  .amdhsa_group_segment_fixed_size 0
  .amdhsa_kernarg_size 96
  .amdhsa_user_sgpr_count 2
  .amdhsa_user_sgpr_kernarg_segment_ptr 1
  .amdhsa_system_sgpr_workgroup_id_x 1
  .amdhsa_float_denorm_mode_32 3
.end_amdhsa_kernel
"""
    return head + body + tail

if __name__ == "__main__":
    kw = {}
    out = "recurrent_scan__sliding_block_cached__glu_gated_glu__decode.s"
    for arg in sys.argv[1:]:
        if arg.startswith("out="): out = arg[4:]; continue
        k, v = arg.split("=")
        try: v = eval(v)
        except Exception: pass
        kw[k] = v
    open(out, "w").write(gen(Cfg(**kw)))
    print("wrote", out)
```

```python
import sys
from asmlib import Asm

NAME = "recurrent_scan__sliding_block_cached__glu_gated_glu__decode_kernel"

K_L, V_L = 0, 65536
WQ_L, G_L, U_L = 98304, 114688, 122880
WO_L, DN_L = 131072, 147456
SM = 155648
FLAGS, MX, HB, OB, QB, XN, PB = SM, SM+64, SM+256, SM+640, SM+1280, SM+2560, SM+4864
HBS, OBS, QBS, XNS = 192, 320, 320, 1088
QA, GA, MA, OA, MIR, FR, DIAG = 0x10000, 0x30000, 0x70000, 0x80000, 0x100000, 0x200000, 0x400000
WS_BYTES = 0x8000000
PROBE = 0x80000
LOG2E = "0x3fb8aa3b"
OOB = 0x40000000
M_X, M_WQ, M_GU, M_K, M_V1, M_V2, M_V3, M_DN, M_W1, M_W2, M_W3, M_END = 1, 2, 3, 4, 5, 6, 7, 8, 9, 10, 11, 12
C_XN, C_TILE, C_Q, C_MAX, C_P, C_PUB, C_H = 1, 2, 3, 4, 5, 6, 8

class Cfg:
    D = 6
    D0 = None
    diag = False
    N0 = 64
    NMAX = 400000
    perm = "s"
    pf = 'c'
    safe = False
    pol = 'nt'
    prio = 2
    kvmap = 'contig'
    fmode = 'pipe'
    near_pol = ''
    cgshift = 0
    probe = None
    side = 'auto'
    adapt = None
    lprio = 3
    earlywar = True
    abl = ''
    prog = False
    dnpos = 4
    wopos = 0
    dnearly = True
    omask = False
    outpol = ''
    race = 0
    rstep = 256
    rank = 0
    hsplit = 1
    fuse = True
    trim = True
    trim2 = True
    epol = 'sc1'
    bp = True
    hold = (44, 8)
    apol = 'sc1'
    rpol = 'sc1'
    gpol = 'sc1'
    mlat = 'V3'
    atrig = None
    afirst = False
    hearly = True
    tr = True
    cmap = True
    mir = 0x200000
    fwait = False
    tlb = ''
    pkadd = True
    rounds = 1
    fin = 0
    force = None
    sidewave = 'five'
    sideat = 'V2'
    leader = None
    qtrig = 3
    fmap = None
    tail2 = True
    Dk = 5
    Dv = None
    Dt = 5
    kv = [x << 10 for x in [8,16,1,512,4,2,64,32,128,258,0,512,16,0]]
    preout = 'st'
    pre1 = False
    pretouch = False
    fst = 'sc1'
    fld = 'sc1'
    wb = ''
    wbj = 31
    preF = 'split'
    preFpol = 'sc1'
    fr = 0x100000
    streamonly = False
    amp = None
    def __init__(self, **kw):
        for k, v in kw.items():
            assert hasattr(self, k), k
            setattr(self, k, v)

def gen(cfg):
    global MIR
    MIR = cfg.mir
    assert not cfg.bp or (cfg.hold and cfg.trim)
    a = Asm()
    if cfg.leader is None: cfg.leader = cfg.fin ^ 0x80
    inv = ((cfg.leader ^ cfg.fin) & 4) != 0
    incompute = [False]
    def stamp(i):
        if cfg.diag == 2 and incompute[0] and 1 <= i <= 6: return
        if cfg.diag: a(f"s_memrealtime s[{64+2*i}:{65+2*i}]")
    def tstamp(i):
        if cfg.diag == 2: a(f"s_memrealtime s[{64+2*i}:{65+2*i}]")
    def dump_stamps(n):
        if not cfg.diag or cfg.amp: return
        a("s_waitcnt lgkmcnt(0)")
        a("s_mov_b64 exec, -1")
        a("v_mov_b32 v125, 0")
        for i in range(n):
            a(f"v_writelane_b32 v125, s{64+2*i}, {i}")
        a(f"s_mul_i32 s62, s2, {12*64}\ns_lshl_b32 s63, s3, 6\ns_add_u32 s62, s62, s63\ns_add_u32 s62, s62, {DIAG}")
        a("v_lshlrev_b32 v124, 2, v0\ns_mov_b64 exec, 0xffff")
        a("buffer_store_dword v125, v124, s[32:35], s62 offen")
    def srd_tail(r, n):
        a(f"s_mov_b32 s{r+2}, {n}\ns_mov_b32 s{r+3}, 0x20000")
    def exmask16(m):
        v = hex(m | (m << 16)); a(f"s_mov_b32 exec_lo, {v}\ns_mov_b32 exec_hi, {v}")
    lab = [0]
    def L(p):
        lab[0] += 1
        return f"L{p}{lab[0]}"
    def spin(vdst, vaddr, mask, val, body=None):
        w = L("w")
        if cfg.safe: a("s_mov_b32 s94, 0")
        a(f"{w}:\nds_read_b32 v{vdst}, v{vaddr}")
        if cfg.safe: a(f"s_add_u32 s94, s94, 1\ns_bitcmp1_b32 s94, 20\ns_cbranch_scc1 {w}x")
        a("s_waitcnt lgkmcnt(0)")
        if body: body()
        a(f"v_cmp_gt_u32 vcc, {val}, v{vdst}")
        if mask is not None: a(f"s_and_b64 vcc, vcc, {hex(mask)}")
        if 's' in cfg.abl and incompute[0]: a(f"s_cbranch_vccz {w}y\ns_sleep 1\ns_branch {w}\n{w}y:")
        else: a(f"s_cbranch_vccnz {w}")
        if cfg.safe: a(f"{w}x:\ns_waitcnt lgkmcnt(0)")
    NP = cfg.near_pol
    def code_prefetch(vt, v16, dst):
        a(f"""
        s_getpc_b64 s[60:61]
L_pc:
        s_sub_u32 s60, s60, L_pc-{NAME}
        s_subb_u32 s61, s61, 0
        s_lshl_b32 s58, s51, 10
        v_add_u32 v{vt}, s58, v{v16}
        v_cmp_gt_u32 vcc, L_codeend-{NAME}, v{vt}
        s_and_saveexec_b64 s[58:59], vcc
        s_cbranch_execz L_nopf2
        global_load_dwordx4 v[{dst}:{dst+3}], v{vt}, s[60:61]
L_nopf2:
        s_mov_b64 exec, -1
        v_add_u32 v{vt}, 8192, v{vt}
        v_cmp_gt_u32 vcc, L_codeend-{NAME}, v{vt}
        s_and_saveexec_b64 s[58:59], vcc
        s_cbranch_execz L_nopf3
        global_load_dwordx4 v[{dst+4}:{dst+7}], v{vt}, s[60:61]
L_nopf3:
        s_mov_b64 exec, -1
        """)

    a(f"""
    s_load_dwordx2 s[36:37], s[0:1], 0
    s_load_dwordx2 s[12:13], s[0:1], 24
    s_cmpk_ge_u32 s2, 256
    s_cbranch_scc1 L_exit
    v_lshrrev_b32 v1, 6, v0
    v_and_b32 v0, 63, v0
    s_lshr_b32 s50, s2, 3         ; j
    v_readfirstlane_b32 s3, v1    ; wave
    s_and_b32 s49, s2, 7          ; h
    s_and_b32 s51, s50, 7         ; cg
    s_lshr_b32 s52, s50, 3        ; rg
    s_cmp_ge_u32 s3, 4
    s_cbranch_scc1 L_compute
    """)
    stamp(0)
    if cfg.adapt: a("s_memrealtime s[100:101]")
    a(f"""
    s_movk_i32 s38, 2048
    {"s_setprio %d" % cfg.lprio if cfg.lprio else ""}
    s_lshl_b32 s39, 1, 17
    v_lshlrev_b32 v9, 4, v0
    s_and_b32 s56, s3, 1
    s_lshl_b32 s57, s56, 10
    s_mulk_i32 s56, {XNS}
    s_add_u32 m0, s56, {XN}
    s_lshl_b32 s14, 1, 22
    s_mov_b32 s15, s39
    v_and_b32 v2, 7, v0
    v_lshlrev_b32 v2, 4, v2
    s_waitcnt lgkmcnt(0)
    buffer_load_dwordx4 v9, s[36:39], s57 offen lds
    v_lshrrev_b32 v3, 4, v0
    v_lshlrev_b32 v3, 5, v3
    v_xor_b32 v2, v2, v3
    v_lshrrev_b32 v1, 3, v0            ; r = l>>3
    v_lshl_add_u32 v10, v1, 13, v2     ; wq: row stride 8192
    s_lshl4_add_u32 s55, s52, s3
    s_lshl_b32 s55, s55, 6
    s_add_u32 s55, s55, s49
    s_lshl3_add_u32 s55, s55, s51
    s_lshl_b32 s55, s55, 7
    s_lshl_b32 s61, s3, 10             ; lw*1024
    s_add_u32 m0, s61, {WQ_L}
    s_lshl_b32 s47, 1, 18
    """)
    stamp(6)
    n = [1]
    X = 1
    D = cfg.D
    D0 = cfg.D0 or D
    landed = [0]
    Dover = [None]
    miles = {}
    def flag(val):
        a(f"v_mov_b32 v21, {val}\ns_mov_b64 exec, 1\nds_write_b32 v20, v21\ns_mov_b64 exec, -1")
    def pre_issue():
        i = n[0]
        if i >= D0:
            Dn = D
            if i >= X + 8 and cfg.Dk: Dn = cfg.Dk
            if i >= X + 24 and cfg.Dv: Dn = cfg.Dv
            if i >= X + last['v3'] and cfg.Dt: Dn = cfg.Dt
            if cfg.hold and i >= X + cfg.hold[0]: Dn = cfg.hold[1]
            if Dover[0]: Dn = Dover[0]
            Dn = int(Dn) + (1 if (Dn != int(Dn) and i & 1) else 0)
            want = i - Dn + 1
            if want > landed[0]:
                a(f"s_waitcnt vmcnt({i - want})")
                landed[0] = want
    def post_issue():
        n[0] += 1
        for k in sorted(miles):
            if k <= landed[0]: miles.pop(k)()
    miles[1] = lambda: (flag(M_X), stamp(7))
    miles[X+4] = lambda: flag(M_WQ)
    miles[X+8] = lambda: flag(M_GU)
    miles[X+24] = lambda: (flag(M_K), stamp(5))
    miles[X+28] = lambda: flag(M_V1)
    miles[X+32] = lambda: flag(M_V2)
    miles[X+36] = lambda: flag(M_V3)
    miles[X+40] = lambda: (stamp(3), a("s_barrier"))
    if cfg.dnearly: miles[X+42] = lambda: flag(M_DN)
    if cfg.atrig: miles[X+cfg.atrig] = lambda: flag(M_W2)
    if cfg.prog:
        miles[X+42] = lambda: flag(M_DN)
        miles[X+43] = lambda: flag(M_W1)
        miles[X+44] = lambda: flag(M_W2)
        miles[X+45] = lambda: flag(M_W3)
    def setup_rest():
        a("""
        s_load_dwordx2 s[20:21], s[0:1], 48
        s_load_dwordx2 s[24:25], s[0:1], 56
        s_load_dwordx2 s[4:5], s[0:1], 8
        s_load_dwordx2 s[8:9], s[0:1], 16
        s_load_dwordx2 s[28:29], s[0:1], 64
        s_load_dwordx2 s[16:17], s[0:1], 32
        """)
        if cfg.pf == 'l':
            a("s_cmp_lg_u32 s3, 3\ns_cbranch_scc1 L_nopf")
            code_prefetch(31, 9, 32)
            a("L_nopf:")
        a(f"""
        s_cmp_lg_u32 s3, 0
        s_cbranch_scc1 L_noinit
        v_lshlrev_b32 v4, 2, v0
        v_add_u32 v4, {FLAGS}, v4
        v_mov_b32 v5, 0
        s_mov_b64 exec, 0xffff
        ds_write_b32 v4, v5           ; progress flags start at zero
        s_mov_b64 exec, -1
L_noinit:
        v_mul_u32_u24 v5, 3584, v1
        v_add_u32 v11, v5, v2              ; gate/up: row stride 3584
        v_lshl_add_u32 v12, v1, 10, v2     ; wo/down: row stride 1024
        s_mov_b32 s22, {512*1792*2}
        s_mov_b32 s23, s39
        s_mov_b32 s26, s22
        s_mov_b32 s27, s39
        s_mov_b32 s30, s22
        s_mov_b32 s31, s39
        s_lshl_b32 s6, 1, 27
        s_mov_b32 s7, s39
        s_mov_b32 s10, s6
        s_mov_b32 s11, s39
        s_mov_b32 s18, s14
        s_mov_b32 s19, s39
        s_lshr_b32 s53, s50, 4        ; b
        s_and_b32 s54, s50, 15        ; split
        s_add_u32 s57, s51, {cfg.cgshift}
        s_and_b32 s57, s57, 7
        s_lshl_b32 s57, s57, 7
        s_lshl3_add_u32 s58, s52, s49      ; u
        s_cmp_ge_u32 s58, 28
        s_cselect_b32 s59, {OOB}, 0
        s_lshl3_add_u32 s56, s51, s3
        s_mulk_i32 s56, {8*3584}
        s_lshl_b32 s60, s58, 7
        s_add_u32 s56, s56, s60
        s_add_u32 s56, s56, s59
        v_lshrrev_b32 v1, 4, v0
        v_and_b32 v2, 15, v0
        v_xor_b32 v3, v2, v1
        v_lshlrev_b32 v3, 4, v3
        v_lshl_add_u32 v13, v1, 8, v3
        v_xor_b32 v14, 64, v13
        v_xor_b32 v15, 128, v13
        v_xor_b32 v16, 192, v13
        v_lshrrev_b32 v3, 1, v2
        v_xor_b32 v3, v3, v1
        v_lshlrev_b32 v3, 5, v3
        v_and_b32 v4, 1, v0
        v_lshl_add_u32 v3, v4, 4, v3
        v_lshl_add_u32 v17, v1, 8, v3
        v_xor_b32 v18, 128, v17
        s_lshl_b32 s62, s53, 3
        s_add_u32 s62, s62, s49
        s_lshl_b32 s62, s62, 23            ; (b*8+h) * 8MB
        s_add_u32 s62, s62, {28672*256}
        """)
        if cfg.kv == 'table':
            a(f"""
            s_load_dwordx2 s[98:99], s[0:1], 88
            s_lshl2_add_u32 s92, s2, s3
            s_lshl_b32 s92, s92, 2
            s_add_u32 s92, s92, {0x500100}
            s_waitcnt lgkmcnt(0)
            s_load_dword s93, s[98:99], s92
            s_add_u32 s98, s98, {0x500000}
            s_addc_u32 s99, s99, 0
            s_load_dwordx8 s[84:91], s[98:99], 0
            s_waitcnt lgkmcnt(0)
            s_add_u32 s62, s62, s93
            """)
        elif cfg.kv:
            a("s_mov_b32 s63, 0")
            bits = [(3, 0), (3, 1), (54, 0), (54, 1), (54, 2), (54, 3), (49, 0), (49, 1), (49, 2), (53, 0)]
            for (r, b), m in zip(bits, cfg.kv[4:]):
                if m: a(f"s_bitcmp1_b32 s{r}, {b}\ns_cselect_b32 s93, {m}, 0\ns_xor_b32 s63, s63, s93")
            a("s_add_u32 s62, s62, s63")
        contig = cfg.kvmap == 'contig'
        if cfg.kv: a("s_mov_b32 s63, 0")
        else: a(f"s_lshl_b32 s63, s54, {16 if contig else 12}\ns_add_u32 s62, s62, s63")
        if cfg.kv: pass
        elif cfg.perm == "s": a("s_xor_b32 s63, s3, s54")
        elif cfg.perm == "none": a("s_mov_b32 s63, s3")
        elif cfg.perm == "sh": a("s_add_u32 s63, s54, s49\ns_and_b32 s63, s63, 15\ns_xor_b32 s63, s63, s3")
        elif cfg.perm == "hb": a("s_lshl_b32 s63, s53, 3\ns_add_u32 s63, s63, s49\ns_xor_b32 s63, s63, s3")
        a(f"""
        s_lshl_b32 s63, s63, {12 if contig else 16}
        s_add_u32 s62, s62, s63
        s_lshl_b32 s63, s49, 2
        s_add_u32 s63, s63, s52
        s_lshl_b32 s63, s63, 4
        s_add_u32 s63, s63, s3
        s_lshl_b32 s63, s63, 13
        s_add_u32 s63, s63, s57
        s_lshl_b32 s60, s58, 3
        s_add_u32 s60, s60, s3
        s_lshl_b32 s60, s60, 13
        s_add_u32 s60, s60, s57
        s_add_u32 s60, s60, s59
        s_lshl_b32 s58, s3, 2
        s_add_u32 s58, s58, {FLAGS}
        v_mov_b32 v20, s58
        v_lshlrev_b32 v22, 2, v2
        v_add_u32 v22, {FLAGS}, v22
        s_lshl_b32 s58, s3, 12             ; lw*4096
        s_waitcnt lgkmcnt(0)
        """)
        if cfg.tlb == 's':
            a(f"""
            s_cmp_lg_u32 s3, 1
            s_cbranch_scc1 L_notlb
            s_load_dword s97, s[4:5], s62
            s_load_dword s97, s[8:9], s62
            s_and_b32 s95, s63, 0x3fffff
            s_load_dword s97, s[16:17], s95
            s_load_dword s97, s[28:29], 0
            s_load_dword s97, s[24:25], 0
L_notlb:
            """)
    setup_done = [False]; barrier_done = [False]
    def maybe_setup():
        if not setup_done[0] and n[0] == X + 4:
            setup_rest(); setup_done[0] = True
        if not barrier_done[0] and n[0] == D0:
            a("s_barrier"); stamp(1); barrier_done[0] = True
    steps = []
    def wsteps(srd, v, soff, step, cnt, ldsbase, first=False):
        for i in range(cnt):
            def f(i=i):
                maybe_setup()
                if i == 0:
                    if not first: a(f"s_add_u32 m0, s61, {ldsbase}")
                    so = f"s{soff}"
                elif first:
                    a(f"s_addk_i32 m0, 4096\ns_add_u32 s{soff}, s{soff}, s47"); so = f"s{soff}"
                else:
                    a(f"s_add_u32 m0, s61, {ldsbase + i*4096}\ns_add_u32 s46, s{soff}, {i*step}"); so = "s46"
                pre_issue()
                a(f"buffer_load_dwordx4 v{v}, s[{srd}:{srd+3}], {so} offen {cfg.pol} lds")
                post_issue()
            steps.append(f)
    def kvsteps(srd, regs, ldsbase, isv):
        for i in range(4):
            for cc in range(4):
                def f(i=i, cc=cc):
                    if cc == 0 and isv and i == 2 and not cfg.streamonly and 'a' not in cfg.abl:
                        if cfg.earlywar:
                            w = L("ew")
                            a(f"s_waitcnt lgkmcnt(0)\nv_cmp_gt_u32 vcc, {C_TILE}, v23\ns_and_b64 vcc, vcc, 0xff0\ns_cbranch_vccz {w}")
                            spin(23, 22, 0xff0, C_TILE)
                            a(f"{w}:")
                        else: spin(23, 22, 0xff0, C_TILE)
                    if cfg.earlywar and cc == 2 and isv and i == 1 and not cfg.streamonly: a("ds_read_b32 v23, v22")
                    maybe_setup()
                    if cc == 0: a(f"s_add_u32 m0, s58, {ldsbase + i*16384}")
                    else: a("s_addk_i32 m0, 1024")
                    c = (cfg.kv[2] if i & 1 else 0) ^ (cfg.kv[3] if i & 2 else 0) ^ (cfg.kv[0] if cc & 1 else 0) ^ (cfg.kv[1] if cc & 2 else 0)
                    a(f"s_xor_b32 s96, s62, {c}")
                    pre_issue()
                    a(f"buffer_load_dwordx4 v{regs[cc % len(regs)]}, s[{srd}:{srd+3}], s96 offen {cfg.pol} lds")
                    post_issue()
                steps.append(f)
    wsteps(12, 10, 55, 32*8192, 4, WQ_L, first=True)
    wsteps(20, 11, 56, 32*3584, 2, G_L)
    wsteps(24, 11, 56, 32*3584, 2, U_L)
    kvsteps(4, [13, 14, 15, 16], K_L, False)
    kvsteps(8, [17, 18], V_L, True)
    wsteps(28, 12, 60, 32*1024, 2, DN_L)
    wsteps(16, 12, 63, 32*1024, 4, WO_L)
    head, V, DN, WO = steps[:24], steps[24:40], steps[40:42], steps[42:46]
    order = [('h', f) for f in head]
    for q in range(4):
        if cfg.dnpos == q: order += [('d', f) for f in DN]
        if q == 3: order += [('w', f) for f in WO[:cfg.wopos]]
        order += [('v%d' % q, f) for f in V[4*q:4*q+4]]
    if cfg.dnpos == 4: order += [('d', f) for f in DN]
    order += [('w', f) for f in WO[cfg.wopos:]]
    steps = [f for _, f in order]
    last = {k: i + 1 for i, (k, _) in enumerate(order)}
    if not cfg.prog:
        for old, new in ((28, 'v0'), (32, 'v1'), (36, 'v2'), (40, 'v3')):
            miles[('n', X + last[new])] = miles.pop(X + old)
        for k in [k for k in miles if isinstance(k, tuple)]: miles[k[1]] = miles.pop(k)
    def finish():
        assert n[0] == 46 + X and barrier_done[0]
        for k in sorted(miles):
            a(f"s_waitcnt vmcnt({46+X-k})"); miles[k]()
        miles.clear()
        a("s_waitcnt vmcnt(0)")
        flag(M_END)
        stamp(4)
        if cfg.diag:
            a("s_load_dwordx2 s[32:33], s[0:1], 88"); srd_tail(32, WS_BYTES)
            a("s_getreg_b32 s80, hwreg(HW_REG_HW_ID)")
            dump_stamps(9)
        a("s_endpgm")
    if not cfg.adapt:
        for f in steps:
            if cfg.hold and n[0] == X + cfg.hold[0] and not cfg.streamonly:
                if landed[0] < X + 40:
                    a(f"s_waitcnt vmcnt({n[0] - (X + 40)})"); landed[0] = X + 40
                    for k in sorted(miles):
                        if k <= landed[0]: miles.pop(k)()
                if cfg.bp: a("s_barrier")
                else: spin(23, 22, 0xff0, C_PUB)
            f()
        finish()
    else:
        at, levels = cfg.adapt
        for f in steps[:at - X]: f()
        a("s_memrealtime s[98:99]\ns_waitcnt lgkmcnt(0)\ns_sub_u32 s98, s98, s100")
        for li, (ticks, dep) in enumerate(levels):
            a(f"s_cmp_gt_u32 s98, {ticks}\ns_cbranch_scc1 L_late{li}")
        saved = (n[0], landed[0], dict(miles))
        for li, (ticks, dep) in enumerate([(None, None)] + list(levels)):
            n[0], landed[0] = saved[0], saved[1]; miles.clear(); miles.update(saved[2])
            if li: a(f"L_late{li-1}:")
            Dover[0] = dep
            for f in steps[at - X:]: f()
            finish()

    a("L_compute:")
    incompute[0] = True
    a("""
    s_load_dwordx2 s[32:33], s[0:1], 88
    s_load_dwordx4 s[40:43], s[0:1], 72
    v_lshlrev_b32 v7, 4, v0           ; l*16
    s_sub_u32 s55, s3, 4
    """)
    stamp(0)
    if cfg.pf == 'c':
        a("s_cmp_lg_u32 s55, 7\ns_cbranch_scc1 L_nopf")
        code_prefetch(122, 7, 112)
        a("L_nopf:")
    a("s_barrier")
    if cfg.streamonly: a("s_endpgm")
    if cfg.prio: a(f"s_setprio {cfg.prio}")
    srd_tail(36, 2048); srd_tail(32, WS_BYTES)
    a(f"""
    s_lshr_b32 s53, s50, 4        ; b
    s_and_b32 s54, s50, 15        ; split
    s_waitcnt lgkmcnt(0)
    s_mov_b64 s[24:25], s[42:43]  ; d_debug
    s_movk_i32 s26, 256
    s_mov_b32 s27, s39
    s_movk_i32 s42, 2048
    s_mov_b32 s43, s39
    s_load_dword s44, s[32:33], 0
    v_and_b32 v1, 15, v0              ; J
    v_lshrrev_b32 v2, 4, v0           ; G
    """)
    if cfg.tr: a("v_and_b32 v120, 7, v0\nv_lshrrev_b32 v119, 5, v0\nv_lshlrev_b32 v119, 10, v119\nv_lshl_add_u32 v120, v120, 1, v119     ; final stage: byte offset of this lane's output")
    else: a("v_and_b32 v120, 3, v0\nv_lshl_add_u32 v120, v120, 2, v2\nv_lshlrev_b32 v120, 1, v120")
    if cfg.tr: a("s_bfe_u32 s30, s2, 0x10006\ns_and_b32 s29, s2, 3\ns_lshl2_add_u32 s30, s30, s29\ns_bfe_u32 s29, s2, 0x30003\ns_lshl3_add_u32 s30, s30, s29     ; c: index of the 8 columns this workgroup finishes")
    elif cfg.cmap: a("s_bfe_u32 s30, s2, 0x20005\ns_and_b32 s29, s2, 3\ns_lshl2_add_u32 s30, s30, s29\ns_bfe_u32 s29, s2, 0x20003\ns_lshl2_add_u32 s30, s30, s29     ; c: index of the 16 outputs this workgroup finishes")
    else: a("s_bfe_u32 s30, s2, 0x40003\ns_and_b32 s29, s2, 3\ns_lshl2_add_u32 s30, s30, s29")
    a(f"""
    s_and_b32 s29, s2, 0x84
    s_xor_b32 s29, s29, {cfg.fin}     ; nonzero: not a finishing workgroup
    s_mov_b32 s22, s29
    s_lshr_b32 s56, s30, 1
    s_lshl_b32 s56, s56, 2
    s_and_b32 s58, s30, 1
    s_or_b32 s56, s56, s58
    s_lshl_b32 s56, s56, 12
    s_add_u32 s28, s56, {cfg.fr}
    s_cmp_lg_u32 s55, 4
    s_cbranch_scc1 L_noxr
    s_cmp_lg_u32 s29, 0
    s_cbranch_scc1 L_noxr
    """)
    if cfg.tr: a("s_lshl_b32 s31, s30, 4")
    else: a("""
    s_lshr_b32 s56, s30, 3            ; cg'
    s_lshl_b32 s56, s56, 6
    s_and_b32 s58, s30, 3
    s_lshl_b32 s58, s58, 4
    s_add_u32 s56, s56, s58
    s_bfe_u32 s58, s30, 0x10002
    s_lshl_b32 s58, s58, 9
    s_add_u32 s56, s56, s58           ; element index of first column
    s_lshl_b32 s31, s56, 1
    """)
    def outmask():
        if cfg.tr: a("s_mov_b32 exec_lo, 0xff\ns_mov_b32 exec_hi, 0xff")
        else: exmask16(0xf)
    a(f"""
    buffer_load_ushort v121, v120, s[36:39], s31 offen
    {"buffer_load_ushort v119, v120, s[40:43], s31 offen" if cfg.preout is True else ""}
    """)
    if cfg.preout == 'st':
        a("v_mov_b32 v119, 0")
        outmask()
        a("buffer_store_short v119, v120, s[40:43], s31 offen\ns_mov_b64 exec, -1")
    a(f"""
    s_add_u32 s56, s28, 8192
    v_lshlrev_b32 v118, 6, v0
    {"" if 'F' in cfg.abl or cfg.preF != 'start' else f"buffer_load_dword v119, v118, s[32:35], s28 offen {cfg.preFpol}"}
    {"" if 'F' in cfg.abl or cfg.preF != 'start' else f"buffer_load_dword v119, v118, s[32:35], s56 offen {cfg.preFpol}"}
L_noxr:
    """)
    if cfg.tlb.startswith('v'):
        a(f"""
        s_cmp_lg_u32 s55, 5
        s_cbranch_scc1 L_notlb
        s_load_dwordx4 s[4:7], s[0:1], 8
        s_load_dwordx2 s[8:9], s[0:1], 32
        s_load_dwordx2 s[10:11], s[0:1], 64
        s_lshl3_add_u32 s58, s53, s49
        s_lshl_b32 s58, s58, 23
        s_add_u32 s58, s58, {28672*256}
        v_mov_b32 v110, s58
        s_lshl2_add_u32 s58, s49, s52
        s_lshl_b32 s58, s58, 17
        v_mov_b32 v111, s58
        v_mov_b32 v112, 0
        s_mov_b64 exec, 1
        s_waitcnt lgkmcnt(0)
        {"global_load_dword v113, v110, s[4:5]" if 'k' in cfg.tlb else ""}
        global_load_dword v113, v110, s[6:7]
        global_load_dword v113, v111, s[8:9]
        global_load_dword v113, v112, s[10:11]
        s_mov_b64 exec, -1
L_notlb:
        """)
    if cfg.preF == 'split':
        a(f"""
        s_cmp_lg_u32 s55, 6
        s_cbranch_scc1 L_nosp
        s_and_b32 s56, s2, 4
        s_cbranch_scc1 L_nosp
        v_lshlrev_b32 v118, 6, v0
        s_lshr_b32 s56, s2, 7
        s_lshl_b32 s56, s56, 13
        s_add_u32 s56, s56, s28
        buffer_load_dword v119, v118, s[32:35], s56 offen {cfg.preFpol}
L_nosp:
        """)
    if cfg.preF == 'slack':

        a(f"""
        s_cmp_lg_u32 s55, 6
        s_cbranch_scc1 L_nosk
        s_and_b32 s56, s2, 0xc4
        s_cmp_lg_u32 s56, 0xc4
        s_cbranch_scc1 L_nosk
        v_lshlrev_b32 v118, 6, v0
        s_add_u32 s56, s28, 8192
        buffer_load_dword v119, v118, s[32:35], s28 offen {cfg.preFpol}
        buffer_load_dword v119, v118, s[32:35], s56 offen {cfg.preFpol}
        s_sub_u32 s58, s28, {16*16384}
        s_sub_u32 s56, s56, {16*16384}
        buffer_load_dword v119, v118, s[32:35], s58 offen {cfg.preFpol}
        buffer_load_dword v119, v118, s[32:35], s56 offen {cfg.preFpol}
L_nosk:
        """)
    a(f"""
    """)
    a(f"""
    v_lshlrev_b32 v4, 2, v1
    v_add_u32 v4, {FLAGS}, v4
    s_lshl_b32 s56, s55, 2
    s_add_u32 s56, s56, {FLAGS+16}
    v_mov_b32 v6, s56
    v_mov_b32 v3, 0xffffff00
    s_lshl_b32 s62, s49, 2
    s_add_u32 s62, s62, s52           ; 4h+rg
    s_and_b32 s56, s55, 3             ; mt
    v_lshrrev_b32 v8, 2, v1
    v_lshl_add_u32 v8, v2, 2, v8      ; r
    v_bfe_u32 v9, v8, 1, 2
    v_xor_b32 v9, s56, v9
    v_lshlrev_b32 v9, 5, v9
    v_and_b32 v10, 3, v1
    v_lshlrev_b32 v11, 3, v10         ; (i&3)*8
    v_add_u32 v9, v9, v11
    v_lshl_add_u32 v15, v8, 7, v9     ; vT
    v_and_b32 v10, 1, v1
    v_mul_u32_u24 v12, {XNS}, v10
    v_lshl_add_u32 v12, v2, 3, v12    ; (j&1)*XNS + g*8
    ; first publish slot: q partial (cw<4) or gate/up partial
    s_lshl_b32 s57, s49, 14
    s_lshl_b32 s58, s52, 11
    s_add_u32 s57, s57, s58
    s_lshl_b32 s58, s51, 8
    s_add_u32 s57, s57, s58
    s_add_u32 s57, s57, {QA}
    s_lshl_b32 s58, s62, 13
    s_lshl_b32 s59, s51, 10
    s_add_u32 s58, s58, s59
    s_add_u32 s58, s58, {GA}
    s_lshl_b32 s59, s52, 8
    s_lshl_b32 s60, s51, 7
    s_cmp_lt_u32 s55, 4
    s_cselect_b32 s57, s57, s58
    s_cselect_b32 s59, s59, s60
    s_mov_b32 s60, {WQ_L}
    s_cselect_b32 s60, s60, {G_L}
    s_cselect_b32 s61, 13, 8
    s_mov_b32 s63, 0x00030003
    s_cselect_b32 s63, s63, 0x000f000f
    s_lshl_b32 s56, s56, 6
    s_add_u32 s57, s57, s56           ; publish soffset (near)
    s_add_u32 s59, s59, {XN}
    v_add_u32 v12, s59, v12
    v_add_u32 v9, s60, v15
    v_lshlrev_b32 v13, s61, v1
    v_lshl_add_u32 v13, v2, 4, v13    ; publish voffset
    """)
    if cfg.pre1:
        a("s_mov_b32 exec_lo, s63\ns_mov_b32 exec_hi, s63\nbuffer_load_dword v125, v13, s[32:35], s57 offen\ns_mov_b64 exec, -1")
    def cflag(val):
        a(f"v_mov_b32 v5, {val}\ns_mov_b64 exec, 1\nds_write_b32 v6, v5\ns_mov_b64 exec, -1")
    def wait(mask, val, body=None): spin(5, 4, mask, val, body)
    def allreduce(x, t, op):
        for d in ("quad_perm:[1,0,3,2]", "quad_perm:[2,3,0,1]", "row_half_mirror", "row_mirror"):
            a(f"{op}_dpp v{x}, v{x}, v{x} {d} row_mask:0xf bank_mask:0xf")
        a(f"v_mov_b32 v{t}, v{x}\nv_permlane16_swap_b32 v{x}, v{t}\n{op} v{x}, v{x}, v{t}")
        a(f"v_mov_b32 v{t}, v{x}\nv_permlane32_swap_b32 v{x}, v{t}\n{op} v{x}, v{x}, v{t}")
    def unpack(src, dst, n):
        for i in range(n):
            a(f"v_lshlrev_b32 v{dst+2*i}, 16, v{src+i}\nv_and_b32 v{dst+2*i+1}, 0xffff0000, v{src+i}")
    def pack(src, dst, n):
        for i in range(n):
            a(f"v_cvt_pk_bf16_f32 v{dst+i}, v{src+2*i}, v{src+2*i+1}")
    def rbf(x, d=None):
        d = x if d is None else d
        if cfg.trim2: a(f"v_cvt_pk_bf16_f32 v{d}, 0, v{x}")
        else: a(f"v_cvt_pk_bf16_f32 v{d}, v{x}, v{x}\nv_lshlrev_b32 v{d}, 16, v{d}")
    def tag(src, dst, last=48):
        for i in range(4):
            a(f"v_and_or_b32 v{dst+i}, v{src+i}, v3, s{45+i if i < 3 else last}")
    def check(regs, last=97, masked=False, t=5):
        for k, r in enumerate(regs):
            for i in range(4): a(f"v_xor_b32 v{r+i}, s{45+i if i < 3 else last}, v{r+i}")
            if masked:
                if k == 0: a(f"v_or3_b32 v{t}, v{r}, v{r+1}, v{r+2}\nv_mov_b32 v127, v{r+3}")
                else: a(f"v_or3_b32 v{t}, v{t}, v{r}, v{r+1}\nv_or_b32 v{t}, v{t}, v{r+2}\nv_or_b32 v127, v127, v{r+3}")
            elif k == 0: a(f"v_or3_b32 v{t}, v{r}, v{r+1}, v{r+2}\nv_or_b32 v{t}, v{t}, v{r+3}")
            else: a(f"v_or3_b32 v{t}, v{t}, v{r}, v{r+1}\nv_or3_b32 v{t}, v{t}, v{r+2}, v{r+3}")
        if masked: a(f"v_and_or_b32 v{t}, v127, s101, v{t}")
        a(f"v_and_b32 v{t}, 0xff, v{t}\nv_cmp_ne_u32 vcc, 0, v{t}")
    def issue(loads, soffs, pol=None):
        pol = cfg.gpol if pol is None else pol
        if 'q' in cfg.abl and len(loads) == 4: return
        if 'h' in cfg.abl and len(loads) == 8: return
        if 'm' in cfg.abl and loads[0][0] == 80: return
        for (r, va, si, imm) in loads:
            a(f"buffer_load_dwordx4 v[{r}:{r+3}], v{va}, s[32:35], s{soffs[si]} offen offset:{imm} {pol}")
    def poll(loads, soffs, each=None, pre_issued=None, **kw):
        top, chk, done = L("p"), L("pc"), L("pd")
        a("s_mov_b32 s59, 0")
        if pre_issued is not None: a(f"s_waitcnt vmcnt({pre_issued})\ns_branch {chk}")
        a(f"{top}:\ns_add_u32 s59, s59, 1")
        if each: each()
        issue(loads, soffs)
        a(f"s_waitcnt vmcnt(0)\n{chk}:")
        check([r for (r, _, _, _) in loads], **kw)
        if 'r' in cfg.abl: a(f"{done}:")
        else: a(f"s_cbranch_vccz {done}\ns_cmp_lt_u32 s59, {cfg.NMAX}\ns_cbranch_scc1 {top}\n{done}:")
    def pm(d, w, x, c):
        A, Bm = (x, w) if cfg.tr else (w, x)
        a(f"v_mfma_f32_16x16x32_bf16 v[{d}:{d+3}], v[{A}:{A+3}], v[{Bm}:{Bm+3}], {c}")
    def mstore(r, va, so):
        f, d = L("ms"), L("md")
        a(f"s_cmp_lg_u32 s98, 0\ns_cbranch_scc1 {f}\nbuffer_store_dwordx4 v[{r}:{r+3}], v{va}, s[32:35], s{so} offen {NP}\ns_branch {d}\n{f}:\nbuffer_store_dwordx4 v[{r}:{r+3}], v{va}, s[32:35], s{so} offen sc1\n{d}:")
    def far_first():
        t = L("ff")
        a(f"s_cmp_lg_u32 s95, 0\ns_cbranch_scc1 {t}\ns_mov_b32 s95, 1\ns_mov_b32 exec_lo, s63\ns_mov_b32 exec_hi, s63\nbuffer_store_dwordx4 v[52:55], v13, s[32:35], s58 offen sc1\ns_mov_b64 exec, -1\n{t}:")

    if 'a' in cfg.abl: a("s_endpgm")
    a("s_cmp_ge_u32 s55, 2\ns_cbranch_scc1 L_noln")
    a(f"s_mul_i32 s56, s55, {XNS}\ns_add_u32 s56, s56, {XN}\nv_add_u32 v14, s56, v7")
    wait(0xf, M_X)
    a("ds_read_b128 v[16:19], v14\ns_waitcnt lgkmcnt(0)")
    stamp(1)
    unpack(16, 20, 4)
    a("""
    v_add_f32 v28, v20, v21
    v_add_f32 v29, v22, v23
    v_add_f32 v30, v24, v25
    v_add_f32 v31, v26, v27
    v_add_f32 v28, v28, v29
    v_add_f32 v30, v30, v31
    v_add_f32 v28, v28, v30
    """)
    allreduce(28, 29, "v_add_f32")
    a("v_mul_f32 v28, 0x3b000000, v28")
    for i in range(8): a(f"v_sub_f32 v{32+i}, v{20+i}, v28")
    a("v_mul_f32 v29, v32, v32\nv_mul_f32 v30, v33, v33")
    for i in range(2, 8, 2): a(f"v_fmac_f32 v29, v{32+i}, v{32+i}\nv_fmac_f32 v30, v{33+i}, v{33+i}")
    a("v_add_f32 v29, v29, v30")
    rbf(28)
    for i in range(8): a(f"v_sub_f32 v{32+i}, v{20+i}, v28")
    allreduce(29, 30, "v_add_f32")
    pack(32, 16, 4)
    a("v_mul_f32 v29, 0x3b000000, v29")
    rbf(29)
    a("v_add_f32 v29, 0x3727c5ac, v29")
    rbf(29)
    a("v_sqrt_f32 v29, v29")
    unpack(16, 32, 4)
    rbf(29)
    a("v_rcp_f32 v29, v29")
    for i in range(8): a(f"v_mul_f32 v{32+i}, v{32+i}, v29")
    pack(32, 16, 4)
    a("ds_write_b128 v14, v[16:19]")
    cflag(C_XN)
    a("L_noln:")
    a(f"""
    s_waitcnt lgkmcnt(0)
    s_add_u32 s44, s44, 0x01010101
    s_and_b32 s45, s44, 0xff
    s_bfe_u32 s46, s44, 0x80008
    s_bfe_u32 s47, s44, 0x80010
    s_lshr_b32 s48, s44, 24
    s_getreg_b32 s96, hwreg(HW_REG_XCC_ID, 0, 4)
    s_xor_b32 s96, s96, s48           ; byte 3 of the first hand-off's tag carries the die id
    s_mov_b32 s97, s96
    s_mov_b32 s98, 0
    s_mov_b32 s101, -1
    s_mov_b32 s95, 0
    s_add_u32 s58, s57, {MIR}
    v_and_b32 v10, 2, v1
    v_cmp_ne_u32 s[60:61], 0, v10
    """)
    wait(0x30, C_XN)
    a("s_cmp_ge_u32 s55, 4\ns_cbranch_scc1 L_gu")
    for k in range(4): a(f"ds_read2_b64 v[{32+4*k}:{35+4*k}], v12 offset0:{8*k} offset1:{8*k+4}")
    wait(0xf, M_WQ)
    stamp(2)
    for k in range(4):
        for t in range(2): a(f"ds_read_b64_tr_b16 v[{16+4*k+2*t}:{17+4*k+2*t}], v9 offset:{k*4096+t*2048}")
    cflag(C_TILE)
    a("s_waitcnt lgkmcnt(0)")
    for k in range(4):
        a(f"v_mfma_f32_16x16x32_bf16 v[48:51], v[{16+4*k}:{19+4*k}], v[{32+4*k}:{35+4*k}], {'0' if k==0 else 'v[48:51]'}")
    a("s_branch L_pub1")
    a("L_gu:")
    for k in range(2): a(f"ds_read2_b64 v[{32+4*k}:{35+4*k}], v12 offset0:{8*k} offset1:{8*k+4}")
    wait(0xf, M_GU)
    stamp(2)
    for m in range(2):
        for k in range(2):
            for t in range(2): a(f"ds_read_b64_tr_b16 v[{16+8*m+4*k+2*t}:{17+8*m+4*k+2*t}], v9 offset:{m*8192+k*4096+t*2048}")
    cflag(C_TILE)
    a("s_waitcnt lgkmcnt(0)")
    for k in range(2):
        a(f"v_mfma_f32_16x16x32_bf16 v[48:51], v[{16+4*k}:{19+4*k}], v[{32+4*k}:{35+4*k}], {'0' if k==0 else 'v[48:51]'}")
        a(f"v_mfma_f32_16x16x32_bf16 v[56:59], v[{24+4*k}:{27+4*k}], v[{32+4*k}:{35+4*k}], {'0' if k==0 else 'v[56:59]'}")
    for i in range(4): a(f"v_cndmask_b32 v{48+i}, v{48+i}, v{56+i}, s[60:61]")
    a("L_pub1:\ns_nop 7")
    tag(48, 52, 96)
    a("s_mov_b32 exec_lo, s63\ns_mov_b32 exec_hi, s63")
    if 'P' not in cfg.abl: a(f"buffer_store_dwordx4 v[52:55], v13, s[32:35], s57 offen {NP}")
    a("s_mov_b64 exec, -1")
    stamp(3)
    if 'x' in cfg.abl: a("s_endpgm")
    def scalar_touch(sides, lab):
        a(f"""
        s_cmp_lt_u32 s55, 4
        s_cbranch_scc1 {lab}
        s_cmp_lg_u32 s22, 0
        s_cbranch_scc1 {lab}
        s_sub_u32 s4, s55, 4
        s_lshl_b32 s4, s4, 10
        s_add_u32 s4, s4, s28
        s_add_u32 s6, s32, s4
        s_addc_u32 s7, s33, 0
        """)
        for k, sd in enumerate(sides):
            if k: a("s_waitcnt lgkmcnt(0)")
            for i in range(8): a(f"s_load_dword s23, s[6:7], {sd*8192 + i*128}")
        a(f"{lab}:")
    if cfg.preF == 'scalar': scalar_touch((0, 1) if cfg.side == 'auto' and cfg.force is None else (cfg.side if cfg.side != 'auto' else cfg.force,), "L_nost")
    if cfg.side == 'auto':
        a(f"""
        s_cmp_lt_u32 s55, 4
        s_cbranch_scc1 L_noprobe
        s_cmp_lg_u32 s2, {cfg.leader}
        s_cbranch_scc1 L_noprobe
        {"s_and_b32 s4, s55, 2" if cfg.race else "s_mov_b32 s4, s55"}
        s_lshl_b32 s4, s4, {9 if cfg.race else 7}
        s_and_b32 s5, s55, 1
        s_lshl_b32 s5, s5, 13
        s_add_u32 s4, s4, s5
        s_add_u32 s4, s4, {cfg.fr + PROBE}
        s_xor_b32 s5, s4, 0x2000
        s_add_u32 s6, s32, s4
        s_addc_u32 s7, s33, 0
        s_add_u32 s8, s32, s5
        s_addc_u32 s9, s33, 0
        s_load_dword s10, s[6:7], 0 glc
        s_load_dword s11, s[8:9], 0 glc
        s_mov_b32 s16, 0
        s_waitcnt lgkmcnt(0)
        """)
        if cfg.race:
            for r in range(1, cfg.race): a(f"s_load_dword s10, s[6:7], {r*cfg.rstep} glc")
            a("s_waitcnt lgkmcnt(0)")
            a("v_mov_b32 v5, 1\ns_mov_b64 exec, 1\nds_add_u32 v4, v5 offset:60\ns_mov_b64 exec, -1")
            wait(0x8000, 4)
            for r in range(cfg.race): a(f"s_load_dword s10, s[6:7], {r*cfg.rstep} glc\ns_waitcnt lgkmcnt(0)")
            a(f"""
            v_mov_b32 v5, 16
            s_mov_b64 exec, 1
            ds_add_rtn_u32 v16, v4, v5 offset:60
            s_waitcnt lgkmcnt(0)
            v_readfirstlane_b32 s14, v16
            s_lshr_b32 s14, s14, 4
            s_cmp_lg_u32 s14, {cfg.rank}
            s_cbranch_scc1 L_noprobe2
            s_and_b32 s14, s55, 1
            {"s_xor_b32 s14, s14, 1" if inv else ""}
            s_add_u32 s14, s14, 1
            v_mov_b32 v16, s14
            v_mov_b32 v17, 0
            buffer_store_dword v16, v17, s[24:27], 0 offen sc1
L_noprobe2:
            s_mov_b64 exec, -1
L_noprobe:
            """)
        for r in range(cfg.rounds if not cfg.race else 0):
            a("""
            s_memtime s[12:13]
            s_waitcnt lgkmcnt(0)
            s_load_dword s10, s[6:7], 0 glc
            s_waitcnt lgkmcnt(0)
            s_memtime s[14:15]
            s_waitcnt lgkmcnt(0)
            s_load_dword s10, s[8:9], 0 glc
            s_waitcnt lgkmcnt(0)
            s_memtime s[18:19]
            s_waitcnt lgkmcnt(0)
            s_lshl_b32 s14, s14, 1
            s_sub_u32 s14, s14, s12
            s_sub_u32 s14, s14, s18          ; first - second
            s_add_u32 s16, s16, s14
            """)
        if not cfg.race: a(f"""
        s_sub_u32 s14, 0, s16
        s_bitcmp1_b32 s55, 0
        s_cselect_b32 s16, s14, s16
        s_min_i32 s16, s16, 2047
        s_max_i32 s16, s16, -2047
        s_add_u32 s16, s16, {(1 << 20) + 2048}
        v_mov_b32 v5, s16
        s_mov_b64 exec, 1
        ds_add_rtn_u32 v16, v4, v5 offset:60
        s_waitcnt lgkmcnt(0)
        v_readfirstlane_b32 s14, v16
        s_add_u32 s14, s14, s16
        s_lshr_b32 s15, s14, 20
        s_cmp_lg_u32 s15, 4
        s_cbranch_scc1 L_noprobe2
        s_and_b32 s14, s14, 0xfffff
        s_cmp_gt_u32 s14, {4*2048}
        s_cselect_b32 s14, {'1, 2' if inv else '2, 1'}
        v_mov_b32 v16, s14
        v_mov_b32 v17, 0
        buffer_store_dword v16, v17, s[24:27], 0 offen sc1
L_noprobe2:
        s_mov_b64 exec, -1
L_noprobe:
        """)
    a(f"""
    v_and_b32 v10, 3, v1
    v_mul_u32_u24 v9, {QBS}, v10
    v_lshl_add_u32 v9, v2, 4, v9
    v_add_u32 v9, {QB}, v9
    s_lshl_b32 s56, s55, 13
    v_xor_b32 v12, v1, v2
    v_lshlrev_b32 v12, 4, v12
    v_lshl_add_u32 v12, v1, 8, v12
    v_add_u32 v12, s56, v12           ; K operand address, step 0
    v_xor_b32 v62, 64, v12
    v_xor_b32 v63, 128, v12
    v_xor_b32 v64, 192, v12
    """)
    a("s_cmp_ge_u32 s55, 2\ns_cbranch_scc1 L_noq")
    a(f"""
    s_lshl_b32 s56, s55, 10
    v_add_u32 v126, s56, v7
    s_lshl_b32 s99, s49, 14
    s_lshl_b32 s100, s53, 13
    s_add_u32 s99, s99, s100
    s_add_u32 s99, s99, {QA}
    s_add_u32 s100, s99, 4096
    s_lshl_b32 s56, s55, 1
    v_lshrrev_b32 v14, 5, v0
    v_add_u32 v14, s56, v14
    v_mul_u32_u24 v14, {QBS}, v14
    v_and_b32 v16, 31, v0
    v_lshl_add_u32 v14, v16, 3, v14
    v_add_u32 v14, {QB}, v14
    """)
    if cfg.qtrig: wait(0xf, cfg.qtrig)
    def q_each():
        t = L("qe")
        a(f"s_cmp_lt_u32 s59, {cfg.N0}\ns_cbranch_scc1 {t}")
        a("v_mov_b32 v5, 1\ns_mov_b64 exec, 1\nds_write_b32 v4, v5 offset:56\ns_mov_b64 exec, -1")
        far_first()
        a(f"s_xor_b32 s98, s98, {MIR}\ns_xor_b32 s99, s99, {MIR}\ns_xor_b32 s100, s100, {MIR}\ns_xor_b32 s101, s101, 15\n{t}:")
    poll([(16, 126, 0, 0), (20, 126, 0, 2048), (24, 126, 1, 0), (28, 126, 1, 2048)], [99, 100], each=q_each, last=96, masked=True)
    a("v_and_b32 v127, 15, v127\nv_cmp_ne_u32 vcc, 0, v127\ns_cbranch_vccnz L_remote\ns_mov_b32 s98, 0\nL_remote:")
    for r in (19, 23, 27, 31): a(f"v_and_b32 v{r}, v{r}, v3")
    for i in range(4): a(f"v_add_f32 v{16+i}, v{16+i}, v{20+i}\nv_add_f32 v{24+i}, v{24+i}, v{28+i}")
    for i in range(4): a(f"v_add_f32 v{16+i}, v{16+i}, v{24+i}")
    pack(16, 20, 2)
    a("ds_write_b64 v14, v[20:21]")
    a("v_mov_b32 v5, s98\ns_mov_b64 exec, 1\nds_write_b32 v6, v5 offset:32\ns_mov_b64 exec, -1")
    cflag(C_Q)
    a("L_noq:")
    stamp(4)
    if 'y' in cfg.abl: a("s_endpgm")
    def watch():
        t = L("wt")
        a(f"v_cmp_ne_u32 vcc, 0, v5\ns_and_b64 vcc, vcc, 0x4000\ns_cbranch_vccz {t}")
        far_first()
        a(f"{t}:")
    wait(0x30, C_Q, watch)
    a(f"v_cmp_ne_u32 vcc, 0, v5\ns_and_b64 vcc, vcc, 0x3000\ns_mov_b32 s98, 0\ns_mov_b32 s101, -1\ns_cbranch_vccz L_near\ns_mov_b32 s98, {MIR}\ns_mov_b32 s97, s48\ns_mov_b32 s101, 0xfffffff0")
    far_first()
    a("L_near:")
    for st in range(4): a(f"ds_read_b128 v[{16+4*st}:{19+4*st}], v9 offset:{64*st}")
    wait(0xf, M_K)
    stamp(5)
    ka = [12, 62, 63, 64]
    for tt in range(2):
        for st in range(4):
            r = 32 + 16*tt + 4*st
            if r == 52: r = 92
            if r == 60: r = 88
            a(f"ds_read_b128 v[{r}:{r+3}], v{ka[st]} offset:{tt*4096}")
    a(f"""
    v_lshlrev_b32 v9, 5, v10
    v_add_u32 v9, {MX}, v9
    s_lshl_b32 s56, s55, 2
    v_add_u32 v12, s56, v9
    s_lshl_b32 s56, s55, 8
    v_lshlrev_b32 v13, 6, v2
    v_lshl_add_u32 v13, v10, 4, v13
    v_add_u32 v13, {PB}, v13
    v_add_u32 v14, s56, v13
    s_waitcnt lgkmcnt(0)
    """)
    for st in range(4):
        for tt in range(2):
            r = 32 + 16*tt + 4*st; d = 68 + 4*tt
            if r == 52: r = 92
            if r == 60: r = 88
            a(f"v_mfma_f32_16x16x32_bf16 v[{d}:{d+3}], v[{r}:{r+3}], v[{16+4*st}:{19+4*st}], {'0' if st==0 else f'v[{d}:{d+3}]'}")
    if cfg.trim2:
        for i in range(8): rbf(68+i, 36+i)
        for i in range(8): a(f"v_mul_f32 v{36+i}, 0x3db504f3, v{36+i}")
        for i in range(8): rbf(36+i)
    else:
        pack(68, 32, 4)
        unpack(32, 36, 4)
        for i in range(8): a(f"v_mul_f32 v{36+i}, 0x3db504f3, v{36+i}")
        pack(36, 32, 4)
        unpack(32, 36, 4)
    a("""
    v_max3_f32 v56, v36, v37, v38
    v_max3_f32 v57, v39, v40, v41
    v_max3_f32 v56, v56, v42, v43
    v_max_f32 v56, v56, v57
    v_mov_b32 v57, v56
    v_permlane16_swap_b32 v56, v57
    v_max_f32 v56, v56, v57
    v_mov_b32 v57, v56
    v_permlane32_swap_b32 v56, v57
    v_max_f32 v56, v56, v57
    s_mov_b64 exec, 15
    ds_write_b32 v12, v56
    """)
    cflag(C_MAX)
    wait(0xff0, C_MAX)
    a(f"""
    ds_read_b128 v[44:47], v9
    ds_read_b128 v[48:51], v9 offset:16
    s_mov_b32 s56, {LOG2E}
    s_waitcnt lgkmcnt(0)
    v_max3_f32 v56, v44, v45, v46
    v_max3_f32 v57, v47, v48, v49
    v_max3_f32 v56, v56, v50, v51
    v_max_f32 v56, v56, v57           ; m
    v_mul_f32 v57, s56, v56
    """)
    for i in range(8): a(f"v_fma_f32 v{36+i}, v{36+i}, s56, -v57")
    for i in range(8): a(f"v_exp_f32 v{36+i}, v{36+i}")
    pack(36, 32, 4)
    exmask16(0xf)
    a("ds_write_b128 v14, v[32:35]")
    cflag(C_P)
    a(f"""
    v_and_b32 v9, 7, v8
    v_xor_b32 v9, s55, v9
    v_lshlrev_b32 v9, 5, v9
    v_add_u32 v9, v9, v11
    v_lshl_add_u32 v9, v8, 8, v9
    v_add_u32 v9, {V_L}, v9
    v_lshlrev_b32 v12, 14, v1
    v_lshl_add_u32 v12, v2, 4, v12    ; o publish: head*16384 + g*16
    s_lshl_b32 s56, s49, 16
    s_lshl_b32 s57, s50, 9
    s_add_u32 s56, s56, s57
    s_lshl_b32 s57, s55, 6
    s_add_u32 s56, s56, s57
    s_add_u32 s56, s56, {OA}          ; o publish soffset
    s_add_u32 s56, s56, s98
    """)
    if cfg.pretouch == 'st':
        a("s_xor_b32 s57, s45, 0xff")
        for i in range(4): a(f"v_mov_b32 v{76+i}, s57")
        exmask16(0xf)
        a("buffer_store_dwordx4 v[76:79], v12, s[32:35], s56 offen\ns_mov_b64 exec, -1")
    elif cfg.pretouch:
        exmask16(0xf)
        a("buffer_load_dword v125, v12, s[32:35], s56 offen\ns_mov_b64 exec, -1")
    wait(0xff0, C_P)
    for kb in range(8): a(f"ds_read_b128 v[{16+4*kb}:{19+4*kb}], v13 offset:{kb*256}")
    a("s_waitcnt lgkmcnt(0)")
    stamp(6)
    if 'z' in cfg.abl: a("s_endpgm")
    a("s_cmp_lg_u32 s55, 3\ns_cbranch_scc1 L_nol")
    for i in range(4): a(f"v_mov_b32 v{52+i}, 0x3f803f80")
    for kb in range(8):
        a(f"v_mfma_f32_16x16x32_bf16 v[60:63], v[52:55], v[{16+4*kb}:{19+4*kb}], {'0' if kb==0 else 'v[60:63]'}")
    a(f"""
    v_lshlrev_b32 v13, 9, v0
    s_lshl_b32 s57, s49, 11
    s_lshl_b32 s58, s50, 4
    s_add_u32 s57, s57, s58
    s_add_u32 s57, s57, {MA}
    s_add_u32 s57, s57, s98
    v_mov_b32 v58, 0
    v_mov_b32 v59, 0
    v_mov_b32 v57, v60
    """)
    tag(56, 60, 97)
    a("s_mov_b64 exec, 15")
    mstore(60, 13, 57)
    a("s_mov_b64 exec, -1")
    a("L_nol:")
    def wbl2(lab):
        a(f"s_cmp_lg_u32 s55, 7\ns_cbranch_scc1 {lab}\ns_cmp_lt_u32 s50, {cfg.wbj}\ns_cbranch_scc1 {lab}\nbuffer_wbl2 sc1\n{lab}:")
    if 'P' in cfg.wb: wbl2("L_nowb1")
    a(f"""
    v_lshrrev_b32 v10, 3, v0          ; ss
    v_and_b32 v14, 7, v0              ; gi
    v_lshlrev_b32 v13, 4, v10
    v_lshlrev_b32 v10, 9, v10
    v_lshl_add_u32 v10, v14, 4, v10
    s_lshr_b32 s60, s55, 2            ; b'
    s_and_b32 s61, s55, 3             ; dq
    s_lshl_b32 s58, s62, 1
    s_add_u32 s58, s58, s60           ; (4h+rg)*2 + b'
    s_lshl_b32 s57, s58, 8
    s_add_u32 s57, s57, {MA}
    s_add_u32 s57, s57, s98
    s_lshl_b32 s58, s58, 13
    s_lshl_b32 s91, s61, 7
    s_add_u32 s58, s58, s91
    s_add_u32 s58, s58, {OA}          ; o soffset
    s_add_u32 s58, s58, s98
    s_add_u32 s91, s58, 4096
    s_mul_i32 s60, s60, {OBS}
    s_lshl_b32 s61, s61, 6
    s_add_u32 s60, s60, s61
    s_add_u32 s60, s60, {OB}
    """)
    if cfg.trim: a("v_lshrrev_b32 v93, 2, v14\nv_and_b32 v14, 3, v14\nv_lshlrev_b32 v14, 4, v14\nv_lshl_add_u32 v14, v93, 3, v14")
    else: a("v_lshlrev_b32 v14, 3, v14")
    a(f"""
    v_lshl_add_u32 v14, v2, 1, v14
    v_add_u32 v14, s60, v14
    ; projection-stage addresses
    v_and_b32 v93, 1, v1
    v_mul_u32_u24 v90, {OBS}, v93
    v_lshl_add_u32 v90, v2, {4 if cfg.trim else 3}, v90
    v_add_u32 v90, {OB}, v90          ; o operand
    v_mul_u32_u24 v91, {HBS}, v93
    v_lshl_add_u32 v91, v2, 3, v91
    v_add_u32 v91, {HB}, v91          ; h operand
    v_add_u32 v15, {WO_L}, v15
    """)
    if cfg.tr: a("v_bfe_u32 v93, v0, 3, 1\nv_and_b32 v92, 7, v0\nv_lshlrev_b32 v92, 4, v92\nv_lshl_add_u32 v92, v93, 12, v92")
    else: a("v_lshlrev_b32 v92, 15, v93\nv_bfe_u32 v93, v1, 1, 1\nv_lshl_add_u32 v92, v93, 6, v92\nv_lshl_add_u32 v92, v2, 4, v92    ; b*32768 + kind*64 + g*16")
    a(f"""
    v_cmp_ne_u32 s[60:61], 0, v93
    s_lshl_b32 s92, s51, 16
    """)
    if cfg.tr: a("s_lshl_b32 s93, s55, 14")
    else: a("s_and_b32 s93, s55, 2\ns_lshl_b32 s93, s93, 1\ns_and_b32 s59, s55, 1\ns_or_b32 s93, s93, s59\ns_lshl_b32 s93, s93, 12")
    a(f"""
    s_add_u32 s92, s92, s93
    s_lshl_b32 s93, s62, 7
    s_add_u32 s92, s92, s93
    s_add_u32 s92, s92, {cfg.fr}
    """)
    if cfg.preF == 'st':
        a("s_cmp_ge_u32 s55, 4\ns_cbranch_scc1 L_nops")
        exmask16(0xf)
        a(f"v_mov_b32 v96, 0\nv_mov_b32 v97, 0\nv_mov_b32 v98, 0\nv_mov_b32 v99, 0\nbuffer_store_dwordx4 v[96:99], v92, s[32:35], s92 offen {cfg.fst}\ns_mov_b64 exec, -1\nL_nops:")
    a(f"""
    v_mov_b32 v94, 0
    s_mov_b64 exec, {'0xf' if cfg.hearly else '0x20f'}
    v_mov_b32 v94, {M_DN}             ; thresholds: down tile landed, h written (M_DN == C_H)
    s_mov_b64 exec, -1
    """)
    assert M_DN == C_H
    def pv(m):
        for kk in range(2):
            kb = 2*m + kk
            for t in range(2):
                r = 64 + 4*kk + 2*t
                a(f"ds_read_b64_tr_b16 v[{r}:{r+1}], v9 offset:{kb*8192+t*4096}")
        for kk in range(2):
            kb = 2*m + kk
            a(f"s_waitcnt lgkmcnt({2 if kk == 0 and not cfg.diag else 0})")
            a(f"v_mfma_f32_16x16x32_bf16 v[72:75], v[{64+4*kk}:{67+4*kk}], v[{16+4*kb}:{19+4*kb}], {'0' if kb==0 else 'v[72:75]'}")
    ml = [(80, 13, 0, 0), (84, 13, 0, 128)]
    hl = [(96+4*k if k < 6 else 48+4*(k-6), 7, k//4, (k % 4)*1024) for k in range(8)]
    a(f"""
    s_cmp_lg_u32 s55, 5
    s_cbranch_scc1 L_noh0
    s_lshl_b32 s99, s62, 13
    s_add_u32 s99, s99, {GA}
    s_add_u32 s99, s99, s98
    s_add_u32 s100, s99, 4096
    """)
    hp = [hl[i*8//cfg.hsplit:(i+1)*8//cfg.hsplit] for i in range(cfg.hsplit)]
    issue(hp[0], [99, 100])
    a("L_noh0:")
    def hpiece(i):
        if i < len(hp):
            a(f"s_cmp_lg_u32 s55, 5\ns_cbranch_scc1 L_nohp{i}")
            issue(hp[i], [99, 100])
            a(f"L_nohp{i}:")
    wait(0xf, M_V1); pv(0)
    hpiece(1)
    wait(0xf, M_V2); pv(1)
    hpiece(2)
    if cfg.mlat == 'V2': issue(ml, [57])
    def side_load():
        if cfg.side == 'auto' and cfg.force is None:
            a("v_mov_b32 v123, 0\nv_mov_b32 v122, 1")
            if cfg.sidewave != 'all': a("s_cmp_ge_u32 s55, 5\ns_cbranch_scc1 L_nosl")
            a("s_mov_b64 exec, 1\nbuffer_load_dword v122, v123, s[24:27], 0 offen sc1\ns_mov_b64 exec, -1")
            if cfg.sidewave != 'all': a("L_nosl:")
    if cfg.sideat == 'V2': side_load()
    def hblock(pre):
        a("s_cmp_lg_u32 s55, 5\ns_cbranch_scc1 L_noh")
        a(f"""
        v_bfe_u32 v124, v0, 4, 1
        v_mul_u32_u24 v124, {HBS}, v124
        v_lshl_add_u32 v124, v1, 3, v124
        v_lshrrev_b32 v56, 5, v0
        v_lshl_add_u32 v124, v56, 2, v124
        v_add_u32 v124, {HB}, v124
        """)
        poll(hl, [99, 100], pre_issued=pre, last=96, masked=True)
        for (r, _, _, _) in hl: a(f"v_and_b32 v{r+3}, v{r+3}, v3")
        b = 96
        def pka(d, x, y):
            for i in (0, 2): a(f"v_pk_add_f32 v[{d+i}:{d+i+1}], v[{x+i}:{x+i+1}], v[{y+i}:{y+i+1}]")
        pka(b, b, b+4); pka(b+8, b+8, b+12); pka(b+16, b+16, b+20); pka(48, 48, 52)
        pka(b, b, b+8); pka(b+16, b+16, 48); pka(b, b, b+16)
        a(f"v_permlane32_swap_b32 v{b}, v{b+2}\nv_permlane32_swap_b32 v{b+1}, v{b+3}")
        for i in range(4): rbf(b+i)
        for i in range(2): a(f"v_mul_f32 v{b+i}, 0xbfb8aa3b, v{b+i}")
        for i in range(2): a(f"v_exp_f32 v{b+i}, v{b+i}")
        for i in range(2): a(f"v_add_f32 v{b+i}, 1.0, v{b+i}")
        for i in range(2): a(f"v_rcp_f32 v{b+i}, v{b+i}")
        for i in range(2): rbf(b+i)
        for i in range(2): a(f"v_mul_f32 v{b+i}, v{b+i}, v{b+2+i}")
        pack(b, 56, 1)
        a("ds_write_b32 v124, v56")
        if not cfg.hearly: cflag(C_H)
        else: a("s_waitcnt lgkmcnt(0)")
        a("L_noh:")
    wait(0xf, M_V3); pv(2)
    if cfg.mlat == 'V3': issue(ml, [57])
    if cfg.hearly: hblock(2)
    if cfg.sideat == 'V3': side_load()
    stamp(7)
    if 'v' in cfg.abl: a("s_endpgm")
    a("s_barrier")
    stamp(8)
    pv(3)
    if cfg.trim:
        exmask16(0xf)
        a(f"v_mov_b32 v5, {C_PUB}\ns_cmp_lg_u32 s98, 0")
        tag(72, 76, 97)
        a("s_cbranch_scc1 L_ofar\nbuffer_store_dwordx4 v[76:79], v12, s[32:35], s56 offen\nL_ostored:")
        if cfg.bp: a("s_barrier\ns_mov_b64 exec, -1")
        else: a("s_mov_b64 exec, 1\nds_write_b32 v6, v5\ns_mov_b64 exec, -1")
    else:
        tag(72, 76, 97)
        exmask16(0xf)
        mstore(76, 12, 56)
        cflag(C_PUB)
    tstamp(1)
    if not cfg.hearly: hblock(1)
    def weights(pre):
        poll(ml, [57], pre_issued=pre)
        a(f"""
        s_mov_b32 s59, {LOG2E}
        v_max_f32 v88, v80, v84
        v_max_f32_dpp v88, v88, v88 row_ror:8 row_mask:0xf bank_mask:0xf
        v_mov_b32 v89, v88
        v_permlane16_swap_b32 v88, v89
        v_max_f32 v88, v88, v89
        v_mov_b32 v89, v88
        v_permlane32_swap_b32 v88, v89
        v_max_f32 v88, v88, v89
        v_sub_f32 v80, v80, v88
        v_sub_f32 v84, v84, v88
        v_mul_f32 v80, s59, v80
        v_mul_f32 v84, s59, v84
        v_exp_f32 v80, v80
        v_exp_f32 v84, v84
        v_mul_f32 v88, v80, v81
        v_fmac_f32 v88, v84, v85
        v_add_f32_dpp v88, v88, v88 row_ror:8 row_mask:0xf bank_mask:0xf
        v_mov_b32 v89, v88
        v_permlane16_swap_b32 v88, v89
        v_add_f32 v88, v88, v89
        v_mov_b32 v89, v88
        v_permlane32_swap_b32 v88, v89
        v_add_f32 v88, v88, v89
        v_rcp_f32 v88, v88
        v_mul_f32 v80, v80, v88
        v_mul_f32 v84, v84, v88
        """)
        if cfg.side == 'auto' and cfg.force is None:
            a(f"""
            s_mov_b32 s59, 0
    L_side:
            v_readfirstlane_b32 s29, v122
            s_add_u32 s59, s59, 1
            s_cmp_lg_u32 s29, 0
            s_cbranch_scc1 L_sideok
            s_cmp_ge_u32 s59, {cfg.NMAX}
            s_cbranch_scc1 L_sideok
            buffer_load_dword v122, v123, s[24:27], 0 offen sc1
            s_waitcnt vmcnt(0)
            s_branch L_side
    L_sideok:
            s_and_b32 s29, s29, 2
            s_lshl_b32 s29, s29, 12
            """)
        else: a(f"s_mov_b32 s29, {(cfg.side if cfg.force is None else cfg.force)*8192}")
        a("s_add_u32 s92, s92, s29\ns_add_u32 s28, s28, s29")
    if not cfg.afirst: weights(1)
    tstamp(2)
    if not cfg.bp: wait(0xff0, C_PUB)
    tstamp(3)
    oA = [(16, 10, 0, 0), (20, 10, 1, 0)]
    def reduce_scatter(r):
        a(f"""
        v_permlane32_swap_b32 v{r}, v{r+2}
        v_permlane32_swap_b32 v{r+1}, v{r+3}
        v_add_f32 v{r}, v{r}, v{r+2}
        v_add_f32 v{r+1}, v{r+1}, v{r+3}
        v_permlane16_swap_b32 v{r}, v{r+1}
        v_add_f32 v{r}, v{r}, v{r+1}
        v_add_f32_dpp v{r}, v{r}, v{r} row_ror:8 row_mask:0xf bank_mask:0xf
        """)
    if not cfg.tail2:
        poll([(16, 10, 0, 0), (20, 10, 1, 0)], [58, 91], t=95)
        stamp(9)
        a("ds_read_b32 v5, v4")
        for i in range(4): a(f"v_mul_f32 v{16+i}, v{16+i}, v80")
        for i in range(4): a(f"v_fmac_f32 v{16+i}, v{20+i}, v84")
        reduce_scatter(16)
        a("v_cvt_pk_bf16_f32 v16, v16, v16\nds_write_b16 v14, v16")
        a("s_cmp_ge_u32 s55, 4\ns_cbranch_scc1 L_final")
        a(f"s_waitcnt lgkmcnt({0 if cfg.diag else 1})\nv_cmp_gt_u32 vcc, v94, v5\ns_cbranch_vccz L_tiles")
        spin(5, 4, None, "v94")
        a("L_tiles:")
        tstamp(4)
        for k in range(2): a(f"ds_read2_b64 v[{56+4*k}:{59+4*k}], v91 offset0:{8*k} offset1:{8*k+4}")
        for k in range(2):
            for t in range(2): a(f"ds_read_b64_tr_b16 v[{32+4*k+2*t}:{33+4*k+2*t}], v15 offset:{16384+k*4096+t*2048}")
        for k in range(4):
            for t in range(2): a(f"ds_read_b64_tr_b16 v[{96+4*k+2*t}:{97+4*k+2*t}], v15 offset:{k*4096+t*2048}")
        a(f"s_waitcnt lgkmcnt({0 if cfg.diag else 14})\ns_barrier")
        stamp(10)
        a("s_waitcnt lgkmcnt(11)")
        for k in range(4): a(f"ds_read2_b64 v[{40+4*k}:{43+4*k}], v90 offset0:{8*k} offset1:{8*k+4}")
        a(f"s_waitcnt lgkmcnt({0 if cfg.diag else 12})")
        for k in range(2):
            a(f"v_mfma_f32_16x16x32_bf16 v[68:71], v[{32+4*k}:{35+4*k}], v[{56+4*k}:{59+4*k}], {'0' if k==0 else 'v[68:71]'}")
        for k in range(4):
            a(f"s_waitcnt lgkmcnt({0 if cfg.diag else 3-k})")
            a(f"v_mfma_f32_16x16x32_bf16 v[64:67], v[{96+4*k}:{99+4*k}], v[{40+4*k}:{43+4*k}], {'0' if k==0 else 'v[64:67]'}")
        exmask16(0xf)
        for i in range(4): a(f"v_cndmask_b32 v{64+i}, v{64+i}, v{68+i}, s[60:61]")
        tag(64, 68, 48)
        a(f"buffer_store_dwordx4 v[68:71], v92, s[32:35], s92 offen {cfg.fst}")
    else:
        if not cfg.atrig: issue(oA, [58, 91], cfg.apol)
        if cfg.afirst: weights(3)
        a(f"s_cmp_ge_u32 s55, 4\ns_cbranch_scc1 {'L_upA' if cfg.atrig else 'L_nopre'}")
        for i in range(40, 64): a(f"v_mov_b32 v{i}, 0")
        if not cfg.prog and not cfg.dnearly: wait(0xf, M_END)
        spin(5, 4, None, "v94")
        exmask16(0xc)
        for k in range(2): a(f"ds_read2_b64 v[{56+4*k}:{59+4*k}], v91 offset0:{8*k} offset1:{8*k+4}")
        a("s_mov_b64 exec, -1")
        for k in range(2):
            for t in range(2): a(f"ds_read_b64_tr_b16 v[{32+4*k+2*t}:{33+4*k+2*t}], v15 offset:{16384+k*4096+t*2048}")
        if cfg.atrig:
            wait(0xf, M_W2)
            issue(oA, [58, 91])
        if cfg.dnearly:
            wait(0xf, M_END)
            for kk in range(0 if cfg.trim2 else 2):
                pm(64, 32+4*kk, 56+4*kk, '0' if kk==0 else 'v[64:67]')
        for k in range(4):
            if cfg.prog:
                wait(0xf, M_W1 + k)
                if k == 0:
                    for kk in range(2):
                        pm(64, 32+4*kk, 56+4*kk, '0' if kk==0 else 'v[64:67]')
            if k == 3: tstamp(4)
            for t in range(2): a(f"ds_read_b64_tr_b16 v[{96+4*k+2*t}:{97+4*k+2*t}], v15 offset:{k*4096+t*2048}")
        if cfg.dnearly and cfg.trim2:
            for kk in range(2):
                pm(64, 32+4*kk, 56+4*kk, '0' if kk==0 else 'v[64:67]')
        a("L_nopre:")
        if cfg.fuse:
            a("s_mov_b32 s59, 0\ns_waitcnt vmcnt(0)")
            tstamp(5)
            a("L_ochk:")
            for k, r in enumerate((16, 20)):
                for i in range(4): a(f"v_xor_b32 v{r+i}, s{45+i if i < 3 else 97}, v{r+i}")
            a("""
L_ocomb:
            v_pk_mul_f32 v[24:25], v[16:17], v[80:81] op_sel_hi:[1,0]
            v_pk_mul_f32 v[26:27], v[18:19], v[80:81] op_sel_hi:[1,0]
            v_pk_fma_f32 v[24:25], v[20:21], v[84:85], v[24:25] op_sel_hi:[1,0,1]
            v_pk_fma_f32 v[26:27], v[22:23], v[84:85], v[26:27] op_sel_hi:[1,0,1]
            v_or3_b32 v5, v16, v17, v18
            v_or3_b32 v5, v5, v19, v20
            v_permlane32_swap_b32 v24, v26
            v_permlane32_swap_b32 v25, v27
            v_add_f32 v24, v24, v26
            v_add_f32 v25, v25, v27
            v_or3_b32 v5, v5, v21, v22
            v_or_b32 v5, v5, v23
            v_permlane16_swap_b32 v24, v25
            v_add_f32 v24, v24, v25
            v_and_b32 v5, 0xff, v5
            v_cmp_ne_u32 vcc, 0, v5
            v_add_f32_dpp v24, v24, v24 row_ror:8 row_mask:0xf bank_mask:0xf
            v_cvt_pk_bf16_f32 v24, v24, v24
            s_cbranch_vccnz L_oretry
L_ogood:
            ds_write_b16 v14, v24
            """)
            stamp(9)
            if cfg.diag == 2: a("s_mov_b32 s76, s59")
        else:
            if not cfg.omask: poll(oA, [58, 91], pre_issued=0)
            else:
                a("s_waitcnt vmcnt(0)")
                check([16, 20])
                a("s_cbranch_vccz L_ook\ns_mov_b32 s59, 0")
                for k, r in enumerate((16, 20)):
                    a(f"v_or3_b32 v5, v{r}, v{r+1}, v{r+2}\nv_or_b32 v5, v5, v{r+3}\nv_and_b32 v5, 0xff, v5\nv_cmp_ne_u32 s[{4+2*k}:{5+2*k}], 0, v5")
                a("L_om:")
                for k, (r, so) in enumerate(((16, 58), (20, 91))):
                    a(f"s_mov_b64 exec, s[{4+2*k}:{5+2*k}]\ns_cbranch_execz L_oms{k}\nbuffer_load_dwordx4 v[{r}:{r+3}], v10, s[32:35], s{so} offen sc1\nL_oms{k}:")
                a("s_add_u32 s59, s59, 1\ns_waitcnt vmcnt(0)")
                for k, r in enumerate((16, 20)):
                    a(f"s_mov_b64 exec, s[{4+2*k}:{5+2*k}]")
                    check([r])
                    a(f"s_mov_b64 s[{4+2*k}:{5+2*k}], vcc")
                a(f"s_or_b64 s[8:9], s[4:5], s[6:7]\ns_cbranch_scc0 L_omd\ns_cmp_lt_u32 s59, {cfg.NMAX}\ns_cbranch_scc1 L_om\nL_omd:\ns_mov_b64 exec, -1\nL_ook:")
            stamp(9)
            for i in range(0, 4, 2): a(f"v_pk_mul_f32 v[{16+i}:{17+i}], v[{16+i}:{17+i}], v[80:81] op_sel_hi:[1,0]")
            for i in range(0, 4, 2): a(f"v_pk_fma_f32 v[{16+i}:{17+i}], v[{20+i}:{21+i}], v[84:85], v[{16+i}:{17+i}] op_sel_hi:[1,0,1]")
            reduce_scatter(16)
            a("v_cvt_pk_bf16_f32 v16, v16, v16\nds_write_b16 v14, v16")
        a("s_cmp_ge_u32 s55, 4\ns_cbranch_scc1 L_final")
        if not cfg.prog and not cfg.dnearly:
            a("s_waitcnt lgkmcnt(9)")
            for k in range(2):
                a(f"v_mfma_f32_16x16x32_bf16 v[64:67], v[{32+4*k}:{35+4*k}], v[{56+4*k}:{59+4*k}], {'0' if k==0 else 'v[64:67]'}")
        exmask16(0x3)
        a("s_waitcnt lgkmcnt(0)\ns_barrier")
        stamp(10)
        for k in range(4):
            if cfg.trim: a(f"ds_read_b128 v[{40+4*k}:{43+4*k}], v90 offset:{64*k}")
            else: a(f"ds_read2_b64 v[{40+4*k}:{43+4*k}], v90 offset0:{8*k} offset1:{8*k+4}")
        a("s_mov_b64 exec, -1")
        for k in range(4):
            a(f"s_waitcnt lgkmcnt({0 if cfg.diag else 3-k})")
            pm(64, 96+4*k, 40+4*k, 'v[64:67]')
        if cfg.tr: a("s_mov_b64 exec, 0xffff")
        else: exmask16(0xf)
        tag(64, 68, 48)
        a(f"buffer_store_dwordx4 v[68:71], v92, s[32:35], s92 offen {cfg.fst}")
        if cfg.fwait: a("v_mov_b32 v5, 9\ns_mov_b64 exec, 1\nds_write_b32 v6, v5")
    stamp(11)
    dump_stamps(12)
    a("s_endpgm")
    if cfg.atrig:
        a("L_upA:")
        wait(0xf, M_W2)
        issue(oA, [58, 91])
        a("s_branch L_nopre")
    if cfg.trim: a("L_ofar:\nbuffer_store_dwordx4 v[76:79], v12, s[32:35], s56 offen sc1\ns_branch L_ostored")
    if cfg.fuse and cfg.omask:
        a(f"L_oretry:\ns_cmp_ge_u32 s59, {cfg.NMAX}\ns_cbranch_scc1 L_ogood")
        for k, r in enumerate((16, 20)):
            a(f"v_or3_b32 v5, v{r}, v{r+1}, v{r+2}\nv_or_b32 v5, v5, v{r+3}\nv_and_b32 v5, 0xff, v5\nv_cmp_ne_u32 s[{4+2*k}:{5+2*k}], 0, v5")
        a("L_om:")
        for k, (r, so) in enumerate(((16, 58), (20, 91))):
            a(f"s_mov_b64 exec, s[{4+2*k}:{5+2*k}]\ns_cbranch_execz L_oms{k}\nbuffer_load_dwordx4 v[{r}:{r+3}], v10, s[32:35], s{so} offen sc1\nL_oms{k}:")
        a("s_add_u32 s59, s59, 1\ns_waitcnt vmcnt(0)")
        for k, r in enumerate((16, 20)):
            a(f"s_mov_b64 exec, s[{4+2*k}:{5+2*k}]")
            check([r])
            a(f"s_mov_b64 s[{4+2*k}:{5+2*k}], vcc")
        a(f"s_or_b64 s[8:9], s[4:5], s[6:7]\ns_mov_b64 exec, -1\ns_cbranch_scc0 L_ocomb\ns_cmp_lt_u32 s59, {cfg.NMAX}\ns_cbranch_scc1 L_om\ns_branch L_ocomb")
    elif cfg.fuse:
        a(f"L_oretry:\ns_add_u32 s59, s59, 1\ns_cmp_ge_u32 s59, {cfg.NMAX}\ns_cbranch_scc1 L_ogood")
        issue(oA, [58, 91], cfg.rpol)
        a("s_waitcnt vmcnt(0)\ns_branch L_ochk")
    a("L_final:\ns_waitcnt lgkmcnt(0)\ns_barrier")
    stamp(10)
    if 'O' in cfg.wb: wbl2("L_nowb2")
    a("s_cmp_lg_u32 s55, 4\ns_cbranch_scc1 L_fin_exit\ns_cmp_lg_u32 s22, 0\ns_cbranch_scc1 L_fin_exit")
    a("s_mov_b32 s57, s28\ns_mov_b32 s59, 0")
    if cfg.fwait: wait(0xf0, 9)
    def fsum(b, d):
        if cfg.pkadd:
            for i in (0, 2): a(f"v_pk_add_f32 v[{b+i}:{b+i+1}], v[{b+i}:{b+i+1}], v[{b+4+i}:{b+5+i}]\nv_pk_add_f32 v[{b+8+i}:{b+9+i}], v[{b+8+i}:{b+9+i}], v[{b+12+i}:{b+13+i}]")
            for i in (0, 2): a(f"v_pk_add_f32 v[{d+i}:{d+i+1}], v[{b+i}:{b+i+1}], v[{b+8+i}:{b+9+i}]")
        else:
            for i in range(4): a(f"v_add_f32 v{b+i}, v{b+i}, v{b+4+i}\nv_add_f32 v{b+8+i}, v{b+8+i}, v{b+12+i}")
            for i in range(4): a(f"v_add_f32 v{d+i}, v{b+i}, v{b+8+i}")
    def fissue(base):
        for k in range(4): a(f"buffer_load_dwordx4 v[{base+4*k}:{base+3+4*k}], v7, s[32:35], s57 offen offset:{k*1024} {cfg.fld}")
    if cfg.fmode == 'plain':
        a("L_fp:")
        fissue(16)
        a("s_add_u32 s59, s59, 1\ns_waitcnt vmcnt(0)")
        if cfg.diag == 2:
            a("s_cmp_lg_u32 s59, 1\ns_cbranch_scc1 L_nf1")
            tstamp(5)
            a("L_nf1:")
        check([16, 20, 24, 28], 48)
        a(f"s_cbranch_vccz L_fok\ns_cmp_lt_u32 s59, {cfg.NMAX}\ns_cbranch_scc1 L_fp\nL_fok:")
        if cfg.diag == 2: a("s_mov_b32 s76, s59")
    elif cfg.fmode == 'pipe' and cfg.trim:
        def fcheck(b):
            for k in range(4):
                for i in range(4): a(f"v_xor_b32 v{b+4*k+i}, s{45+i}, v{b+4*k+i}")
            for i in (0, 2): a(f"v_pk_add_f32 v[{52+i}:{53+i}], v[{b+i}:{b+i+1}], v[{b+4+i}:{b+5+i}]\nv_pk_add_f32 v[{56+i}:{57+i}], v[{b+8+i}:{b+9+i}], v[{b+12+i}:{b+13+i}]")
            a(f"""
            v_or3_b32 v5, v{b}, v{b+1}, v{b+2}
            v_pk_add_f32 v[48:49], v[52:53], v[56:57]
            v_pk_add_f32 v[50:51], v[54:55], v[58:59]
            v_or3_b32 v5, v5, v{b+3}, v{b+4}
            v_or3_b32 v5, v5, v{b+5}, v{b+6}
            v_permlane32_swap_b32 v48, v{49 if cfg.tr else 50}
            v_permlane32_swap_b32 v{50 if cfg.tr else 49}, v51
            v_add_f32 v48, v48, v{49 if cfg.tr else 50}
            v_add_f32 v49, v{50 if cfg.tr else 49}, v51
            v_or3_b32 v5, v5, v{b+7}, v{b+8}
            v_or3_b32 v5, v5, v{b+9}, v{b+10}
            v_permlane16_swap_b32 v48, v49
            v_add_f32 v48, v48, v49
            v_or3_b32 v5, v5, v{b+11}, v{b+12}
            v_or3_b32 v5, v5, v{b+13}, v{b+14}
            v_add_f32_dpp v48, v48, v48 row_ror:8 row_mask:0xf bank_mask:0xf
            v_or_b32 v5, v5, v{b+15}
            v_and_b32 v5, 0xff, v5
            v_cmp_ne_u32 vcc, 0, v5
            {"v_mov_b32 v49, v48" if cfg.tr else "v_mov_b32_dpp v49, v48 row_ror:4 row_mask:0xf bank_mask:0xf"}
            """)
        a("v_lshlrev_b32 v121, 16, v121")
        fissue(16)
        a("L_fp:")
        fissue(32)
        a("s_add_u32 s59, s59, 1\ns_waitcnt vmcnt(4)")
        fcheck(16)
        a("s_cbranch_vccz L_fok")
        fissue(16)
        a("s_waitcnt vmcnt(4)")
        fcheck(32)
        a(f"s_cbranch_vccz L_fok\ns_cmp_lt_u32 s59, {cfg.NMAX}\ns_cbranch_scc1 L_fp\nL_fok:")
    elif cfg.fmode == 'pipe':
        fissue(16)
        a("L_fp:")
        fissue(32)
        a("s_add_u32 s59, s59, 1\ns_waitcnt vmcnt(4)")
        check([16, 20, 24, 28], 48)
        a("s_cbranch_vccz L_fok")
        fissue(16)
        a("s_waitcnt vmcnt(4)")
        check([32, 36, 40, 44], 48)
        a(f"s_cbranch_vccz L_fok2\ns_cmp_lt_u32 s59, {cfg.NMAX}\ns_cbranch_scc1 L_fp\nL_fok2:")
        stamp(11)
        fsum(32, 48)
        a("s_branch L_fmath\nL_fok:")
    elif cfg.fmode == 'mask':
        for k in range(4): a(f"s_mov_b64 s[{4+2*k}:{5+2*k}], -1")
        a("L_fp:")
        for k in range(4):
            a(f"s_mov_b64 exec, s[{4+2*k}:{5+2*k}]\ns_cbranch_execz L_fs{k}\nbuffer_load_dwordx4 v[{16+4*k}:{19+4*k}], v7, s[32:35], s57 offen offset:{k*1024} {cfg.fld}\nL_fs{k}:")
        a("s_add_u32 s59, s59, 1\ns_waitcnt vmcnt(0)")
        for k in range(4):
            a(f"s_mov_b64 exec, s[{4+2*k}:{5+2*k}]")
            check([16+4*k], 48)
            a(f"s_mov_b64 s[{4+2*k}:{5+2*k}], vcc")
        a(f"s_or_b64 s[12:13], s[4:5], s[6:7]\ns_or_b64 s[14:15], s[8:9], s[10:11]\ns_or_b64 s[12:13], s[12:13], s[14:15]\ns_cbranch_scc0 L_fok\ns_cmp_lt_u32 s59, {cfg.NMAX}\ns_cbranch_scc1 L_fp\nL_fok:\ns_mov_b64 exec, -1")
    stamp(11)
    if not cfg.trim:
        fsum(16, 48)
        a("L_fmath:")
        reduce_scatter(48)
        a("v_mov_b32_dpp v49, v48 row_ror:4 row_mask:0xf bank_mask:0xf\nv_lshlrev_b32 v121, 16, v121")
    if cfg.trim2:
        if cfg.tr: a("s_nop 0\nv_permlane16_swap_b32 v48, v49")
        a("v_cvt_pk_bf16_f32 v49, 0, v49\nv_cvt_pk_bf16_f32 v48, 0, v48")
        outmask()
    else: a("v_cvt_pk_bf16_f32 v48, v48, v49\nv_and_b32 v49, 0xffff0000, v48\nv_lshlrev_b32 v48, 16, v48")
    a(f"""
    v_mul_f32 v50, 0xbfb8aa3b, v49
    v_exp_f32 v50, v50
    v_add_f32 v50, 1.0, v50
    v_rcp_f32 v50, v50
    v_mul_f32 v49, v49, v50
    """)
    rbf(49)
    a("v_mul_f32 v48, v48, v49")
    rbf(48)
    a("v_add_f32 v48, v121, v48\nv_cvt_pk_bf16_f32 v48, v48, v48")
    if not cfg.trim2: exmask16(0xf)
    a(f"buffer_store_short v48, v120, s[40:43], s31 offen {cfg.outpol}")
    a("s_cmp_lg_u32 s30, 0\ns_cbranch_scc1 L_fin_exit\nv_mov_b32 v52, s44\nv_mov_b32 v53, 0\ns_mov_b64 exec, 1\nbuffer_store_dword v52, v53, s[32:35], 0 offen " + cfg.epol)
    if cfg.amp:
        a("s_memrealtime s[88:89]\ns_waitcnt lgkmcnt(0)")
        i, k = cfg.amp
        if i is None: a(f"s_add_u32 s90, s64, {k}")
        else: a(f"s_sub_u32 s90, s{64+2*i}, s64\ns_mul_i32 s90, s90, {k}\ns_add_u32 s90, s90, s64")
        a("L_amp:\ns_memrealtime s[92:93]\ns_waitcnt lgkmcnt(0)\ns_sub_u32 s91, s92, s90\ns_cmp_lt_i32 s91, 0\ns_cbranch_scc1 L_amp")
    a("L_fin_exit:")
    stamp(12)
    dump_stamps(13)
    a("L_exit:\ns_endpgm\nL_codeend:")
    body = a.text()
    head = f"""; Fused decode step: layernorm -> (q projection, sliding-window GQA attention, o projection) gated by a GLU branch.
; One launch, 256 workgroups of 12 waves: waves 0-3 stream weights and K/V into LDS, waves 4-11 compute.
; @launch grid=(256,1,1) block=(768,1,1) lds=163840
.amdgcn_target "amdgcn-amd-amdhsa--gfx950"
.text
.globl {NAME}
.p2align 8
.type {NAME},@function
{NAME}:
"""
    tail = f"""
.section .rodata,"a"
.p2align 6
.amdhsa_kernel {NAME}
  .amdhsa_next_free_vgpr 128
  .amdhsa_next_free_sgpr 102
  .amdhsa_accum_offset 128
  .amdhsa_group_segment_fixed_size 0
  .amdhsa_kernarg_size 96
  .amdhsa_user_sgpr_count 2
  .amdhsa_user_sgpr_kernarg_segment_ptr 1
  .amdhsa_system_sgpr_workgroup_id_x 1
  .amdhsa_float_denorm_mode_32 3
.end_amdhsa_kernel
"""
    return head + body + tail

if __name__ == "__main__":
    kw = {}
    out = "recurrent_scan__sliding_block_cached__glu_gated_glu__decode.s"
    for arg in sys.argv[1:]:
        if arg.startswith("out="): out = arg[4:]; continue
        k, v = arg.split("=")
        try: v = eval(v)
        except Exception: pass
        kw[k] = v
    open(out, "w").write(gen(Cfg(**kw)))
    print("wrote", out)
```

```python
import sys
from asmlib import Asm

NAME = "recurrent_scan__sliding_block_cached__glu_gated_glu__decode_kernel"

K_L, V_L = 0, 65536
WQ_L, G_L, U_L = 98304, 114688, 122880
WO_L, DN_L = 131072, 147456
SM = 155648
FLAGS, MX, HB, OB, QB, XN, PB = SM, SM+64, SM+256, SM+640, SM+1280, SM+2560, SM+4864
HBS, OBS, QBS, XNS = 192, 320, 320, 1088
QA, GA, MA, OA, MIR, FR, DIAG = 0x10000, 0x30000, 0x70000, 0x80000, 0x100000, 0x200000, 0x400000
WS_BYTES = 0x8000000
PROBE = 0x80000
LOG2E = "0x3fb8aa3b"
OOB = 0x40000000
M_X, M_WQ, M_GU, M_K, M_V1, M_V2, M_V3, M_DN, M_W1, M_W2, M_W3, M_END = 1, 2, 3, 4, 5, 6, 7, 8, 9, 10, 11, 12
C_XN, C_TILE, C_Q, C_MAX, C_P, C_PUB, C_H = 1, 2, 3, 4, 5, 6, 8

class Cfg:
    D = 6
    D0 = None
    diag = False
    N0 = 64
    NMAX = 400000
    perm = "s"
    pf = 'c'
    safe = False
    pol = 'nt'
    prio = 2
    kvmap = 'contig'
    fmode = 'pipe'
    near_pol = ''
    cgshift = 0
    probe = None
    side = 'auto'
    adapt = None
    lprio = 3
    earlywar = True
    abl = ''
    prog = False
    dnpos = 4
    wopos = 0
    dnearly = True
    omask = False
    outpol = ''
    race = 0
    rstep = 256
    rank = 0
    hsplit = 1
    fuse = True
    trim = True
    trim2 = True
    epol = 'sc1'
    xmode = 'dup'
    nsets = 2
    strict = None
    Dsched = None
    spf = ''
    spfw = (0, 22)
    spfh = 1
    spfb = 8
    bp = True
    hold = (44, 8)
    apol = 'sc1'
    rpol = 'sc1'
    gpol = 'sc1'
    mlat = 'V3'
    atrig = None
    afirst = False
    hearly = True
    tr = True
    cmap = True
    mir = 0x200000
    fwait = False
    tlb = ''
    pkadd = True
    rounds = 1
    fin = 0
    force = None
    sidewave = 'five'
    sideat = 'V2'
    leader = None
    qtrig = 3
    fmap = None
    tail2 = True
    Dk = 5
    Dv = None
    Dt = 5
    kv = [x << 10 for x in [8,16,1,512,4,2,64,32,128,258,0,512,16,0]]
    preout = 'st'
    pre1 = False
    pretouch = False
    fst = 'sc1'
    fld = 'sc1'
    wb = ''
    wbj = 31
    preF = 'split'
    preFpol = 'sc1'
    fr = 0x100000
    streamonly = False
    amp = None
    def __init__(self, **kw):
        for k, v in kw.items():
            assert hasattr(self, k), k
            setattr(self, k, v)

def gen(cfg):
    global MIR
    MIR = cfg.mir
    assert not cfg.bp or (cfg.hold and cfg.trim)
    a = Asm()
    if cfg.leader is None: cfg.leader = cfg.fin ^ 0x80
    inv = ((cfg.leader ^ cfg.fin) & 4) != 0
    incompute = [False]
    def stamp(i):
        if cfg.diag == 2 and incompute[0] and 1 <= i <= 6: return
        if cfg.diag: a(f"s_memrealtime s[{64+2*i}:{65+2*i}]")
    def tstamp(i):
        if cfg.diag == 2: a(f"s_memrealtime s[{64+2*i}:{65+2*i}]")
    def dump_stamps(n):
        if not cfg.diag or cfg.amp: return
        a("s_waitcnt lgkmcnt(0)")
        a("s_mov_b64 exec, -1")
        a("v_mov_b32 v125, 0")
        for i in range(n):
            a(f"v_writelane_b32 v125, s{64+2*i}, {i}")
        a(f"s_mul_i32 s62, s2, {12*64}\ns_lshl_b32 s63, s3, 6\ns_add_u32 s62, s62, s63\ns_add_u32 s62, s62, {DIAG}")
        a("v_lshlrev_b32 v124, 2, v0\ns_mov_b64 exec, 0xffff")
        a("buffer_store_dword v125, v124, s[32:35], s62 offen")
    def srd_tail(r, n):
        a(f"s_mov_b32 s{r+2}, {n}\ns_mov_b32 s{r+3}, 0x20000")
    def exmask16(m):
        v = hex(m | (m << 16)); a(f"s_mov_b32 exec_lo, {v}\ns_mov_b32 exec_hi, {v}")
    lab = [0]
    def L(p):
        lab[0] += 1
        return f"L{p}{lab[0]}"
    def spin(vdst, vaddr, mask, val, body=None):
        w = L("w")
        if cfg.safe: a("s_mov_b32 s94, 0")
        a(f"{w}:\nds_read_b32 v{vdst}, v{vaddr}")
        if cfg.safe: a(f"s_add_u32 s94, s94, 1\ns_bitcmp1_b32 s94, 20\ns_cbranch_scc1 {w}x")
        a("s_waitcnt lgkmcnt(0)")
        if body: body()
        a(f"v_cmp_gt_u32 vcc, {val}, v{vdst}")
        if mask is not None: a(f"s_and_b64 vcc, vcc, {hex(mask)}")
        if 's' in cfg.abl and incompute[0]: a(f"s_cbranch_vccz {w}y\ns_sleep 1\ns_branch {w}\n{w}y:")
        else: a(f"s_cbranch_vccnz {w}")
        if cfg.safe: a(f"{w}x:\ns_waitcnt lgkmcnt(0)")
    NP = cfg.near_pol
    def code_prefetch(vt, v16, dst):
        a(f"""
        s_getpc_b64 s[60:61]
L_pc:
        s_sub_u32 s60, s60, L_pc-{NAME}
        s_subb_u32 s61, s61, 0
        s_lshl_b32 s58, s51, 10
        v_add_u32 v{vt}, s58, v{v16}
        v_cmp_gt_u32 vcc, L_codeend-{NAME}-15, v{vt}
        s_and_saveexec_b64 s[58:59], vcc
        s_cbranch_execz L_nopf2
        global_load_dwordx4 v[{dst}:{dst+3}], v{vt}, s[60:61]
L_nopf2:
        s_mov_b64 exec, -1
        v_add_u32 v{vt}, 8192, v{vt}
        v_cmp_gt_u32 vcc, L_codeend-{NAME}-15, v{vt}
        s_and_saveexec_b64 s[58:59], vcc
        s_cbranch_execz L_nopf3
        global_load_dwordx4 v[{dst+4}:{dst+7}], v{vt}, s[60:61]
L_nopf3:
        s_mov_b64 exec, -1
        """)

    a(f"""
    s_load_dwordx2 s[36:37], s[0:1], 0
    s_load_dwordx2 s[12:13], s[0:1], 24
    s_cmpk_ge_u32 s2, 256
    s_cbranch_scc1 L_exit
    v_lshrrev_b32 v1, 6, v0
    v_and_b32 v0, 63, v0
    s_lshr_b32 s50, s2, 3         ; j
    v_readfirstlane_b32 s3, v1    ; wave
    s_and_b32 s49, s2, 7          ; h
    s_and_b32 s51, s50, 7         ; cg
    s_lshr_b32 s52, s50, 3        ; rg
    s_cmp_ge_u32 s3, 4
    s_cbranch_scc1 L_compute
    """)
    stamp(0)
    if cfg.adapt: a("s_memrealtime s[100:101]")
    a(f"""
    s_movk_i32 s38, 2048
    {"s_setprio %d" % cfg.lprio if cfg.lprio else ""}
    s_lshl_b32 s39, 1, 17
    v_lshlrev_b32 v9, 4, v0
    s_and_b32 s56, s3, 1
    s_lshl_b32 s57, s56, 10
    s_mulk_i32 s56, {XNS}
    """)
    if cfg.xmode == 'half': a("s_lshr_b32 s61, s3, 1\ns_lshl_b32 s61, s61, 9\ns_add_u32 s57, s57, s61\ns_add_u32 s56, s56, s61")
    a(f"""
    s_add_u32 m0, s56, {XN}
    s_lshl_b32 s14, 1, 22
    s_mov_b32 s15, s39
    v_and_b32 v2, 7, v0
    v_lshlrev_b32 v2, 4, v2
    """)
    if cfg.xmode == 'half': a("s_mov_b32 exec_hi, 0\ns_waitcnt lgkmcnt(0)\nbuffer_load_dwordx4 v9, s[36:39], s57 offen lds      ; half of x row (lw&1)\ns_mov_b32 exec_hi, -1")
    elif cfg.xmode == 'two': a("s_cmp_ge_u32 s3, 2\ns_waitcnt lgkmcnt(0)\ns_cbranch_scc1 L_nox\nbuffer_load_dwordx4 v9, s[36:39], s57 offen lds\nL_nox:")
    else: a("s_waitcnt lgkmcnt(0)\nbuffer_load_dwordx4 v9, s[36:39], s57 offen lds")
    a(f"""
    v_lshrrev_b32 v3, 4, v0
    v_lshlrev_b32 v3, 5, v3
    v_xor_b32 v2, v2, v3
    v_lshrrev_b32 v1, 3, v0            ; r = l>>3
    v_lshl_add_u32 v10, v1, 13, v2     ; wq: row stride 8192
    s_lshl4_add_u32 s55, s52, s3
    s_lshl_b32 s55, s55, 6
    s_add_u32 s55, s55, s49
    s_lshl3_add_u32 s55, s55, s51
    s_lshl_b32 s55, s55, 7
    s_lshl_b32 s61, s3, 10             ; lw*1024
    s_add_u32 m0, s61, {WQ_L}
    s_lshl_b32 s47, 1, 18
    """)
    stamp(6)
    n = [1]
    X = 1
    D = cfg.D
    D0 = cfg.D0 or D
    landed = [0]
    Dover = [None]
    miles = {}
    def flag(val):
        a(f"v_mov_b32 v21, {val}\ns_mov_b64 exec, 1\nds_write_b32 v20, v21\ns_mov_b64 exec, -1")
    def pre_issue():
        i = n[0]
        if i >= D0:
            Dn = D
            if i >= X + 8 and cfg.Dk: Dn = cfg.Dk
            if i >= X + 24 and cfg.Dv: Dn = cfg.Dv
            if cfg.Dsched:
                for frm, dep in cfg.Dsched:
                    if i >= X + frm: Dn = dep
            if i >= X + last['v3'] and cfg.Dt: Dn = cfg.Dt
            if cfg.hold and i >= X + cfg.hold[0]: Dn = cfg.hold[1]
            if Dover[0]: Dn = Dover[0]
            Dn = int(Dn) + (1 if (Dn != int(Dn) and i & 1) else 0)
            want = i - Dn + 1
            if want > landed[0]:
                a(f"s_waitcnt vmcnt({i - want})")
                landed[0] = want
                if cfg.strict and X + cfg.strict[0] <= i < X + cfg.strict[1]:
                    t = L("st")
                    a(f"s_cbranch_vccnz {t}\ns_waitcnt vmcnt({i - want - 1})\n{t}:")
    def post_issue():
        n[0] += 1
        for k in sorted(miles):
            if k <= landed[0]: miles.pop(k)()
    miles[1] = lambda: (flag(M_X), stamp(7))
    miles[X+4] = lambda: flag(M_WQ)
    miles[X+8] = lambda: flag(M_GU)
    miles[X+24] = lambda: (flag(M_K), stamp(5))
    miles[X+28] = lambda: flag(M_V1)
    miles[X+32] = lambda: flag(M_V2)
    miles[X+36] = lambda: flag(M_V3)
    miles[X+40] = lambda: (stamp(3), a("s_barrier"))
    if cfg.dnearly: miles[X+42] = lambda: flag(M_DN)
    if cfg.atrig: miles[X+cfg.atrig] = lambda: flag(M_W2)
    if cfg.prog:
        miles[X+42] = lambda: flag(M_DN)
        miles[X+43] = lambda: flag(M_W1)
        miles[X+44] = lambda: flag(M_W2)
        miles[X+45] = lambda: flag(M_W3)
    def setvcc():
        if cfg.strict: a(f"s_cmp_ge_u32 s3, {cfg.strict[2]}\ns_cselect_b64 vcc, -1, 0")
    def setup_rest():
        a("""
        s_load_dwordx2 s[20:21], s[0:1], 48
        s_load_dwordx2 s[24:25], s[0:1], 56
        s_load_dwordx2 s[4:5], s[0:1], 8
        s_load_dwordx2 s[8:9], s[0:1], 16
        s_load_dwordx2 s[28:29], s[0:1], 64
        s_load_dwordx2 s[16:17], s[0:1], 32
        """)
        if cfg.pf == 'l':
            a("s_cmp_lg_u32 s3, 3\ns_cbranch_scc1 L_nopf")
            code_prefetch(31, 9, 32)
            a("L_nopf:")
        a(f"""
        s_cmp_lg_u32 s3, 0
        s_cbranch_scc1 L_noinit
        v_lshlrev_b32 v4, 2, v0
        v_add_u32 v4, {FLAGS}, v4
        v_mov_b32 v5, 0
        s_mov_b64 exec, 0xffff
        ds_write_b32 v4, v5           ; progress flags start at zero
        s_mov_b64 exec, -1
L_noinit:
        v_mul_u32_u24 v5, 3584, v1
        v_add_u32 v11, v5, v2              ; gate/up: row stride 3584
        v_lshl_add_u32 v12, v1, 10, v2     ; wo/down: row stride 1024
        s_mov_b32 s22, {512*1792*2}
        s_mov_b32 s23, s39
        s_mov_b32 s26, s22
        s_mov_b32 s27, s39
        s_mov_b32 s30, s22
        s_mov_b32 s31, s39
        s_lshl_b32 s6, 1, 27
        s_mov_b32 s7, s39
        s_mov_b32 s10, s6
        s_mov_b32 s11, s39
        s_mov_b32 s18, s14
        s_mov_b32 s19, s39
        s_lshr_b32 s53, s50, 4        ; b
        s_and_b32 s54, s50, 15        ; split
        s_add_u32 s57, s51, {cfg.cgshift}
        s_and_b32 s57, s57, 7
        s_lshl_b32 s57, s57, 7
        s_lshl3_add_u32 s58, s52, s49      ; u
        s_cmp_ge_u32 s58, 28
        s_cselect_b32 s59, {OOB}, 0
        s_lshl3_add_u32 s56, s51, s3
        s_mulk_i32 s56, {8*3584}
        s_lshl_b32 s60, s58, 7
        s_add_u32 s56, s56, s60
        s_add_u32 s56, s56, s59
        v_lshrrev_b32 v1, 4, v0
        v_and_b32 v2, 15, v0
        v_xor_b32 v3, v2, v1
        v_lshlrev_b32 v3, 4, v3
        v_lshl_add_u32 v13, v1, 8, v3
        v_xor_b32 v14, 64, v13
        v_xor_b32 v15, 128, v13
        v_xor_b32 v16, 192, v13
        v_lshrrev_b32 v3, 1, v2
        v_xor_b32 v3, v3, v1
        v_lshlrev_b32 v3, 5, v3
        v_and_b32 v4, 1, v0
        v_lshl_add_u32 v3, v4, 4, v3
        v_lshl_add_u32 v17, v1, 8, v3
        v_xor_b32 v18, 128, v17
        s_lshl_b32 s62, s53, 3
        s_add_u32 s62, s62, s49
        s_lshl_b32 s62, s62, 23            ; (b*8+h) * 8MB
        s_add_u32 s62, s62, {28672*256}
        """)
        if cfg.kv == 'table':
            a(f"""
            s_load_dwordx2 s[98:99], s[0:1], 88
            s_lshl2_add_u32 s92, s2, s3
            s_lshl_b32 s92, s92, 2
            s_add_u32 s92, s92, {0x500100}
            s_waitcnt lgkmcnt(0)
            s_load_dword s93, s[98:99], s92
            s_add_u32 s98, s98, {0x500000}
            s_addc_u32 s99, s99, 0
            s_load_dwordx8 s[84:91], s[98:99], 0
            s_waitcnt lgkmcnt(0)
            s_add_u32 s62, s62, s93
            """)
        elif cfg.kv:
            a("s_mov_b32 s63, 0")
            bits = [(3, 0), (3, 1), (54, 0), (54, 1), (54, 2), (54, 3), (49, 0), (49, 1), (49, 2), (53, 0)]
            for (r, b), m in zip(bits, cfg.kv[4:]):
                if m: a(f"s_bitcmp1_b32 s{r}, {b}\ns_cselect_b32 s93, {m}, 0\ns_xor_b32 s63, s63, s93")
            a("s_add_u32 s62, s62, s63")
        contig = cfg.kvmap == 'contig'
        if cfg.kv: a("s_mov_b32 s63, 0")
        else: a(f"s_lshl_b32 s63, s54, {16 if contig else 12}\ns_add_u32 s62, s62, s63")
        if cfg.kv: pass
        elif cfg.perm == "s": a("s_xor_b32 s63, s3, s54")
        elif cfg.perm == "none": a("s_mov_b32 s63, s3")
        elif cfg.perm == "sh": a("s_add_u32 s63, s54, s49\ns_and_b32 s63, s63, 15\ns_xor_b32 s63, s63, s3")
        elif cfg.perm == "hb": a("s_lshl_b32 s63, s53, 3\ns_add_u32 s63, s63, s49\ns_xor_b32 s63, s63, s3")
        a(f"""
        s_lshl_b32 s63, s63, {12 if contig else 16}
        s_add_u32 s62, s62, s63
        s_lshl_b32 s63, s49, 2
        s_add_u32 s63, s63, s52
        s_lshl_b32 s63, s63, 4
        s_add_u32 s63, s63, s3
        s_lshl_b32 s63, s63, 13
        s_add_u32 s63, s63, s57
        s_lshl_b32 s60, s58, 3
        s_add_u32 s60, s60, s3
        s_lshl_b32 s60, s60, 13
        s_add_u32 s60, s60, s57
        s_add_u32 s60, s60, s59
        s_lshl_b32 s58, s3, 2
        s_add_u32 s58, s58, {FLAGS}
        v_mov_b32 v20, s58
        v_lshlrev_b32 v22, 2, v2
        v_add_u32 v22, {FLAGS}, v22
        s_lshl_b32 s58, s3, 12             ; lw*4096
        s_waitcnt lgkmcnt(0)
        """)
        setvcc()
        if cfg.tlb == 's':
            a(f"""
            s_cmp_lg_u32 s3, 1
            s_cbranch_scc1 L_notlb
            s_load_dword s97, s[4:5], s62
            s_load_dword s97, s[8:9], s62
            s_and_b32 s95, s63, 0x3fffff
            s_load_dword s97, s[16:17], s95
            s_load_dword s97, s[28:29], 0
            s_load_dword s97, s[24:25], 0
L_notlb:
            """)
    setup_done = [False]; barrier_done = [False]
    def maybe_setup():
        if not setup_done[0] and n[0] == X + 4:
            setup_rest(); setup_done[0] = True
        if not barrier_done[0] and n[0] == D0:
            a("s_barrier"); stamp(1); barrier_done[0] = True
    steps = []
    def wsteps(srd, v, soff, step, cnt, ldsbase, first=False):
        for i in range(cnt):
            def f(i=i):
                maybe_setup()
                if i == 0:
                    if not first: a(f"s_add_u32 m0, s61, {ldsbase}")
                    so = f"s{soff}"
                elif first:
                    a(f"s_addk_i32 m0, 4096\ns_add_u32 s{soff}, s{soff}, s47"); so = f"s{soff}"
                else:
                    a(f"s_add_u32 m0, s61, {ldsbase + i*4096}\ns_add_u32 s46, s{soff}, {i*step}"); so = "s46"
                pre_issue()
                a(f"buffer_load_dwordx4 v{v}, s[{srd}:{srd+3}], {so} offen {cfg.pol} lds")
                post_issue()
            steps.append(f)
    def kvsteps(srd, regs, ldsbase, isv):
        for i in range(4):
            for cc in range(4):
                def f(i=i, cc=cc):
                    if cc == 0 and isv and i == 2 and not cfg.streamonly and 'a' not in cfg.abl:
                        if cfg.earlywar:
                            w = L("ew")
                            a(f"s_waitcnt lgkmcnt(0)\nv_cmp_gt_u32 vcc, {C_TILE}, v23\ns_and_b64 vcc, vcc, 0xff0\ns_cbranch_vccz {w}")
                            spin(23, 22, 0xff0, C_TILE)
                            a(f"{w}:")
                            setvcc()
                        else: spin(23, 22, 0xff0, C_TILE)
                    if cfg.earlywar and cc == 2 and isv and i == 1 and not cfg.streamonly: a("ds_read_b32 v23, v22")
                    maybe_setup()
                    if cc == 0: a(f"s_add_u32 m0, s58, {ldsbase + i*16384}")
                    else: a("s_addk_i32 m0, 1024")
                    c = (cfg.kv[2] if i & 1 else 0) ^ (cfg.kv[3] if i & 2 else 0) ^ (cfg.kv[0] if cc & 1 else 0) ^ (cfg.kv[1] if cc & 2 else 0)
                    a(f"s_xor_b32 s96, s62, {c}")
                    pre_issue()
                    a(f"buffer_load_dwordx4 v{regs[cc % len(regs)]}, s[{srd}:{srd+3}], s96 offen {cfg.pol} lds")
                    post_issue()
                steps.append(f)
    wsteps(12, 10, 55, 32*8192, 4, WQ_L, first=True)
    wsteps(20, 11, 56, 32*3584, 2, G_L)
    wsteps(24, 11, 56, 32*3584, 2, U_L)
    kvsteps(4, [13, 14, 15, 16], K_L, False)
    kvsteps(8, [17, 18], V_L, True)
    wsteps(28, 12, 60, 32*1024, 2, DN_L)
    wsteps(16, 12, 63, 32*1024, 4, WO_L)
    head, V, DN, WO = steps[:24], steps[24:40], steps[40:42], steps[42:46]
    order = [('h', f) for f in head]
    for q in range(4):
        if cfg.dnpos == q: order += [('d', f) for f in DN]
        if q == 3: order += [('w', f) for f in WO[:cfg.wopos]]
        order += [('v%d' % q, f) for f in V[4*q:4*q+4]]
    if cfg.dnpos == 4: order += [('d', f) for f in DN]
    order += [('w', f) for f in WO[cfg.wopos:]]
    steps = [f for _, f in order]
    last = {k: i + 1 for i, (k, _) in enumerate(order)}
    if not cfg.prog:
        if cfg.dnearly: miles.pop(X+42)
        for old, new in ((28, 'v0'), (32, 'v1'), (36, 'v2'), (40, 'v3')):
            miles[('n', X + last[new])] = miles.pop(X + old)
        for k in [k for k in miles if isinstance(k, tuple)]: miles[k[1]] = miles.pop(k)
        if cfg.dnearly:
            if cfg.dnpos == 4: miles[X+42] = lambda: flag(M_DN)
            else:
                bv = miles[X+last['v3']]
                miles[X+last['v3']] = lambda: (flag(M_DN), bv())
    def finish():
        assert n[0] == 46 + X and barrier_done[0]
        for k in sorted(miles):
            a(f"s_waitcnt vmcnt({46+X-k})"); miles[k]()
        miles.clear()
        a("s_waitcnt vmcnt(0)")
        flag(M_END)
        stamp(4)
        if cfg.diag:
            a("s_load_dwordx2 s[32:33], s[0:1], 88"); srd_tail(32, WS_BYTES)
            a("s_getreg_b32 s80, hwreg(HW_REG_HW_ID)")
            dump_stamps(9)
        a("s_endpgm")
    if not cfg.adapt:
        for f in steps:
            if cfg.hold and n[0] == X + cfg.hold[0] and not cfg.streamonly:
                if landed[0] < X + last['v3']:
                    a(f"s_waitcnt vmcnt({n[0] - (X + last['v3'])})"); landed[0] = X + last['v3']
                    for k in sorted(miles):
                        if k <= landed[0]: miles.pop(k)()
                if cfg.bp: a("s_barrier")
                else: spin(23, 22, 0xff0, C_PUB)
            f()
        finish()
    else:
        at, levels = cfg.adapt
        for f in steps[:at - X]: f()
        a("s_memrealtime s[98:99]\ns_waitcnt lgkmcnt(0)\ns_sub_u32 s98, s98, s100")
        for li, (ticks, dep) in enumerate(levels):
            a(f"s_cmp_gt_u32 s98, {ticks}\ns_cbranch_scc1 L_late{li}")
        saved = (n[0], landed[0], dict(miles))
        for li, (ticks, dep) in enumerate([(None, None)] + list(levels)):
            n[0], landed[0] = saved[0], saved[1]; miles.clear(); miles.update(saved[2])
            if li: a(f"L_late{li-1}:")
            Dover[0] = dep
            for f in steps[at - X:]: f()
            finish()

    a("L_compute:")
    incompute[0] = True
    a("""
    s_load_dwordx2 s[32:33], s[0:1], 88
    s_load_dwordx4 s[40:43], s[0:1], 72
    v_lshlrev_b32 v7, 4, v0           ; l*16
    s_sub_u32 s55, s3, 4
    """)
    stamp(0)
    if cfg.pf == 'c':
        a("s_cmp_lg_u32 s55, 7\ns_cbranch_scc1 L_nopf")
        code_prefetch(122, 7, 112)
        a("L_nopf:")
    a("s_barrier")
    if cfg.streamonly: a("s_endpgm")
    if cfg.prio: a(f"s_setprio {cfg.prio}")
    srd_tail(36, 2048); srd_tail(32, WS_BYTES)
    a(f"""
    s_lshr_b32 s53, s50, 4        ; b
    s_and_b32 s54, s50, 15        ; split
    s_waitcnt lgkmcnt(0)
    s_mov_b64 s[24:25], s[42:43]  ; d_debug
    s_movk_i32 s26, 256
    s_mov_b32 s27, s39
    s_movk_i32 s42, 2048
    s_mov_b32 s43, s39
    s_load_dword s44, s[32:33], 0
    v_and_b32 v1, 15, v0              ; J
    v_lshrrev_b32 v2, 4, v0           ; G
    """)
    if cfg.tr: a("v_and_b32 v120, 7, v0\nv_lshrrev_b32 v119, 5, v0\nv_lshlrev_b32 v119, 10, v119\nv_lshl_add_u32 v120, v120, 1, v119     ; final stage: byte offset of this lane's output")
    else: a("v_and_b32 v120, 3, v0\nv_lshl_add_u32 v120, v120, 2, v2\nv_lshlrev_b32 v120, 1, v120")
    if cfg.tr: a("s_bfe_u32 s30, s2, 0x10006\ns_and_b32 s29, s2, 3\ns_lshl2_add_u32 s30, s30, s29\ns_bfe_u32 s29, s2, 0x30003\ns_lshl3_add_u32 s30, s30, s29     ; c: index of the 8 columns this workgroup finishes")
    elif cfg.cmap: a("s_bfe_u32 s30, s2, 0x20005\ns_and_b32 s29, s2, 3\ns_lshl2_add_u32 s30, s30, s29\ns_bfe_u32 s29, s2, 0x20003\ns_lshl2_add_u32 s30, s30, s29     ; c: index of the 16 outputs this workgroup finishes")
    else: a("s_bfe_u32 s30, s2, 0x40003\ns_and_b32 s29, s2, 3\ns_lshl2_add_u32 s30, s30, s29")
    a(f"""
    s_and_b32 s29, s2, 0x84
    s_xor_b32 s29, s29, {cfg.fin}     ; nonzero: not a finishing workgroup
    s_mov_b32 s22, s29
    s_lshr_b32 s56, s30, 1
    s_lshl_b32 s56, s56, 2
    s_and_b32 s58, s30, 1
    s_or_b32 s56, s56, s58
    s_lshl_b32 s56, s56, 12
    s_add_u32 s28, s56, {cfg.fr}
    s_cmp_lg_u32 s55, 4
    s_cbranch_scc1 L_noxr
    s_cmp_lg_u32 s29, 0
    s_cbranch_scc1 L_noxr
    """)
    if cfg.tr: a("s_lshl_b32 s31, s30, 4")
    else: a("""
    s_lshr_b32 s56, s30, 3            ; cg'
    s_lshl_b32 s56, s56, 6
    s_and_b32 s58, s30, 3
    s_lshl_b32 s58, s58, 4
    s_add_u32 s56, s56, s58
    s_bfe_u32 s58, s30, 0x10002
    s_lshl_b32 s58, s58, 9
    s_add_u32 s56, s56, s58           ; element index of first column
    s_lshl_b32 s31, s56, 1
    """)
    def outmask():
        if cfg.tr: a("s_mov_b32 exec_lo, 0xff\ns_mov_b32 exec_hi, 0xff")
        else: exmask16(0xf)
    a(f"""
    buffer_load_ushort v121, v120, s[36:39], s31 offen
    {"buffer_load_ushort v119, v120, s[40:43], s31 offen" if cfg.preout is True else ""}
    """)
    if cfg.preout == 'st':
        a("v_mov_b32 v119, 0")
        outmask()
        a("buffer_store_short v119, v120, s[40:43], s31 offen\ns_mov_b64 exec, -1")
    a(f"""
    s_add_u32 s56, s28, 8192
    v_lshlrev_b32 v118, 6, v0
    {"" if 'F' in cfg.abl or cfg.preF != 'start' else f"buffer_load_dword v119, v118, s[32:35], s28 offen {cfg.preFpol}"}
    {"" if 'F' in cfg.abl or cfg.preF != 'start' else f"buffer_load_dword v119, v118, s[32:35], s56 offen {cfg.preFpol}"}
L_noxr:
    """)
    if cfg.tlb.startswith('v'):
        a(f"""
        s_cmp_lg_u32 s55, 5
        s_cbranch_scc1 L_notlb
        s_load_dwordx4 s[4:7], s[0:1], 8
        s_load_dwordx2 s[8:9], s[0:1], 32
        s_load_dwordx2 s[10:11], s[0:1], 64
        s_lshl3_add_u32 s58, s53, s49
        s_lshl_b32 s58, s58, 23
        s_add_u32 s58, s58, {28672*256}
        v_mov_b32 v110, s58
        s_lshl2_add_u32 s58, s49, s52
        s_lshl_b32 s58, s58, 17
        v_mov_b32 v111, s58
        v_mov_b32 v112, 0
        s_mov_b64 exec, 1
        s_waitcnt lgkmcnt(0)
        {"global_load_dword v113, v110, s[4:5]" if 'k' in cfg.tlb else ""}
        global_load_dword v113, v110, s[6:7]
        global_load_dword v113, v111, s[8:9]
        global_load_dword v113, v112, s[10:11]
        s_mov_b64 exec, -1
L_notlb:
        """)
    if cfg.preF == 'split':
        a(f"""
        s_cmp_lg_u32 s55, 6
        s_cbranch_scc1 L_nosp
        s_and_b32 s56, s2, 4
        s_cbranch_scc1 L_nosp
        v_lshlrev_b32 v118, 6, v0
        s_lshr_b32 s56, s2, 7
        s_lshl_b32 s56, s56, 13
        s_add_u32 s56, s56, s28
        buffer_load_dword v119, v118, s[32:35], s56 offen {cfg.preFpol}
L_nosp:
        """)
    if cfg.preF == 'slack':

        a(f"""
        s_cmp_lg_u32 s55, 6
        s_cbranch_scc1 L_nosk
        s_and_b32 s56, s2, 0xc4
        s_cmp_lg_u32 s56, 0xc4
        s_cbranch_scc1 L_nosk
        v_lshlrev_b32 v118, 6, v0
        s_add_u32 s56, s28, 8192
        buffer_load_dword v119, v118, s[32:35], s28 offen {cfg.preFpol}
        buffer_load_dword v119, v118, s[32:35], s56 offen {cfg.preFpol}
        s_sub_u32 s58, s28, {16*16384}
        s_sub_u32 s56, s56, {16*16384}
        buffer_load_dword v119, v118, s[32:35], s58 offen {cfg.preFpol}
        buffer_load_dword v119, v118, s[32:35], s56 offen {cfg.preFpol}
L_nosk:
        """)
    a(f"""
    """)
    a(f"""
    v_lshlrev_b32 v4, 2, v1
    v_add_u32 v4, {FLAGS}, v4
    s_lshl_b32 s56, s55, 2
    s_add_u32 s56, s56, {FLAGS+16}
    v_mov_b32 v6, s56
    v_mov_b32 v3, 0xffffff00
    s_lshl_b32 s62, s49, 2
    s_add_u32 s62, s62, s52           ; 4h+rg
    s_and_b32 s56, s55, 3             ; mt
    v_lshrrev_b32 v8, 2, v1
    v_lshl_add_u32 v8, v2, 2, v8      ; r
    v_bfe_u32 v9, v8, 1, 2
    v_xor_b32 v9, s56, v9
    v_lshlrev_b32 v9, 5, v9
    v_and_b32 v10, 3, v1
    v_lshlrev_b32 v11, 3, v10         ; (i&3)*8
    v_add_u32 v9, v9, v11
    v_lshl_add_u32 v15, v8, 7, v9     ; vT
    v_and_b32 v10, 1, v1
    v_mul_u32_u24 v12, {XNS}, v10
    v_lshl_add_u32 v12, v2, 3, v12    ; (j&1)*XNS + g*8
    ; first publish slot: q partial (cw<4) or gate/up partial
    s_lshl_b32 s57, s49, 14
    s_lshl_b32 s58, s52, 11
    s_add_u32 s57, s57, s58
    s_lshl_b32 s58, s51, 8
    s_add_u32 s57, s57, s58
    s_add_u32 s57, s57, {QA}
    s_lshl_b32 s58, s62, 13
    s_lshl_b32 s59, s51, 10
    s_add_u32 s58, s58, s59
    s_add_u32 s58, s58, {GA}
    s_lshl_b32 s59, s52, 8
    s_lshl_b32 s60, s51, 7
    s_cmp_lt_u32 s55, 4
    s_cselect_b32 s57, s57, s58
    s_cselect_b32 s59, s59, s60
    s_mov_b32 s60, {WQ_L}
    s_cselect_b32 s60, s60, {G_L}
    s_cselect_b32 s61, 13, 8
    s_mov_b32 s63, 0x00030003
    s_cselect_b32 s63, s63, 0x000f000f
    s_lshl_b32 s56, s56, 6
    s_add_u32 s57, s57, s56           ; publish soffset (near)
    s_add_u32 s59, s59, {XN}
    v_add_u32 v12, s59, v12
    v_add_u32 v9, s60, v15
    v_lshlrev_b32 v13, s61, v1
    v_lshl_add_u32 v13, v2, 4, v13    ; publish voffset
    """)
    if cfg.pre1:
        a("s_mov_b32 exec_lo, s63\ns_mov_b32 exec_hi, s63\nbuffer_load_dword v125, v13, s[32:35], s57 offen\ns_mov_b64 exec, -1")
    def cflag(val):
        a(f"v_mov_b32 v5, {val}\ns_mov_b64 exec, 1\nds_write_b32 v6, v5\ns_mov_b64 exec, -1")
    def wait(mask, val, body=None): spin(5, 4, mask, val, body)
    def allreduce(x, t, op):
        for d in ("quad_perm:[1,0,3,2]", "quad_perm:[2,3,0,1]", "row_half_mirror", "row_mirror"):
            a(f"{op}_dpp v{x}, v{x}, v{x} {d} row_mask:0xf bank_mask:0xf")
        a(f"v_mov_b32 v{t}, v{x}\nv_permlane16_swap_b32 v{x}, v{t}\n{op} v{x}, v{x}, v{t}")
        a(f"v_mov_b32 v{t}, v{x}\nv_permlane32_swap_b32 v{x}, v{t}\n{op} v{x}, v{x}, v{t}")
    def unpack(src, dst, n):
        for i in range(n):
            a(f"v_lshlrev_b32 v{dst+2*i}, 16, v{src+i}\nv_and_b32 v{dst+2*i+1}, 0xffff0000, v{src+i}")
    def pack(src, dst, n):
        for i in range(n):
            a(f"v_cvt_pk_bf16_f32 v{dst+i}, v{src+2*i}, v{src+2*i+1}")
    def rbf(x, d=None):
        d = x if d is None else d
        if cfg.trim2: a(f"v_cvt_pk_bf16_f32 v{d}, 0, v{x}")
        else: a(f"v_cvt_pk_bf16_f32 v{d}, v{x}, v{x}\nv_lshlrev_b32 v{d}, 16, v{d}")
    def tag(src, dst, last=48):
        for i in range(4):
            a(f"v_and_or_b32 v{dst+i}, v{src+i}, v3, s{45+i if i < 3 else last}")
    def check(regs, last=97, masked=False, t=5):
        for k, r in enumerate(regs):
            for i in range(4): a(f"v_xor_b32 v{r+i}, s{45+i if i < 3 else last}, v{r+i}")
            if masked:
                if k == 0: a(f"v_or3_b32 v{t}, v{r}, v{r+1}, v{r+2}\nv_mov_b32 v127, v{r+3}")
                else: a(f"v_or3_b32 v{t}, v{t}, v{r}, v{r+1}\nv_or_b32 v{t}, v{t}, v{r+2}\nv_or_b32 v127, v127, v{r+3}")
            elif k == 0: a(f"v_or3_b32 v{t}, v{r}, v{r+1}, v{r+2}\nv_or_b32 v{t}, v{t}, v{r+3}")
            else: a(f"v_or3_b32 v{t}, v{t}, v{r}, v{r+1}\nv_or3_b32 v{t}, v{t}, v{r+2}, v{r+3}")
        if masked: a(f"v_and_or_b32 v{t}, v127, s101, v{t}")
        a(f"v_and_b32 v{t}, 0xff, v{t}\nv_cmp_ne_u32 vcc, 0, v{t}")
    def issue(loads, soffs, pol=None):
        pol = cfg.gpol if pol is None else pol
        if 'q' in cfg.abl and len(loads) == 4: return
        if 'h' in cfg.abl and len(loads) == 8: return
        if 'm' in cfg.abl and loads[0][0] == 80: return
        for (r, va, si, imm) in loads:
            a(f"buffer_load_dwordx4 v[{r}:{r+3}], v{va}, s[32:35], s{soffs[si]} offen offset:{imm} {pol}")
    def poll(loads, soffs, each=None, pre_issued=None, **kw):
        top, chk, done = L("p"), L("pc"), L("pd")
        a("s_mov_b32 s59, 0")
        if pre_issued is not None: a(f"s_waitcnt vmcnt({pre_issued})\ns_branch {chk}")
        a(f"{top}:\ns_add_u32 s59, s59, 1")
        if each: each()
        issue(loads, soffs)
        a(f"s_waitcnt vmcnt(0)\n{chk}:")
        check([r for (r, _, _, _) in loads], **kw)
        if 'r' in cfg.abl: a(f"{done}:")
        else: a(f"s_cbranch_vccz {done}\ns_cmp_lt_u32 s59, {cfg.NMAX}\ns_cbranch_scc1 {top}\n{done}:")
    def pm(d, w, x, c):
        A, Bm = (x, w) if cfg.tr else (w, x)
        a(f"v_mfma_f32_16x16x32_bf16 v[{d}:{d+3}], v[{A}:{A+3}], v[{Bm}:{Bm+3}], {c}")
    def mstore(r, va, so):
        f, d = L("ms"), L("md")
        a(f"s_cmp_lg_u32 s98, 0\ns_cbranch_scc1 {f}\nbuffer_store_dwordx4 v[{r}:{r+3}], v{va}, s[32:35], s{so} offen {NP}\ns_branch {d}\n{f}:\nbuffer_store_dwordx4 v[{r}:{r+3}], v{va}, s[32:35], s{so} offen sc1\n{d}:")
    def far_first():
        t = L("ff")
        a(f"s_cmp_lg_u32 s95, 0\ns_cbranch_scc1 {t}\ns_mov_b32 s95, 1\ns_mov_b32 exec_lo, s63\ns_mov_b32 exec_hi, s63\nbuffer_store_dwordx4 v[52:55], v13, s[32:35], s58 offen sc1\ns_mov_b64 exec, -1\n{t}:")

    if 'a' in cfg.abl: a("s_endpgm")
    a("s_cmp_ge_u32 s55, 2\ns_cbranch_scc1 L_noln")
    a(f"s_mul_i32 s56, s55, {XNS}\ns_add_u32 s56, s56, {XN}\nv_add_u32 v14, s56, v7")
    wait(0xf, M_X)
    a("ds_read_b128 v[16:19], v14\ns_waitcnt lgkmcnt(0)")
    stamp(1)
    unpack(16, 20, 4)
    a("""
    v_add_f32 v28, v20, v21
    v_add_f32 v29, v22, v23
    v_add_f32 v30, v24, v25
    v_add_f32 v31, v26, v27
    v_add_f32 v28, v28, v29
    v_add_f32 v30, v30, v31
    v_add_f32 v28, v28, v30
    """)
    allreduce(28, 29, "v_add_f32")
    a("v_mul_f32 v28, 0x3b000000, v28")
    for i in range(8): a(f"v_sub_f32 v{32+i}, v{20+i}, v28")
    a("v_mul_f32 v29, v32, v32\nv_mul_f32 v30, v33, v33")
    for i in range(2, 8, 2): a(f"v_fmac_f32 v29, v{32+i}, v{32+i}\nv_fmac_f32 v30, v{33+i}, v{33+i}")
    a("v_add_f32 v29, v29, v30")
    rbf(28)
    for i in range(8): a(f"v_sub_f32 v{32+i}, v{20+i}, v28")
    allreduce(29, 30, "v_add_f32")
    pack(32, 16, 4)
    a("v_mul_f32 v29, 0x3b000000, v29")
    rbf(29)
    a("v_add_f32 v29, 0x3727c5ac, v29")
    rbf(29)
    a("v_sqrt_f32 v29, v29")
    unpack(16, 32, 4)
    rbf(29)
    a("v_rcp_f32 v29, v29")
    for i in range(8): a(f"v_mul_f32 v{32+i}, v{32+i}, v29")
    pack(32, 16, 4)
    a("ds_write_b128 v14, v[16:19]")
    cflag(C_XN)
    a("L_noln:")
    a(f"""
    s_waitcnt lgkmcnt(0)
    s_add_u32 s44, s44, 0x01010101
    s_and_b32 s45, s44, 0xff
    s_bfe_u32 s46, s44, 0x80008
    s_bfe_u32 s47, s44, 0x80010
    s_lshr_b32 s48, s44, 24
    s_getreg_b32 s96, hwreg(HW_REG_XCC_ID, 0, 4)
    s_xor_b32 s96, s96, s48           ; byte 3 of the first hand-off's tag carries the die id
    s_mov_b32 s97, s96
    s_mov_b32 s98, 0
    s_mov_b32 s101, -1
    s_mov_b32 s95, 0
    s_add_u32 s58, s57, {MIR}
    v_and_b32 v10, 2, v1
    v_cmp_ne_u32 s[60:61], 0, v10
    """)
    wait(0x30, C_XN)
    a("s_cmp_ge_u32 s55, 4\ns_cbranch_scc1 L_gu")
    for k in range(4): a(f"ds_read2_b64 v[{32+4*k}:{35+4*k}], v12 offset0:{8*k} offset1:{8*k+4}")
    wait(0xf, M_WQ)
    stamp(2)
    for k in range(4):
        for t in range(2): a(f"ds_read_b64_tr_b16 v[{16+4*k+2*t}:{17+4*k+2*t}], v9 offset:{k*4096+t*2048}")
    cflag(C_TILE)
    a("s_waitcnt lgkmcnt(0)")
    for k in range(4):
        a(f"v_mfma_f32_16x16x32_bf16 v[48:51], v[{16+4*k}:{19+4*k}], v[{32+4*k}:{35+4*k}], {'0' if k==0 else 'v[48:51]'}")
    a("s_branch L_pub1")
    a("L_gu:")
    for k in range(2): a(f"ds_read2_b64 v[{32+4*k}:{35+4*k}], v12 offset0:{8*k} offset1:{8*k+4}")
    wait(0xf, M_GU)
    stamp(2)
    for m in range(2):
        for k in range(2):
            for t in range(2): a(f"ds_read_b64_tr_b16 v[{16+8*m+4*k+2*t}:{17+8*m+4*k+2*t}], v9 offset:{m*8192+k*4096+t*2048}")
    cflag(C_TILE)
    a("s_waitcnt lgkmcnt(0)")
    for k in range(2):
        a(f"v_mfma_f32_16x16x32_bf16 v[48:51], v[{16+4*k}:{19+4*k}], v[{32+4*k}:{35+4*k}], {'0' if k==0 else 'v[48:51]'}")
        a(f"v_mfma_f32_16x16x32_bf16 v[56:59], v[{24+4*k}:{27+4*k}], v[{32+4*k}:{35+4*k}], {'0' if k==0 else 'v[56:59]'}")
    for i in range(4): a(f"v_cndmask_b32 v{48+i}, v{48+i}, v{56+i}, s[60:61]")
    a("L_pub1:\ns_nop 7")
    tag(48, 52, 96)
    a("s_mov_b32 exec_lo, s63\ns_mov_b32 exec_hi, s63")
    if 'P' not in cfg.abl: a(f"buffer_store_dwordx4 v[52:55], v13, s[32:35], s57 offen {NP}")
    a("s_mov_b64 exec, -1")
    stamp(3)
    if 'x' in cfg.abl: a("s_endpgm")
    def tile_prefetch(lab):
        a(f"""
        s_cmp_lt_u32 s55, 2
        s_cbranch_scc1 {lab}
        s_load_dwordx2 s[4:5], s[0:1], 32
        s_load_dwordx2 s[8:9], s[0:1], 64
        s_sub_u32 s10, s55, 2
        s_lshl2_add_u32 s11, s49, s52
        s_lshl_b32 s11, s11, 17
        s_mul_i32 s12, s10, {cfg.spfw[1]*1024}
        s_add_u32 s12, s12, {cfg.spfw[0]*1024}
        s_min_u32 s12, s12, {(128-cfg.spfw[1])*1024}
        s_add_u32 s11, s11, s12
        s_lshl_b32 s13, s51, 7
        s_add_u32 s11, s11, s13
        s_lshl3_add_u32 s14, s52, s49
        s_min_u32 s15, s14, 27
        s_lshl_b32 s15, s15, 16
        s_mul_i32 s12, s10, {11*1024}
        s_min_u32 s12, s12, {53*1024}
        s_add_u32 s15, s15, s12
        s_add_u32 s15, s15, s13
        s_waitcnt lgkmcnt(0)
        s_add_u32 s4, s4, s11
        s_addc_u32 s5, s5, 0
        s_add_u32 s8, s8, s15
        s_addc_u32 s9, s9, 0
        """)
        ld = []
        if 'd' not in cfg.spf: ld += [(4, r*1024 + hh*64) for r in range(cfg.spfw[1]) for hh in range(cfg.spfh)]
        nw = len(ld)
        if 'w' not in cfg.spf: ld += [(8, r*1024 + hh*64) for r in range(11) for hh in range(cfg.spfh)]
        for i, (b, off) in enumerate(ld):
            if i == nw: a(f"s_cmp_ge_u32 s14, 28\ns_cbranch_scc1 {lab}x")
            if i and i % cfg.spfb == 0: a("s_waitcnt lgkmcnt(0)")
            a(f"s_load_dword s23, s[{b}:{b+1}], {off}")
        a(f"{lab}x:\ns_waitcnt lgkmcnt(0)\n{lab}:")
    def scalar_touch(sides, lab):
        a(f"""
        s_cmp_lt_u32 s55, 4
        s_cbranch_scc1 {lab}
        s_cmp_lg_u32 s22, 0
        s_cbranch_scc1 {lab}
        s_sub_u32 s4, s55, 4
        s_lshl_b32 s4, s4, 10
        s_add_u32 s4, s4, s28
        s_add_u32 s6, s32, s4
        s_addc_u32 s7, s33, 0
        """)
        for k, sd in enumerate(sides):
            if k: a("s_waitcnt lgkmcnt(0)")
            for i in range(8): a(f"s_load_dword s23, s[6:7], {sd*8192 + i*128}")
        a(f"{lab}:")
    if cfg.preF == 'scalar': scalar_touch((0, 1) if cfg.side == 'auto' and cfg.force is None else (cfg.side if cfg.side != 'auto' else cfg.force,), "L_nost")
    if cfg.side == 'auto':
        a("; one workgroup times uncached reads of two workspace blocks that differ in address bit 13 and posts in d_debug which one is")
        a("; nearer to the finishing workgroups; either answer gives the same output, it only picks where the last hand-off is placed")
        a(f"""
        s_cmp_lt_u32 s55, 4
        s_cbranch_scc1 L_noprobe
        s_cmp_lg_u32 s2, {cfg.leader}
        s_cbranch_scc1 L_noprobe
        {"s_and_b32 s4, s55, 2" if cfg.race else "s_mov_b32 s4, s55"}
        s_lshl_b32 s4, s4, {9 if cfg.race else 7}
        s_and_b32 s5, s55, 1
        s_lshl_b32 s5, s5, 13
        s_add_u32 s4, s4, s5
        s_add_u32 s4, s4, {cfg.fr + PROBE}
        s_xor_b32 s5, s4, 0x2000
        s_add_u32 s6, s32, s4
        s_addc_u32 s7, s33, 0
        s_add_u32 s8, s32, s5
        s_addc_u32 s9, s33, 0
        s_load_dword s10, s[6:7], 0 glc
        s_load_dword s11, s[8:9], 0 glc
        s_mov_b32 s16, 0
        s_waitcnt lgkmcnt(0)
        """)
        if cfg.race:
            for r in range(1, cfg.race): a(f"s_load_dword s10, s[6:7], {r*cfg.rstep} glc")
            a("s_waitcnt lgkmcnt(0)")
            a("v_mov_b32 v5, 1\ns_mov_b64 exec, 1\nds_add_u32 v4, v5 offset:60\ns_mov_b64 exec, -1")
            wait(0x8000, 4)
            for r in range(cfg.race): a(f"s_load_dword s10, s[6:7], {r*cfg.rstep} glc\ns_waitcnt lgkmcnt(0)")
            a(f"""
            v_mov_b32 v5, 16
            s_mov_b64 exec, 1
            ds_add_rtn_u32 v16, v4, v5 offset:60
            s_waitcnt lgkmcnt(0)
            v_readfirstlane_b32 s14, v16
            s_lshr_b32 s14, s14, 4
            s_cmp_lg_u32 s14, {cfg.rank}
            s_cbranch_scc1 L_noprobe2
            s_and_b32 s14, s55, 1
            {"s_xor_b32 s14, s14, 1" if inv else ""}
            s_add_u32 s14, s14, 1
            v_mov_b32 v16, s14
            v_mov_b32 v17, 0
            buffer_store_dword v16, v17, s[24:27], 0 offen sc1
L_noprobe2:
            s_mov_b64 exec, -1
L_noprobe:
            """)
        for r in range(cfg.rounds if not cfg.race else 0):
            a("""
            s_memtime s[12:13]
            s_waitcnt lgkmcnt(0)
            s_load_dword s10, s[6:7], 0 glc
            s_waitcnt lgkmcnt(0)
            s_memtime s[14:15]
            s_waitcnt lgkmcnt(0)
            s_load_dword s10, s[8:9], 0 glc
            s_waitcnt lgkmcnt(0)
            s_memtime s[18:19]
            s_waitcnt lgkmcnt(0)
            s_lshl_b32 s14, s14, 1
            s_sub_u32 s14, s14, s12
            s_sub_u32 s14, s14, s18          ; first - second
            s_add_u32 s16, s16, s14
            """)
        if not cfg.race: a(f"""
        s_sub_u32 s14, 0, s16
        s_bitcmp1_b32 s55, 0
        s_cselect_b32 s16, s14, s16
        s_min_i32 s16, s16, 2047
        s_max_i32 s16, s16, -2047
        s_add_u32 s16, s16, {(1 << 20) + 2048}
        v_mov_b32 v5, s16
        s_mov_b64 exec, 1
        ds_add_rtn_u32 v16, v4, v5 offset:60
        s_waitcnt lgkmcnt(0)
        v_readfirstlane_b32 s14, v16
        s_add_u32 s14, s14, s16
        s_lshr_b32 s15, s14, 20
        s_cmp_lg_u32 s15, 4
        s_cbranch_scc1 L_noprobe2
        s_and_b32 s14, s14, 0xfffff
        s_cmp_gt_u32 s14, {4*2048}
        s_cselect_b32 s14, {'1, 2' if inv else '2, 1'}
        v_mov_b32 v16, s14
        v_mov_b32 v17, 0
        buffer_store_dword v16, v17, s[24:27], 0 offen sc1
L_noprobe2:
        s_mov_b64 exec, -1
L_noprobe:
        """)
    if 'K' in cfg.spf:
        a(f"s_cmp_eq_u32 s2, {cfg.leader}\ns_cbranch_scc1 L_nospf")
        tile_prefetch("L_nospf")
    a(f"""
    v_and_b32 v10, 3, v1
    v_mul_u32_u24 v9, {QBS}, v10
    v_lshl_add_u32 v9, v2, 4, v9
    v_add_u32 v9, {QB}, v9
    s_lshl_b32 s56, s55, 13
    v_xor_b32 v12, v1, v2
    v_lshlrev_b32 v12, 4, v12
    v_lshl_add_u32 v12, v1, 8, v12
    v_add_u32 v12, s56, v12           ; K operand address, step 0
    v_xor_b32 v62, 64, v12
    v_xor_b32 v63, 128, v12
    v_xor_b32 v64, 192, v12
    """)
    a("s_cmp_ge_u32 s55, 2\ns_cbranch_scc1 L_noq")
    a(f"""
    s_lshl_b32 s56, s55, 10
    v_add_u32 v126, s56, v7
    s_lshl_b32 s99, s49, 14
    s_lshl_b32 s100, s53, 13
    s_add_u32 s99, s99, s100
    s_add_u32 s99, s99, {QA}
    s_add_u32 s100, s99, 4096
    s_lshl_b32 s56, s55, 1
    v_lshrrev_b32 v14, 5, v0
    v_add_u32 v14, s56, v14
    v_mul_u32_u24 v14, {QBS}, v14
    v_and_b32 v16, 31, v0
    v_lshl_add_u32 v14, v16, 3, v14
    v_add_u32 v14, {QB}, v14
    """)
    if cfg.qtrig: wait(0xf, cfg.qtrig)
    def q_each():
        t = L("qe")
        a(f"s_cmp_lt_u32 s59, {cfg.N0}\ns_cbranch_scc1 {t}")
        a("v_mov_b32 v5, 1\ns_mov_b64 exec, 1\nds_write_b32 v4, v5 offset:56\ns_mov_b64 exec, -1")
        far_first()
        a(f"s_xor_b32 s98, s98, {MIR}\ns_xor_b32 s99, s99, {MIR}\ns_xor_b32 s100, s100, {MIR}\ns_xor_b32 s101, s101, 15\n{t}:")
    poll([(16, 126, 0, 0), (20, 126, 0, 2048), (24, 126, 1, 0), (28, 126, 1, 2048)], [99, 100], each=q_each, last=96, masked=True)
    a("; all producers on this die? then the near copies are the ones to use from here on")
    a("v_and_b32 v127, 15, v127\nv_cmp_ne_u32 vcc, 0, v127\ns_cbranch_vccnz L_remote\ns_mov_b32 s98, 0\nL_remote:")
    for r in (19, 23, 27, 31): a(f"v_and_b32 v{r}, v{r}, v3")
    for i in range(4): a(f"v_add_f32 v{16+i}, v{16+i}, v{20+i}\nv_add_f32 v{24+i}, v{24+i}, v{28+i}")
    for i in range(4): a(f"v_add_f32 v{16+i}, v{16+i}, v{24+i}")
    pack(16, 20, 2)
    a("ds_write_b64 v14, v[20:21]")
    a("v_mov_b32 v5, s98\ns_mov_b64 exec, 1\nds_write_b32 v6, v5 offset:32\ns_mov_b64 exec, -1")
    cflag(C_Q)
    a("L_noq:")
    stamp(4)
    if 'y' in cfg.abl: a("s_endpgm")
    def watch():
        t = L("wt")
        a(f"v_cmp_ne_u32 vcc, 0, v5\ns_and_b64 vcc, vcc, 0x4000\ns_cbranch_vccz {t}")
        far_first()
        a(f"{t}:")
    wait(0x30, C_Q, watch)
    a(f"v_cmp_ne_u32 vcc, 0, v5\ns_and_b64 vcc, vcc, 0x3000\ns_mov_b32 s98, 0\ns_mov_b32 s101, -1\ns_cbranch_vccz L_near\ns_mov_b32 s98, {MIR}\ns_mov_b32 s97, s48\ns_mov_b32 s101, 0xfffffff0")
    far_first()
    a("L_near:")
    for st in range(4): a(f"ds_read_b128 v[{16+4*st}:{19+4*st}], v9 offset:{64*st}")
    wait(0xf, M_K)
    stamp(5)
    ka = [12, 62, 63, 64]
    for tt in range(2):
        for st in range(4):
            r = 32 + 16*tt + 4*st
            if r == 52: r = 92
            if r == 60: r = 88
            a(f"ds_read_b128 v[{r}:{r+3}], v{ka[st]} offset:{tt*4096}")
    a(f"""
    v_lshlrev_b32 v9, 5, v10
    v_add_u32 v9, {MX}, v9
    s_lshl_b32 s56, s55, 2
    v_add_u32 v12, s56, v9
    s_lshl_b32 s56, s55, 8
    v_lshlrev_b32 v13, 6, v2
    v_lshl_add_u32 v13, v10, 4, v13
    v_add_u32 v13, {PB}, v13
    v_add_u32 v14, s56, v13
    s_waitcnt lgkmcnt(0)
    """)
    for st in range(4):
        for tt in range(2):
            r = 32 + 16*tt + 4*st; d = 68 + 4*tt
            if r == 52: r = 92
            if r == 60: r = 88
            a(f"v_mfma_f32_16x16x32_bf16 v[{d}:{d+3}], v[{r}:{r+3}], v[{16+4*st}:{19+4*st}], {'0' if st==0 else f'v[{d}:{d+3}]'}")
    if cfg.trim2:
        for i in range(8): rbf(68+i, 36+i)
        for i in range(8): a(f"v_mul_f32 v{36+i}, 0x3db504f3, v{36+i}")
        for i in range(8): rbf(36+i)
    else:
        pack(68, 32, 4)
        unpack(32, 36, 4)
        for i in range(8): a(f"v_mul_f32 v{36+i}, 0x3db504f3, v{36+i}")
        pack(36, 32, 4)
        unpack(32, 36, 4)
    a("""
    v_max3_f32 v56, v36, v37, v38
    v_max3_f32 v57, v39, v40, v41
    v_max3_f32 v56, v56, v42, v43
    v_max_f32 v56, v56, v57
    v_mov_b32 v57, v56
    v_permlane16_swap_b32 v56, v57
    v_max_f32 v56, v56, v57
    v_mov_b32 v57, v56
    v_permlane32_swap_b32 v56, v57
    v_max_f32 v56, v56, v57
    s_mov_b64 exec, 15
    ds_write_b32 v12, v56
    """)
    cflag(C_MAX)
    wait(0xff0, C_MAX)
    a(f"""
    ds_read_b128 v[44:47], v9
    ds_read_b128 v[48:51], v9 offset:16
    s_mov_b32 s56, {LOG2E}
    s_waitcnt lgkmcnt(0)
    v_max3_f32 v56, v44, v45, v46
    v_max3_f32 v57, v47, v48, v49
    v_max3_f32 v56, v56, v50, v51
    v_max_f32 v56, v56, v57           ; m
    v_mul_f32 v57, s56, v56
    """)
    for i in range(8): a(f"v_fma_f32 v{36+i}, v{36+i}, s56, -v57")
    for i in range(8): a(f"v_exp_f32 v{36+i}, v{36+i}")
    pack(36, 32, 4)
    exmask16(0xf)
    a("ds_write_b128 v14, v[32:35]")
    cflag(C_P)
    a("; addresses for PV and the later stages")
    a(f"""
    v_and_b32 v9, 7, v8
    v_xor_b32 v9, s55, v9
    v_lshlrev_b32 v9, 5, v9
    v_add_u32 v9, v9, v11
    v_lshl_add_u32 v9, v8, 8, v9
    v_add_u32 v9, {V_L}, v9
    v_lshlrev_b32 v12, 14, v1
    v_lshl_add_u32 v12, v2, 4, v12    ; o publish: head*16384 + g*16
    s_lshl_b32 s56, s49, 16
    s_lshl_b32 s57, s50, 9
    s_add_u32 s56, s56, s57
    s_lshl_b32 s57, s55, 6
    s_add_u32 s56, s56, s57
    s_add_u32 s56, s56, {OA}          ; o publish soffset
    s_add_u32 s56, s56, s98
    """)
    if cfg.pretouch == 'st':
        a("s_xor_b32 s57, s45, 0xff")
        for i in range(4): a(f"v_mov_b32 v{76+i}, s57")
        exmask16(0xf)
        a("buffer_store_dwordx4 v[76:79], v12, s[32:35], s56 offen\ns_mov_b64 exec, -1")
    elif cfg.pretouch:
        exmask16(0xf)
        a("buffer_load_dword v125, v12, s[32:35], s56 offen\ns_mov_b64 exec, -1")
    if 'V' in cfg.spf: tile_prefetch("L_nospf")
    wait(0xff0, C_P)
    for kb in range(8): a(f"ds_read_b128 v[{16+4*kb}:{19+4*kb}], v13 offset:{kb*256}")
    a("s_waitcnt lgkmcnt(0)")
    stamp(6)
    if 'z' in cfg.abl: a("s_endpgm")
    a("; row sums by an MFMA with a matrix of ones; (max, sum) of this split handed on by cw 3")
    a("s_cmp_lg_u32 s55, 3\ns_cbranch_scc1 L_nol")
    for i in range(4): a(f"v_mov_b32 v{52+i}, 0x3f803f80")
    for kb in range(8):
        a(f"v_mfma_f32_16x16x32_bf16 v[60:63], v[52:55], v[{16+4*kb}:{19+4*kb}], {'0' if kb==0 else 'v[60:63]'}")
    a(f"""
    v_lshlrev_b32 v13, 9, v0
    s_lshl_b32 s57, s49, 11
    s_lshl_b32 s58, s50, 4
    s_add_u32 s57, s57, s58
    s_add_u32 s57, s57, {MA}
    s_add_u32 s57, s57, s98
    v_mov_b32 v58, 0
    v_mov_b32 v59, 0
    v_mov_b32 v57, v60
    """)
    tag(56, 60, 97)
    a("s_mov_b64 exec, 15")
    mstore(60, 13, 57)
    a("s_mov_b64 exec, -1")
    a("L_nol:")
    def wbl2(lab):
        a(f"s_cmp_lg_u32 s55, 7\ns_cbranch_scc1 {lab}\ns_cmp_lt_u32 s50, {cfg.wbj}\ns_cbranch_scc1 {lab}\nbuffer_wbl2 sc1\n{lab}:")
    if 'P' in cfg.wb: wbl2("L_nowb1")
    a("; addresses for the gather of the 16 key-split partials and for the projections")
    a(f"""
    v_lshrrev_b32 v10, 3, v0          ; ss
    v_and_b32 v14, 7, v0              ; gi
    v_lshlrev_b32 v13, 4, v10
    v_lshlrev_b32 v10, 9, v10
    v_lshl_add_u32 v10, v14, 4, v10
    s_lshr_b32 s60, s55, 2            ; b'
    s_and_b32 s61, s55, 3             ; dq
    s_lshl_b32 s58, s62, 1
    s_add_u32 s58, s58, s60           ; (4h+rg)*2 + b'
    s_lshl_b32 s57, s58, 8
    s_add_u32 s57, s57, {MA}
    s_add_u32 s57, s57, s98
    s_lshl_b32 s58, s58, 13
    s_lshl_b32 s91, s61, 7
    s_add_u32 s58, s58, s91
    s_add_u32 s58, s58, {OA}          ; o soffset
    s_add_u32 s58, s58, s98
    s_add_u32 s91, s58, 4096
    s_mul_i32 s60, s60, {OBS}
    s_lshl_b32 s61, s61, 6
    s_add_u32 s60, s60, s61
    s_add_u32 s60, s60, {OB}
    """)
    if cfg.trim: a("v_lshrrev_b32 v93, 2, v14\nv_and_b32 v14, 3, v14\nv_lshlrev_b32 v14, 4, v14\nv_lshl_add_u32 v14, v93, 3, v14")
    else: a("v_lshlrev_b32 v14, 3, v14")
    a(f"""
    v_lshl_add_u32 v14, v2, 1, v14
    v_add_u32 v14, s60, v14
    ; projection-stage addresses
    v_and_b32 v93, 1, v1
    v_mul_u32_u24 v90, {OBS}, v93
    v_lshl_add_u32 v90, v2, {4 if cfg.trim else 3}, v90
    v_add_u32 v90, {OB}, v90          ; o operand
    v_mul_u32_u24 v91, {HBS}, v93
    v_lshl_add_u32 v91, v2, 3, v91
    v_add_u32 v91, {HB}, v91          ; h operand
    v_add_u32 v15, {WO_L}, v15
    """)
    if cfg.tr: a("v_bfe_u32 v93, v0, 3, 1\nv_and_b32 v92, 7, v0\nv_lshlrev_b32 v92, 4, v92\nv_lshl_add_u32 v92, v93, 12, v92")
    else: a("v_lshlrev_b32 v92, 15, v93\nv_bfe_u32 v93, v1, 1, 1\nv_lshl_add_u32 v92, v93, 6, v92\nv_lshl_add_u32 v92, v2, 4, v92    ; b*32768 + kind*64 + g*16")
    a(f"""
    v_cmp_ne_u32 s[60:61], 0, v93
    s_lshl_b32 s92, s51, 16
    """)
    if cfg.tr: a("s_lshl_b32 s93, s55, 14")
    else: a("s_and_b32 s93, s55, 2\ns_lshl_b32 s93, s93, 1\ns_and_b32 s59, s55, 1\ns_or_b32 s93, s93, s59\ns_lshl_b32 s93, s93, 12")
    a(f"""
    s_add_u32 s92, s92, s93
    s_lshl_b32 s93, s62, 7
    s_add_u32 s92, s92, s93
    s_add_u32 s92, s92, {cfg.fr}
    """)
    if cfg.preF == 'st':
        a("s_cmp_ge_u32 s55, 4\ns_cbranch_scc1 L_nops")
        exmask16(0xf)
        a(f"v_mov_b32 v96, 0\nv_mov_b32 v97, 0\nv_mov_b32 v98, 0\nv_mov_b32 v99, 0\nbuffer_store_dwordx4 v[96:99], v92, s[32:35], s92 offen {cfg.fst}\ns_mov_b64 exec, -1\nL_nops:")
    a(f"""
    v_mov_b32 v94, 0
    s_mov_b64 exec, {'0xf' if cfg.hearly else '0x20f'}
    v_mov_b32 v94, {M_DN}             ; thresholds: down tile landed, h written (M_DN == C_H)
    s_mov_b64 exec, -1
    """)
    assert M_DN == C_H
    a('; ---- PV ----')
    def pv(m):
        for kk in range(2):
            kb = 2*m + kk
            for t in range(2):
                r = 64 + 4*kk + 2*t
                a(f"ds_read_b64_tr_b16 v[{r}:{r+1}], v9 offset:{kb*8192+t*4096}")
        for kk in range(2):
            kb = 2*m + kk
            a(f"s_waitcnt lgkmcnt({2 if kk == 0 and not cfg.diag else 0})")
            a(f"v_mfma_f32_16x16x32_bf16 v[72:75], v[{64+4*kk}:{67+4*kk}], v[{16+4*kb}:{19+4*kb}], {'0' if kb==0 else 'v[72:75]'}")
    ml = [(80, 13, 0, 0), (84, 13, 0, 128)]
    hl = [(96+4*k if k < 6 else 48+4*(k-6), 7, k//4, (k % 4)*1024) for k in range(8)]
    a(f"""
    s_cmp_lg_u32 s55, 5
    s_cbranch_scc1 L_noh0
    s_lshl_b32 s99, s62, 13
    s_add_u32 s99, s99, {GA}
    s_add_u32 s99, s99, s98
    s_add_u32 s100, s99, 4096
    """)
    hp = [hl[i*8//cfg.hsplit:(i+1)*8//cfg.hsplit] for i in range(cfg.hsplit)]
    issue(hp[0], [99, 100])
    a("L_noh0:")
    def hpiece(i):
        if i < len(hp):
            a(f"s_cmp_lg_u32 s55, 5\ns_cbranch_scc1 L_nohp{i}")
            issue(hp[i], [99, 100])
            a(f"L_nohp{i}:")
    wait(0xf, M_V1); pv(0)
    hpiece(1)
    wait(0xf, M_V2); pv(1)
    hpiece(2)
    if cfg.mlat == 'V2': issue(ml, [57])
    def side_load():
        if cfg.side == 'auto' and cfg.force is None:
            a("v_mov_b32 v123, 0\nv_mov_b32 v122, 1")
            if cfg.sidewave != 'all': a("s_cmp_ge_u32 s55, 5\ns_cbranch_scc1 L_nosl")
            a("s_mov_b64 exec, 1\nbuffer_load_dword v122, v123, s[24:27], 0 offen sc1\ns_mov_b64 exec, -1")
            if cfg.sidewave != 'all': a("L_nosl:")
    if cfg.sideat == 'V2': side_load()
    def hblock(pre):
        a("; ---- h = sigmoid(gate) * up for this workgroup's down tile (cw 5) ----")
        a("s_cmp_lg_u32 s55, 5\ns_cbranch_scc1 L_noh")
        a(f"""
        v_bfe_u32 v124, v0, 4, 1
        v_mul_u32_u24 v124, {HBS}, v124
        v_lshl_add_u32 v124, v1, 3, v124
        v_lshrrev_b32 v56, 5, v0
        v_lshl_add_u32 v124, v56, 2, v124
        v_add_u32 v124, {HB}, v124
        """)
        poll(hl, [99, 100], pre_issued=pre, last=96, masked=True)
        for (r, _, _, _) in hl: a(f"v_and_b32 v{r+3}, v{r+3}, v3")
        b = 96
        def pka(d, x, y):
            for i in (0, 2): a(f"v_pk_add_f32 v[{d+i}:{d+i+1}], v[{x+i}:{x+i+1}], v[{y+i}:{y+i+1}]")
        pka(b, b, b+4); pka(b+8, b+8, b+12); pka(b+16, b+16, b+20); pka(48, 48, 52)
        pka(b, b, b+8); pka(b+16, b+16, 48); pka(b, b, b+16)
        a(f"v_permlane32_swap_b32 v{b}, v{b+2}\nv_permlane32_swap_b32 v{b+1}, v{b+3}")
        for i in range(4): rbf(b+i)
        for i in range(2): a(f"v_mul_f32 v{b+i}, 0xbfb8aa3b, v{b+i}")
        for i in range(2): a(f"v_exp_f32 v{b+i}, v{b+i}")
        for i in range(2): a(f"v_add_f32 v{b+i}, 1.0, v{b+i}")
        for i in range(2): a(f"v_rcp_f32 v{b+i}, v{b+i}")
        for i in range(2): rbf(b+i)
        for i in range(2): a(f"v_mul_f32 v{b+i}, v{b+i}, v{b+2+i}")
        pack(b, 56, 1)
        a("ds_write_b32 v124, v56")
        if not cfg.hearly: cflag(C_H)
        else: a("s_waitcnt lgkmcnt(0)")
        a("L_noh:")
    wait(0xf, M_V3); pv(2)
    if cfg.mlat == 'V3': issue(ml, [57])
    if cfg.hearly: hblock(2)
    if cfg.sideat == 'V3': side_load()
    stamp(7)
    if 'v' in cfg.abl: a("s_endpgm")
    a("s_barrier")
    stamp(8)
    pv(3)
    if cfg.trim:
        exmask16(0xf)
        a(f"v_mov_b32 v5, {C_PUB}\ns_cmp_lg_u32 s98, 0")
        if cfg.bp == 'early': a("s_barrier")
        tag(72, 76, 97)
        a("s_cbranch_scc1 L_ofar\nbuffer_store_dwordx4 v[76:79], v12, s[32:35], s56 offen\nL_ostored:")
        if cfg.bp == 'early': a("s_mov_b64 exec, -1")
        elif cfg.bp: a("s_barrier\ns_mov_b64 exec, -1")
        else: a("s_mov_b64 exec, 1\nds_write_b32 v6, v5\ns_mov_b64 exec, -1")
    else:
        tag(72, 76, 97)
        exmask16(0xf)
        mstore(76, 12, 56)
        cflag(C_PUB)
    tstamp(1)
    if not cfg.hearly: hblock(1)
    def weights(pre):
        poll(ml, [57], pre_issued=pre)
        a(f"""
        s_mov_b32 s59, {LOG2E}
        v_max_f32 v88, v80, v84
        v_max_f32_dpp v88, v88, v88 row_ror:8 row_mask:0xf bank_mask:0xf
        v_mov_b32 v89, v88
        v_permlane16_swap_b32 v88, v89
        v_max_f32 v88, v88, v89
        v_mov_b32 v89, v88
        v_permlane32_swap_b32 v88, v89
        v_max_f32 v88, v88, v89
        v_sub_f32 v80, v80, v88
        v_sub_f32 v84, v84, v88
        v_mul_f32 v80, s59, v80
        v_mul_f32 v84, s59, v84
        v_exp_f32 v80, v80
        v_exp_f32 v84, v84
        v_mul_f32 v88, v80, v81
        v_fmac_f32 v88, v84, v85
        v_add_f32_dpp v88, v88, v88 row_ror:8 row_mask:0xf bank_mask:0xf
        v_mov_b32 v89, v88
        v_permlane16_swap_b32 v88, v89
        v_add_f32 v88, v88, v89
        v_mov_b32 v89, v88
        v_permlane32_swap_b32 v88, v89
        v_add_f32 v88, v88, v89
        v_rcp_f32 v88, v88
        v_mul_f32 v80, v80, v88
        v_mul_f32 v84, v84, v88
        """)
        if cfg.side == 'auto' and cfg.force is None:
            a(f"""
            s_mov_b32 s59, 0
    L_side:
            v_readfirstlane_b32 s29, v122
            s_add_u32 s59, s59, 1
            s_cmp_lg_u32 s29, 0
            s_cbranch_scc1 L_sideok
            s_cmp_ge_u32 s59, {cfg.NMAX}
            s_cbranch_scc1 L_sideok
            buffer_load_dword v122, v123, s[24:27], 0 offen sc1
            s_waitcnt vmcnt(0)
            s_branch L_side
    L_sideok:
            s_and_b32 s29, s29, 2
            s_lshl_b32 s29, s29, 12
            """)
        else: a(f"s_mov_b32 s29, {(cfg.side if cfg.force is None else cfg.force)*8192}")
        a("s_add_u32 s92, s92, s29\ns_add_u32 s28, s28, s29")
    if not cfg.afirst: weights(1)
    tstamp(2)
    if not cfg.bp: wait(0xff0, C_PUB)
    tstamp(3)
    oA = [(16, 10, 0, 0), (20, 10, 1, 0)]
    def reduce_scatter(r):
        a(f"""
        v_permlane32_swap_b32 v{r}, v{r+2}
        v_permlane32_swap_b32 v{r+1}, v{r+3}
        v_add_f32 v{r}, v{r}, v{r+2}
        v_add_f32 v{r+1}, v{r+1}, v{r+3}
        v_permlane16_swap_b32 v{r}, v{r+1}
        v_add_f32 v{r}, v{r}, v{r+1}
        v_add_f32_dpp v{r}, v{r}, v{r} row_ror:8 row_mask:0xf bank_mask:0xf
        """)
    if not cfg.tail2:
        poll([(16, 10, 0, 0), (20, 10, 1, 0)], [58, 91], t=95)
        stamp(9)
        a("ds_read_b32 v5, v4")
        for i in range(4): a(f"v_mul_f32 v{16+i}, v{16+i}, v80")
        for i in range(4): a(f"v_fmac_f32 v{16+i}, v{20+i}, v84")
        reduce_scatter(16)
        a("v_cvt_pk_bf16_f32 v16, v16, v16\nds_write_b16 v14, v16")
        a("s_cmp_ge_u32 s55, 4\ns_cbranch_scc1 L_final")
        a(f"s_waitcnt lgkmcnt({0 if cfg.diag else 1})\nv_cmp_gt_u32 vcc, v94, v5\ns_cbranch_vccz L_tiles")
        spin(5, 4, None, "v94")
        a("L_tiles:")
        tstamp(4)
        for k in range(2): a(f"ds_read2_b64 v[{56+4*k}:{59+4*k}], v91 offset0:{8*k} offset1:{8*k+4}")
        for k in range(2):
            for t in range(2): a(f"ds_read_b64_tr_b16 v[{32+4*k+2*t}:{33+4*k+2*t}], v15 offset:{16384+k*4096+t*2048}")
        for k in range(4):
            for t in range(2): a(f"ds_read_b64_tr_b16 v[{96+4*k+2*t}:{97+4*k+2*t}], v15 offset:{k*4096+t*2048}")
        a(f"s_waitcnt lgkmcnt({0 if cfg.diag else 14})\ns_barrier")
        stamp(10)
        a("s_waitcnt lgkmcnt(11)")
        for k in range(4): a(f"ds_read2_b64 v[{40+4*k}:{43+4*k}], v90 offset0:{8*k} offset1:{8*k+4}")
        a(f"s_waitcnt lgkmcnt({0 if cfg.diag else 12})")
        for k in range(2):
            a(f"v_mfma_f32_16x16x32_bf16 v[68:71], v[{32+4*k}:{35+4*k}], v[{56+4*k}:{59+4*k}], {'0' if k==0 else 'v[68:71]'}")
        for k in range(4):
            a(f"s_waitcnt lgkmcnt({0 if cfg.diag else 3-k})")
            a(f"v_mfma_f32_16x16x32_bf16 v[64:67], v[{96+4*k}:{99+4*k}], v[{40+4*k}:{43+4*k}], {'0' if k==0 else 'v[64:67]'}")
        exmask16(0xf)
        for i in range(4): a(f"v_cndmask_b32 v{64+i}, v{64+i}, v{68+i}, s[60:61]")
        tag(64, 68, 48)
        a(f"buffer_store_dwordx4 v[68:71], v92, s[32:35], s92 offen {cfg.fst}")
    else:
        if not cfg.atrig: issue(oA, [58, 91], cfg.apol)
        if cfg.afirst: weights(3)
        a(f"s_cmp_ge_u32 s55, 4\ns_cbranch_scc1 {'L_upA' if cfg.atrig else 'L_nopre'}")
        for i in range(40, 64): a(f"v_mov_b32 v{i}, 0")
        if not cfg.prog and not cfg.dnearly: wait(0xf, M_END)
        spin(5, 4, None, "v94")
        exmask16(0xc)
        for k in range(2): a(f"ds_read2_b64 v[{56+4*k}:{59+4*k}], v91 offset0:{8*k} offset1:{8*k+4}")
        a("s_mov_b64 exec, -1")
        for k in range(2):
            for t in range(2): a(f"ds_read_b64_tr_b16 v[{32+4*k+2*t}:{33+4*k+2*t}], v15 offset:{16384+k*4096+t*2048}")
        if cfg.atrig:
            wait(0xf, M_W2)
            issue(oA, [58, 91])
        if cfg.dnearly:
            wait(0xf, M_END)
            for kk in range(0 if cfg.trim2 else 2):
                pm(64, 32+4*kk, 56+4*kk, '0' if kk==0 else 'v[64:67]')
        for k in range(4):
            if cfg.prog:
                wait(0xf, M_W1 + k)
                if k == 0:
                    for kk in range(2):
                        pm(64, 32+4*kk, 56+4*kk, '0' if kk==0 else 'v[64:67]')
            if k == 3: tstamp(4)
            for t in range(2): a(f"ds_read_b64_tr_b16 v[{96+4*k+2*t}:{97+4*k+2*t}], v15 offset:{k*4096+t*2048}")
        if cfg.dnearly and cfg.trim2:
            for kk in range(2):
                pm(64, 32+4*kk, 56+4*kk, '0' if kk==0 else 'v[64:67]')
        a("L_nopre:")
        if cfg.fuse:
            a("s_mov_b32 s59, 0\ns_waitcnt vmcnt(0)")
            tstamp(5)
            a("L_ochk:")
            for k, r in enumerate((16, 20)):
                for i in range(4): a(f"v_xor_b32 v{r+i}, s{45+i if i < 3 else 97}, v{r+i}")
            a("""
L_ocomb:
            v_pk_mul_f32 v[24:25], v[16:17], v[80:81] op_sel_hi:[1,0]
            v_pk_mul_f32 v[26:27], v[18:19], v[80:81] op_sel_hi:[1,0]
            v_pk_fma_f32 v[24:25], v[20:21], v[84:85], v[24:25] op_sel_hi:[1,0,1]
            v_pk_fma_f32 v[26:27], v[22:23], v[84:85], v[26:27] op_sel_hi:[1,0,1]
            v_or3_b32 v5, v16, v17, v18
            v_or3_b32 v5, v5, v19, v20
            v_permlane32_swap_b32 v24, v26
            v_permlane32_swap_b32 v25, v27
            v_add_f32 v24, v24, v26
            v_add_f32 v25, v25, v27
            v_or3_b32 v5, v5, v21, v22
            v_or_b32 v5, v5, v23
            v_permlane16_swap_b32 v24, v25
            v_add_f32 v24, v24, v25
            v_and_b32 v5, 0xff, v5
            v_cmp_ne_u32 vcc, 0, v5
            v_add_f32_dpp v24, v24, v24 row_ror:8 row_mask:0xf bank_mask:0xf
            v_cvt_pk_bf16_f32 v24, v24, v24
            s_cbranch_vccnz L_oretry
L_ogood:
            ds_write_b16 v14, v24
            """)
            stamp(9)
            if cfg.diag == 2: a("s_mov_b32 s76, s59")
        else:
            if not cfg.omask: poll(oA, [58, 91], pre_issued=0)
            else:
                a("s_waitcnt vmcnt(0)")
                check([16, 20])
                a("s_cbranch_vccz L_ook\ns_mov_b32 s59, 0")
                for k, r in enumerate((16, 20)):
                    a(f"v_or3_b32 v5, v{r}, v{r+1}, v{r+2}\nv_or_b32 v5, v5, v{r+3}\nv_and_b32 v5, 0xff, v5\nv_cmp_ne_u32 s[{4+2*k}:{5+2*k}], 0, v5")
                a("L_om:")
                for k, (r, so) in enumerate(((16, 58), (20, 91))):
                    a(f"s_mov_b64 exec, s[{4+2*k}:{5+2*k}]\ns_cbranch_execz L_oms{k}\nbuffer_load_dwordx4 v[{r}:{r+3}], v10, s[32:35], s{so} offen sc1\nL_oms{k}:")
                a("s_add_u32 s59, s59, 1\ns_waitcnt vmcnt(0)")
                for k, r in enumerate((16, 20)):
                    a(f"s_mov_b64 exec, s[{4+2*k}:{5+2*k}]")
                    check([r])
                    a(f"s_mov_b64 s[{4+2*k}:{5+2*k}], vcc")
                a(f"s_or_b64 s[8:9], s[4:5], s[6:7]\ns_cbranch_scc0 L_omd\ns_cmp_lt_u32 s59, {cfg.NMAX}\ns_cbranch_scc1 L_om\nL_omd:\ns_mov_b64 exec, -1\nL_ook:")
            stamp(9)
            for i in range(0, 4, 2): a(f"v_pk_mul_f32 v[{16+i}:{17+i}], v[{16+i}:{17+i}], v[80:81] op_sel_hi:[1,0]")
            for i in range(0, 4, 2): a(f"v_pk_fma_f32 v[{16+i}:{17+i}], v[{20+i}:{21+i}], v[84:85], v[{16+i}:{17+i}] op_sel_hi:[1,0,1]")
            reduce_scatter(16)
            a("v_cvt_pk_bf16_f32 v16, v16, v16\nds_write_b16 v14, v16")
        a("s_cmp_ge_u32 s55, 4\ns_cbranch_scc1 L_final")
        if not cfg.prog and not cfg.dnearly:
            a("s_waitcnt lgkmcnt(9)")
            for k in range(2):
                a(f"v_mfma_f32_16x16x32_bf16 v[64:67], v[{32+4*k}:{35+4*k}], v[{56+4*k}:{59+4*k}], {'0' if k==0 else 'v[64:67]'}")
        exmask16(0x3)
        a("s_waitcnt lgkmcnt(0)\ns_barrier")
        stamp(10)
        for k in range(4):
            if cfg.trim: a(f"ds_read_b128 v[{40+4*k}:{43+4*k}], v90 offset:{64*k}")
            else: a(f"ds_read2_b64 v[{40+4*k}:{43+4*k}], v90 offset0:{8*k} offset1:{8*k+4}")
        a("s_mov_b64 exec, -1")
        for k in range(4):
            a(f"s_waitcnt lgkmcnt({0 if cfg.diag else 3-k})")
            pm(64, 96+4*k, 40+4*k, 'v[64:67]')
        if cfg.tr: a("s_mov_b64 exec, 0xffff")
        else: exmask16(0xf)
        tag(64, 68, 48)
        a(f"buffer_store_dwordx4 v[68:71], v92, s[32:35], s92 offen {cfg.fst}")
        if cfg.fwait: a("v_mov_b32 v5, 9\ns_mov_b64 exec, 1\nds_write_b32 v6, v5")
    stamp(11)
    dump_stamps(12)
    a("s_endpgm")
    if cfg.atrig:
        a("L_upA:")
        wait(0xf, M_W2)
        issue(oA, [58, 91])
        a("s_branch L_nopre")
    if cfg.trim: a("L_ofar:\nbuffer_store_dwordx4 v[76:79], v12, s[32:35], s56 offen sc1\ns_branch L_ostored")
    if cfg.fuse and cfg.omask:
        a(f"L_oretry:\ns_cmp_ge_u32 s59, {cfg.NMAX}\ns_cbranch_scc1 L_ogood")
        for k, r in enumerate((16, 20)):
            a(f"v_or3_b32 v5, v{r}, v{r+1}, v{r+2}\nv_or_b32 v5, v5, v{r+3}\nv_and_b32 v5, 0xff, v5\nv_cmp_ne_u32 s[{4+2*k}:{5+2*k}], 0, v5")
        a("L_om:")
        for k, (r, so) in enumerate(((16, 58), (20, 91))):
            a(f"s_mov_b64 exec, s[{4+2*k}:{5+2*k}]\ns_cbranch_execz L_oms{k}\nbuffer_load_dwordx4 v[{r}:{r+3}], v10, s[32:35], s{so} offen sc1\nL_oms{k}:")
        a("s_add_u32 s59, s59, 1\ns_waitcnt vmcnt(0)")
        for k, r in enumerate((16, 20)):
            a(f"s_mov_b64 exec, s[{4+2*k}:{5+2*k}]")
            check([r])
            a(f"s_mov_b64 s[{4+2*k}:{5+2*k}], vcc")
        a(f"s_or_b64 s[8:9], s[4:5], s[6:7]\ns_mov_b64 exec, -1\ns_cbranch_scc0 L_ocomb\ns_cmp_lt_u32 s59, {cfg.NMAX}\ns_cbranch_scc1 L_om\ns_branch L_ocomb")
    elif cfg.fuse:
        a(f"L_oretry:\ns_add_u32 s59, s59, 1\ns_cmp_ge_u32 s59, {cfg.NMAX}\ns_cbranch_scc1 L_ogood")
        issue(oA, [58, 91], cfg.rpol)
        a("s_waitcnt vmcnt(0)\ns_branch L_ochk")
    a("L_final:\ns_waitcnt lgkmcnt(0)\ns_barrier")
    stamp(10)
    if 'O' in cfg.wb: wbl2("L_nowb2")
    a("s_cmp_lg_u32 s55, 4\ns_cbranch_scc1 L_fin_exit\ns_cmp_lg_u32 s22, 0\ns_cbranch_scc1 L_fin_exit")
    a("s_mov_b32 s57, s28\ns_mov_b32 s59, 0")
    if cfg.fwait: wait(0xf0, 9)
    def fsum(b, d):
        if cfg.pkadd:
            for i in (0, 2): a(f"v_pk_add_f32 v[{b+i}:{b+i+1}], v[{b+i}:{b+i+1}], v[{b+4+i}:{b+5+i}]\nv_pk_add_f32 v[{b+8+i}:{b+9+i}], v[{b+8+i}:{b+9+i}], v[{b+12+i}:{b+13+i}]")
            for i in (0, 2): a(f"v_pk_add_f32 v[{d+i}:{d+i+1}], v[{b+i}:{b+i+1}], v[{b+8+i}:{b+9+i}]")
        else:
            for i in range(4): a(f"v_add_f32 v{b+i}, v{b+i}, v{b+4+i}\nv_add_f32 v{b+8+i}, v{b+8+i}, v{b+12+i}")
            for i in range(4): a(f"v_add_f32 v{d+i}, v{b+i}, v{b+8+i}")
    def fissue(base):
        for k in range(4): a(f"buffer_load_dwordx4 v[{base+4*k}:{base+3+4*k}], v7, s[32:35], s57 offen offset:{k*1024} {cfg.fld}")
    if cfg.fmode == 'plain':
        a("L_fp:")
        fissue(16)
        a("s_add_u32 s59, s59, 1\ns_waitcnt vmcnt(0)")
        if cfg.diag == 2:
            a("s_cmp_lg_u32 s59, 1\ns_cbranch_scc1 L_nf1")
            tstamp(5)
            a("L_nf1:")
        check([16, 20, 24, 28], 48)
        a(f"s_cbranch_vccz L_fok\ns_cmp_lt_u32 s59, {cfg.NMAX}\ns_cbranch_scc1 L_fp\nL_fok:")
        if cfg.diag == 2: a("s_mov_b32 s76, s59")
    elif cfg.fmode == 'pipe' and cfg.trim:
        def fcheck(b):
            for k in range(4):
                for i in range(4): a(f"v_xor_b32 v{b+4*k+i}, s{45+i}, v{b+4*k+i}")
            for i in (0, 2): a(f"v_pk_add_f32 v[{52+i}:{53+i}], v[{b+i}:{b+i+1}], v[{b+4+i}:{b+5+i}]\nv_pk_add_f32 v[{56+i}:{57+i}], v[{b+8+i}:{b+9+i}], v[{b+12+i}:{b+13+i}]")
            a(f"""
            v_or3_b32 v5, v{b}, v{b+1}, v{b+2}
            v_pk_add_f32 v[48:49], v[52:53], v[56:57]
            v_pk_add_f32 v[50:51], v[54:55], v[58:59]
            v_or3_b32 v5, v5, v{b+3}, v{b+4}
            v_or3_b32 v5, v5, v{b+5}, v{b+6}
            v_permlane32_swap_b32 v48, v{49 if cfg.tr else 50}
            v_permlane32_swap_b32 v{50 if cfg.tr else 49}, v51
            v_add_f32 v48, v48, v{49 if cfg.tr else 50}
            v_add_f32 v49, v{50 if cfg.tr else 49}, v51
            v_or3_b32 v5, v5, v{b+7}, v{b+8}
            v_or3_b32 v5, v5, v{b+9}, v{b+10}
            v_permlane16_swap_b32 v48, v49
            v_add_f32 v48, v48, v49
            v_or3_b32 v5, v5, v{b+11}, v{b+12}
            v_or3_b32 v5, v5, v{b+13}, v{b+14}
            v_add_f32_dpp v48, v48, v48 row_ror:8 row_mask:0xf bank_mask:0xf
            v_or_b32 v5, v5, v{b+15}
            v_and_b32 v5, 0xff, v5
            v_cmp_ne_u32 vcc, 0, v5
            {"v_mov_b32 v49, v48" if cfg.tr else "v_mov_b32_dpp v49, v48 row_ror:4 row_mask:0xf bank_mask:0xf"}
            """)
        a("v_lshlrev_b32 v121, 16, v121")
        sets = [16, 32, 64, 80][:cfg.nsets]
        for b in sets[:-1]: fissue(b)
        a("L_fp:")
        for i, b in enumerate(sets):
            fissue(sets[i-1])
            if i == 0: a("s_add_u32 s59, s59, 1")
            a(f"s_waitcnt vmcnt({4*(len(sets)-1)})")
            fcheck(b)
            a("s_cbranch_vccz L_fok")
        a(f"s_cmp_lt_u32 s59, {cfg.NMAX}\ns_cbranch_scc1 L_fp\nL_fok:")
    elif cfg.fmode == 'pipe':
        fissue(16)
        a("L_fp:")
        fissue(32)
        a("s_add_u32 s59, s59, 1\ns_waitcnt vmcnt(4)")
        check([16, 20, 24, 28], 48)
        a("s_cbranch_vccz L_fok")
        fissue(16)
        a("s_waitcnt vmcnt(4)")
        check([32, 36, 40, 44], 48)
        a(f"s_cbranch_vccz L_fok2\ns_cmp_lt_u32 s59, {cfg.NMAX}\ns_cbranch_scc1 L_fp\nL_fok2:")
        stamp(11)
        fsum(32, 48)
        a("s_branch L_fmath\nL_fok:")
    elif cfg.fmode == 'mask':
        for k in range(4): a(f"s_mov_b64 s[{4+2*k}:{5+2*k}], -1")
        a("L_fp:")
        for k in range(4):
            a(f"s_mov_b64 exec, s[{4+2*k}:{5+2*k}]\ns_cbranch_execz L_fs{k}\nbuffer_load_dwordx4 v[{16+4*k}:{19+4*k}], v7, s[32:35], s57 offen offset:{k*1024} {cfg.fld}\nL_fs{k}:")
        a("s_add_u32 s59, s59, 1\ns_waitcnt vmcnt(0)")
        for k in range(4):
            a(f"s_mov_b64 exec, s[{4+2*k}:{5+2*k}]")
            check([16+4*k], 48)
            a(f"s_mov_b64 s[{4+2*k}:{5+2*k}], vcc")
        a(f"s_or_b64 s[12:13], s[4:5], s[6:7]\ns_or_b64 s[14:15], s[8:9], s[10:11]\ns_or_b64 s[12:13], s[12:13], s[14:15]\ns_cbranch_scc0 L_fok\ns_cmp_lt_u32 s59, {cfg.NMAX}\ns_cbranch_scc1 L_fp\nL_fok:\ns_mov_b64 exec, -1")
    stamp(11)
    if not cfg.trim:
        fsum(16, 48)
        a("L_fmath:")
        reduce_scatter(48)
        a("v_mov_b32_dpp v49, v48 row_ror:4 row_mask:0xf bank_mask:0xf\nv_lshlrev_b32 v121, 16, v121")
    if cfg.trim2:
        if cfg.tr: a("s_nop 0\nv_permlane16_swap_b32 v48, v49")
        a("v_cvt_pk_bf16_f32 v49, 0, v49\nv_cvt_pk_bf16_f32 v48, 0, v48")
        outmask()
    else: a("v_cvt_pk_bf16_f32 v48, v48, v49\nv_and_b32 v49, 0xffff0000, v48\nv_lshlrev_b32 v48, 16, v48")
    a(f"""
    v_mul_f32 v50, 0xbfb8aa3b, v49
    v_exp_f32 v50, v50
    v_add_f32 v50, 1.0, v50
    v_rcp_f32 v50, v50
    v_mul_f32 v49, v49, v50
    """)
    rbf(49)
    a("v_mul_f32 v48, v48, v49")
    rbf(48)
    a("v_add_f32 v48, v121, v48\nv_cvt_pk_bf16_f32 v48, v48, v48")
    if not cfg.trim2: exmask16(0xf)
    a(f"buffer_store_short v48, v120, s[40:43], s31 offen {cfg.outpol}")
    a("s_cmp_lg_u32 s30, 0\ns_cbranch_scc1 L_fin_exit\nv_mov_b32 v52, s44\nv_mov_b32 v53, 0\ns_mov_b64 exec, 1\nbuffer_store_dword v52, v53, s[32:35], 0 offen " + cfg.epol)
    if cfg.amp:
        a("s_memrealtime s[88:89]\ns_waitcnt lgkmcnt(0)")
        i, k = cfg.amp
        if i is None: a(f"s_add_u32 s90, s64, {k}")
        else: a(f"s_sub_u32 s90, s{64+2*i}, s64\ns_mul_i32 s90, s90, {k}\ns_add_u32 s90, s90, s64")
        a("L_amp:\ns_memrealtime s[92:93]\ns_waitcnt lgkmcnt(0)\ns_sub_u32 s91, s92, s90\ns_cmp_lt_i32 s91, 0\ns_cbranch_scc1 L_amp")
    a("L_fin_exit:")
    stamp(12)
    dump_stamps(13)
    a("L_exit:\ns_endpgm\nL_codeend:")
    body = a.text()
    head = f"""; Fused decode step, one launch:  out = x + (attention(LN(x)) @ wo) * silu(GLU(LN(x)))
; 256 workgroups (one per CU, all resident) of 12 waves.  id = 8*j + h:  h = kv head, j = (b, key split) for attention,
;  - waves 0-3 stream everything the workgroup needs into LDS once (x, wq/gate/up tiles, 256 keys of K and V, down/wo tiles);
;    progress is published in LDS words, waves 4-11 compute as the data lands (MFMA 16x16x32 bf16, transposing LDS reads).
;  - q / gate-up / (max,sum) / o partials go to the 31 other workgroups of the same h.  These are plain stores that stay in the
;    die's L2 when the group shares a die; the q tag carries the writer's die id, and if any writer sits elsewhere the group
;  - projection partials go write-through to 64 finishing workgroups (8 columns x 2 batch rows each).
;  - roundings to bf16 follow the reference (layernorm steps, q, scores, scaled scores, o, gate/up, h, s, d, silu, product, sum).
; @launch grid=(256,1,1) block=(768,1,1) lds=163840
.amdgcn_target "amdgcn-amd-amdhsa--gfx950"
.text
.globl {NAME}
.p2align 8
.type {NAME},@function
{NAME}:
"""
    tail = f"""
.section .rodata,"a"
.p2align 6
.amdhsa_kernel {NAME}
  .amdhsa_next_free_vgpr 128
  .amdhsa_next_free_sgpr 102
  .amdhsa_accum_offset 128
  .amdhsa_group_segment_fixed_size 0
  .amdhsa_kernarg_size 96
  .amdhsa_user_sgpr_count 2
  .amdhsa_user_sgpr_kernarg_segment_ptr 1
  .amdhsa_system_sgpr_workgroup_id_x 1
  .amdhsa_float_denorm_mode_32 3
.end_amdhsa_kernel
"""
    return head + body + tail

if __name__ == "__main__":
    kw = {}
    out = "recurrent_scan__sliding_block_cached__glu_gated_glu__decode.s"
    for arg in sys.argv[1:]:
        if arg.startswith("out="): out = arg[4:]; continue
        k, v = arg.split("=")
        try: v = eval(v)
        except Exception: pass
        kw[k] = v
    open(out, "w").write(gen(Cfg(**kw)))
    print("wrote", out)
```

```python
import sys
from asmlib import Asm

NAME = "recurrent_scan__sliding_block_cached__glu_gated_glu__decode_kernel"

K_L, V_L = 0, 65536
WQ_L, G_L, U_L = 98304, 114688, 122880
WO_L, DN_L = 131072, 147456
SM = 155648
FLAGS, MX, HB, OB, QB, XN, PB = SM, SM+64, SM+256, SM+640, SM+1280, SM+2560, SM+4864
HBS, OBS, QBS, XNS = 192, 320, 320, 1088
QA, GA, MA, OA, MIR, FR, DIAG = 0x10000, 0x30000, 0x70000, 0x80000, 0x100000, 0x200000, 0x400000
WS_BYTES = 0x8000000
PROBE = 0x80000
LOG2E = "0x3fb8aa3b"
OOB = 0x40000000
M_X, M_WQ, M_GU, M_K, M_V1, M_V2, M_V3, M_DN, M_W1, M_W2, M_W3, M_END = 1, 2, 3, 4, 5, 6, 7, 8, 9, 10, 11, 12
C_XN, C_TILE, C_Q, C_MAX, C_P, C_PUB, C_H = 1, 2, 3, 4, 5, 6, 8

class Cfg:
    D = 6
    D0 = None
    diag = False
    N0 = 64
    NMAX = 400000
    perm = "s"
    pf = 'c'
    safe = False
    pol = 'nt'
    prio = 2
    kvmap = 'contig'
    fmode = 'pipe'
    near_pol = ''
    cgshift = 0
    probe = None
    side = 'auto'
    adapt = None
    lprio = 3
    earlywar = True
    abl = ''
    prog = False
    dnpos = 4
    wopos = 0
    dnearly = True
    omask = False
    outpol = ''
    race = 0
    rstep = 256
    rank = 0
    hsplit = 1
    fuse = True
    trim = True
    trim2 = True
    epol = 'sc1'
    tprio = 0
    xmode = 'dup'
    nsets = 2
    strict = None
    Dsched = None
    spf = ''
    spfw = (0, 22)
    spfh = 1
    spfb = 8
    bp = True
    hold = (44, 8)
    apol = 'sc1'
    rpol = 'sc1'
    gpol = 'sc1'
    mlat = 'V3'
    atrig = None
    afirst = False
    hearly = True
    tr = True
    cmap = True
    mir = 0x200000
    fwait = False
    tlb = ''
    pkadd = True
    rounds = 1
    fin = 0
    force = None
    sidewave = 'five'
    sideat = 'V2'
    leader = None
    qtrig = 3
    fmap = None
    tail2 = True
    Dk = 5
    Dv = None
    Dt = 5
    kv = [x << 10 for x in [8,16,1,512,4,2,64,32,128,258,0,512,16,0]]
    preout = 'st'
    pre1 = False
    pretouch = False
    fst = 'sc1'
    fld = 'sc1'
    wb = ''
    wbj = 31
    preF = 'split'
    preFpol = 'sc1'
    fr = 0x100000
    streamonly = False
    amp = None
    def __init__(self, **kw):
        for k, v in kw.items():
            assert hasattr(self, k), k
            setattr(self, k, v)

def gen(cfg):
    global MIR
    MIR = cfg.mir
    assert not cfg.bp or (cfg.hold and cfg.trim)
    a = Asm()
    if cfg.leader is None: cfg.leader = cfg.fin ^ 0x80
    inv = ((cfg.leader ^ cfg.fin) & 4) != 0
    incompute = [False]
    def stamp(i):
        if cfg.diag == 2 and incompute[0] and 1 <= i <= 6: return
        if cfg.diag: a(f"s_memrealtime s[{64+2*i}:{65+2*i}]")
    def tstamp(i):
        if cfg.diag == 2: a(f"s_memrealtime s[{64+2*i}:{65+2*i}]")
    def dump_stamps(n):
        if not cfg.diag or cfg.amp: return
        a("s_waitcnt lgkmcnt(0)")
        a("s_mov_b64 exec, -1")
        a("v_mov_b32 v125, 0")
        for i in range(n):
            a(f"v_writelane_b32 v125, s{64+2*i}, {i}")
        a(f"s_mul_i32 s62, s2, {12*64}\ns_lshl_b32 s63, s3, 6\ns_add_u32 s62, s62, s63\ns_add_u32 s62, s62, {DIAG}")
        a("v_lshlrev_b32 v124, 2, v0\ns_mov_b64 exec, 0xffff")
        a("buffer_store_dword v125, v124, s[32:35], s62 offen")
    def srd_tail(r, n):
        a(f"s_mov_b32 s{r+2}, {n}\ns_mov_b32 s{r+3}, 0x20000")
    def exmask16(m):
        v = hex(m | (m << 16)); a(f"s_mov_b32 exec_lo, {v}\ns_mov_b32 exec_hi, {v}")
    lab = [0]
    def L(p):
        lab[0] += 1
        return f"L{p}{lab[0]}"
    def spin(vdst, vaddr, mask, val, body=None):
        w = L("w")
        if cfg.safe: a("s_mov_b32 s94, 0")
        a(f"{w}:\nds_read_b32 v{vdst}, v{vaddr}")
        if cfg.safe: a(f"s_add_u32 s94, s94, 1\ns_bitcmp1_b32 s94, 20\ns_cbranch_scc1 {w}x")
        a("s_waitcnt lgkmcnt(0)")
        if body: body()
        a(f"v_cmp_gt_u32 vcc, {val}, v{vdst}")
        if mask is not None: a(f"s_and_b64 vcc, vcc, {hex(mask)}")
        if 's' in cfg.abl and incompute[0]: a(f"s_cbranch_vccz {w}y\ns_sleep 1\ns_branch {w}\n{w}y:")
        else: a(f"s_cbranch_vccnz {w}")
        if cfg.safe: a(f"{w}x:\ns_waitcnt lgkmcnt(0)")
    NP = cfg.near_pol
    def code_prefetch(vt, v16, dst):
        a(f"""
        s_getpc_b64 s[60:61]
L_pc:
        s_sub_u32 s60, s60, L_pc-{NAME}
        s_subb_u32 s61, s61, 0
        s_lshl_b32 s58, s51, 10
        v_add_u32 v{vt}, s58, v{v16}
        v_cmp_gt_u32 vcc, L_codeend-{NAME}-15, v{vt}
        s_and_saveexec_b64 s[58:59], vcc
        s_cbranch_execz L_nopf2
        global_load_dwordx4 v[{dst}:{dst+3}], v{vt}, s[60:61]
L_nopf2:
        s_mov_b64 exec, -1
        v_add_u32 v{vt}, 8192, v{vt}
        v_cmp_gt_u32 vcc, L_codeend-{NAME}-15, v{vt}
        s_and_saveexec_b64 s[58:59], vcc
        s_cbranch_execz L_nopf3
        global_load_dwordx4 v[{dst+4}:{dst+7}], v{vt}, s[60:61]
L_nopf3:
        s_mov_b64 exec, -1
        """)

    a(f"""
    s_load_dwordx2 s[36:37], s[0:1], 0
    s_load_dwordx2 s[12:13], s[0:1], 24
    s_cmpk_ge_u32 s2, 256
    s_cbranch_scc1 L_exit
    v_lshrrev_b32 v1, 6, v0
    v_and_b32 v0, 63, v0
    s_lshr_b32 s50, s2, 3         ; j
    v_readfirstlane_b32 s3, v1    ; wave
    s_and_b32 s49, s2, 7          ; h
    s_and_b32 s51, s50, 7         ; cg
    s_lshr_b32 s52, s50, 3        ; rg
    s_cmp_ge_u32 s3, 4
    s_cbranch_scc1 L_compute
    """)
    stamp(0)
    if cfg.adapt: a("s_memrealtime s[100:101]")
    a(f"""
    s_movk_i32 s38, 2048
    {"s_setprio %d" % cfg.lprio if cfg.lprio else ""}
    s_lshl_b32 s39, 1, 17
    v_lshlrev_b32 v9, 4, v0
    s_and_b32 s56, s3, 1
    s_lshl_b32 s57, s56, 10
    s_mulk_i32 s56, {XNS}
    """)
    if cfg.xmode == 'half': a("s_lshr_b32 s61, s3, 1\ns_lshl_b32 s61, s61, 9\ns_add_u32 s57, s57, s61\ns_add_u32 s56, s56, s61")
    a(f"""
    s_add_u32 m0, s56, {XN}
    s_lshl_b32 s14, 1, 22
    s_mov_b32 s15, s39
    v_and_b32 v2, 7, v0
    v_lshlrev_b32 v2, 4, v2
    """)
    if cfg.xmode == 'half': a("s_mov_b32 exec_hi, 0\ns_waitcnt lgkmcnt(0)\nbuffer_load_dwordx4 v9, s[36:39], s57 offen lds      ; half of x row (lw&1)\ns_mov_b32 exec_hi, -1")
    elif cfg.xmode == 'two': a("s_cmp_ge_u32 s3, 2\ns_waitcnt lgkmcnt(0)\ns_cbranch_scc1 L_nox\nbuffer_load_dwordx4 v9, s[36:39], s57 offen lds\nL_nox:")
    else: a("s_waitcnt lgkmcnt(0)\nbuffer_load_dwordx4 v9, s[36:39], s57 offen lds")
    a(f"""
    v_lshrrev_b32 v3, 4, v0
    v_lshlrev_b32 v3, 5, v3
    v_xor_b32 v2, v2, v3
    v_lshrrev_b32 v1, 3, v0            ; r = l>>3
    v_lshl_add_u32 v10, v1, 13, v2     ; wq: row stride 8192
    s_lshl4_add_u32 s55, s52, s3
    s_lshl_b32 s55, s55, 6
    s_add_u32 s55, s55, s49
    s_lshl3_add_u32 s55, s55, s51
    s_lshl_b32 s55, s55, 7
    s_lshl_b32 s61, s3, 10             ; lw*1024
    s_add_u32 m0, s61, {WQ_L}
    s_lshl_b32 s47, 1, 18
    """)
    stamp(6)
    n = [1]
    X = 1
    D = cfg.D
    D0 = cfg.D0 or D
    landed = [0]
    Dover = [None]
    miles = {}
    def flag(val):
        a(f"v_mov_b32 v21, {val}\ns_mov_b64 exec, 1\nds_write_b32 v20, v21\ns_mov_b64 exec, -1")
    def pre_issue():
        i = n[0]
        if i >= D0:
            Dn = D
            if i >= X + 8 and cfg.Dk: Dn = cfg.Dk
            if i >= X + 24 and cfg.Dv: Dn = cfg.Dv
            if cfg.Dsched:
                for frm, dep in cfg.Dsched:
                    if i >= X + frm: Dn = dep
            if i >= X + last['v3'] and cfg.Dt: Dn = cfg.Dt
            if cfg.hold and i >= X + cfg.hold[0]: Dn = cfg.hold[1]
            if Dover[0]: Dn = Dover[0]
            Dn = int(Dn) + (1 if (Dn != int(Dn) and i & 1) else 0)
            want = i - Dn + 1
            if want > landed[0]:
                a(f"s_waitcnt vmcnt({i - want})")
                landed[0] = want
                if cfg.strict and X + cfg.strict[0] <= i < X + cfg.strict[1]:
                    t = L("st")
                    a(f"s_cbranch_vccnz {t}\ns_waitcnt vmcnt({i - want - 1})\n{t}:")
    def post_issue():
        n[0] += 1
        for k in sorted(miles):
            if k <= landed[0]: miles.pop(k)()
    miles[1] = lambda: (flag(M_X), stamp(7))
    miles[X+4] = lambda: flag(M_WQ)
    miles[X+8] = lambda: flag(M_GU)
    miles[X+24] = lambda: (flag(M_K), stamp(5))
    miles[X+28] = lambda: flag(M_V1)
    miles[X+32] = lambda: flag(M_V2)
    miles[X+36] = lambda: flag(M_V3)
    miles[X+40] = lambda: (stamp(3), a("s_barrier"))
    if cfg.dnearly: miles[X+42] = lambda: flag(M_DN)
    if cfg.atrig: miles[X+cfg.atrig] = lambda: flag(M_W2)
    if cfg.prog:
        miles[X+42] = lambda: flag(M_DN)
        miles[X+43] = lambda: flag(M_W1)
        miles[X+44] = lambda: flag(M_W2)
        miles[X+45] = lambda: flag(M_W3)
    def setvcc():
        if cfg.strict: a(f"s_cmp_ge_u32 s3, {cfg.strict[2]}\ns_cselect_b64 vcc, -1, 0")
    def setup_rest():
        a("""
        s_load_dwordx2 s[20:21], s[0:1], 48
        s_load_dwordx2 s[24:25], s[0:1], 56
        s_load_dwordx2 s[4:5], s[0:1], 8
        s_load_dwordx2 s[8:9], s[0:1], 16
        s_load_dwordx2 s[28:29], s[0:1], 64
        s_load_dwordx2 s[16:17], s[0:1], 32
        """)
        if cfg.pf == 'l':
            a("s_cmp_lg_u32 s3, 3\ns_cbranch_scc1 L_nopf")
            code_prefetch(31, 9, 32)
            a("L_nopf:")
        a(f"""
        s_cmp_lg_u32 s3, 0
        s_cbranch_scc1 L_noinit
        v_lshlrev_b32 v4, 2, v0
        v_add_u32 v4, {FLAGS}, v4
        v_mov_b32 v5, 0
        s_mov_b64 exec, 0xffff
        ds_write_b32 v4, v5           ; progress flags start at zero
        s_mov_b64 exec, -1
L_noinit:
        v_mul_u32_u24 v5, 3584, v1
        v_add_u32 v11, v5, v2              ; gate/up: row stride 3584
        v_lshl_add_u32 v12, v1, 10, v2     ; wo/down: row stride 1024
        s_mov_b32 s22, {512*1792*2}
        s_mov_b32 s23, s39
        s_mov_b32 s26, s22
        s_mov_b32 s27, s39
        s_mov_b32 s30, s22
        s_mov_b32 s31, s39
        s_lshl_b32 s6, 1, 27
        s_mov_b32 s7, s39
        s_mov_b32 s10, s6
        s_mov_b32 s11, s39
        s_mov_b32 s18, s14
        s_mov_b32 s19, s39
        s_lshr_b32 s53, s50, 4        ; b
        s_and_b32 s54, s50, 15        ; split
        s_add_u32 s57, s51, {cfg.cgshift}
        s_and_b32 s57, s57, 7
        s_lshl_b32 s57, s57, 7
        s_lshl3_add_u32 s58, s52, s49      ; u
        s_cmp_ge_u32 s58, 28
        s_cselect_b32 s59, {OOB}, 0
        s_lshl3_add_u32 s56, s51, s3
        s_mulk_i32 s56, {8*3584}
        s_lshl_b32 s60, s58, 7
        s_add_u32 s56, s56, s60
        s_add_u32 s56, s56, s59
        v_lshrrev_b32 v1, 4, v0
        v_and_b32 v2, 15, v0
        v_xor_b32 v3, v2, v1
        v_lshlrev_b32 v3, 4, v3
        v_lshl_add_u32 v13, v1, 8, v3
        v_xor_b32 v14, 64, v13
        v_xor_b32 v15, 128, v13
        v_xor_b32 v16, 192, v13
        v_lshrrev_b32 v3, 1, v2
        v_xor_b32 v3, v3, v1
        v_lshlrev_b32 v3, 5, v3
        v_and_b32 v4, 1, v0
        v_lshl_add_u32 v3, v4, 4, v3
        v_lshl_add_u32 v17, v1, 8, v3
        v_xor_b32 v18, 128, v17
        s_lshl_b32 s62, s53, 3
        s_add_u32 s62, s62, s49
        s_lshl_b32 s62, s62, 23            ; (b*8+h) * 8MB
        s_add_u32 s62, s62, {28672*256}
        """)
        if cfg.kv == 'table':
            a(f"""
            s_load_dwordx2 s[98:99], s[0:1], 88
            s_lshl2_add_u32 s92, s2, s3
            s_lshl_b32 s92, s92, 2
            s_add_u32 s92, s92, {0x500100}
            s_waitcnt lgkmcnt(0)
            s_load_dword s93, s[98:99], s92
            s_add_u32 s98, s98, {0x500000}
            s_addc_u32 s99, s99, 0
            s_load_dwordx8 s[84:91], s[98:99], 0
            s_waitcnt lgkmcnt(0)
            s_add_u32 s62, s62, s93
            """)
        elif cfg.kv:
            a("s_mov_b32 s63, 0")
            bits = [(3, 0), (3, 1), (54, 0), (54, 1), (54, 2), (54, 3), (49, 0), (49, 1), (49, 2), (53, 0)]
            for (r, b), m in zip(bits, cfg.kv[4:]):
                if m: a(f"s_bitcmp1_b32 s{r}, {b}\ns_cselect_b32 s93, {m}, 0\ns_xor_b32 s63, s63, s93")
            a("s_add_u32 s62, s62, s63")
        contig = cfg.kvmap == 'contig'
        if cfg.kv: a("s_mov_b32 s63, 0")
        else: a(f"s_lshl_b32 s63, s54, {16 if contig else 12}\ns_add_u32 s62, s62, s63")
        if cfg.kv: pass
        elif cfg.perm == "s": a("s_xor_b32 s63, s3, s54")
        elif cfg.perm == "none": a("s_mov_b32 s63, s3")
        elif cfg.perm == "sh": a("s_add_u32 s63, s54, s49\ns_and_b32 s63, s63, 15\ns_xor_b32 s63, s63, s3")
        elif cfg.perm == "hb": a("s_lshl_b32 s63, s53, 3\ns_add_u32 s63, s63, s49\ns_xor_b32 s63, s63, s3")
        a(f"""
        s_lshl_b32 s63, s63, {12 if contig else 16}
        s_add_u32 s62, s62, s63
        s_lshl_b32 s63, s49, 2
        s_add_u32 s63, s63, s52
        s_lshl_b32 s63, s63, 4
        s_add_u32 s63, s63, s3
        s_lshl_b32 s63, s63, 13
        s_add_u32 s63, s63, s57
        s_lshl_b32 s60, s58, 3
        s_add_u32 s60, s60, s3
        s_lshl_b32 s60, s60, 13
        s_add_u32 s60, s60, s57
        s_add_u32 s60, s60, s59
        s_lshl_b32 s58, s3, 2
        s_add_u32 s58, s58, {FLAGS}
        v_mov_b32 v20, s58
        v_lshlrev_b32 v22, 2, v2
        v_add_u32 v22, {FLAGS}, v22
        s_lshl_b32 s58, s3, 12             ; lw*4096
        s_waitcnt lgkmcnt(0)
        """)
        setvcc()
        if cfg.tlb == 's':
            a(f"""
            s_cmp_lg_u32 s3, 1
            s_cbranch_scc1 L_notlb
            s_load_dword s97, s[4:5], s62
            s_load_dword s97, s[8:9], s62
            s_and_b32 s95, s63, 0x3fffff
            s_load_dword s97, s[16:17], s95
            s_load_dword s97, s[28:29], 0
            s_load_dword s97, s[24:25], 0
L_notlb:
            """)
    setup_done = [False]; barrier_done = [False]
    def maybe_setup():
        if not setup_done[0] and n[0] == X + 4:
            setup_rest(); setup_done[0] = True
        if not barrier_done[0] and n[0] == D0:
            a("s_barrier"); stamp(1); barrier_done[0] = True
    steps = []
    def wsteps(srd, v, soff, step, cnt, ldsbase, first=False):
        for i in range(cnt):
            def f(i=i):
                maybe_setup()
                if i == 0:
                    if not first: a(f"s_add_u32 m0, s61, {ldsbase}")
                    so = f"s{soff}"
                elif first:
                    a(f"s_addk_i32 m0, 4096\ns_add_u32 s{soff}, s{soff}, s47"); so = f"s{soff}"
                else:
                    a(f"s_add_u32 m0, s61, {ldsbase + i*4096}\ns_add_u32 s46, s{soff}, {i*step}"); so = "s46"
                pre_issue()
                a(f"buffer_load_dwordx4 v{v}, s[{srd}:{srd+3}], {so} offen {cfg.pol} lds")
                post_issue()
            steps.append(f)
    def kvsteps(srd, regs, ldsbase, isv):
        for i in range(4):
            for cc in range(4):
                def f(i=i, cc=cc):
                    if cc == 0 and isv and i == 2 and not cfg.streamonly and 'a' not in cfg.abl:
                        if cfg.earlywar:
                            w = L("ew")
                            a(f"s_waitcnt lgkmcnt(0)\nv_cmp_gt_u32 vcc, {C_TILE}, v23\ns_and_b64 vcc, vcc, 0xff0\ns_cbranch_vccz {w}")
                            spin(23, 22, 0xff0, C_TILE)
                            a(f"{w}:")
                            setvcc()
                        else: spin(23, 22, 0xff0, C_TILE)
                    if cfg.earlywar and cc == 2 and isv and i == 1 and not cfg.streamonly: a("ds_read_b32 v23, v22")
                    maybe_setup()
                    if cc == 0: a(f"s_add_u32 m0, s58, {ldsbase + i*16384}")
                    else: a("s_addk_i32 m0, 1024")
                    c = (cfg.kv[2] if i & 1 else 0) ^ (cfg.kv[3] if i & 2 else 0) ^ (cfg.kv[0] if cc & 1 else 0) ^ (cfg.kv[1] if cc & 2 else 0)
                    a(f"s_xor_b32 s96, s62, {c}")
                    pre_issue()
                    a(f"buffer_load_dwordx4 v{regs[cc % len(regs)]}, s[{srd}:{srd+3}], s96 offen {cfg.pol} lds")
                    post_issue()
                steps.append(f)
    wsteps(12, 10, 55, 32*8192, 4, WQ_L, first=True)
    wsteps(20, 11, 56, 32*3584, 2, G_L)
    wsteps(24, 11, 56, 32*3584, 2, U_L)
    kvsteps(4, [13, 14, 15, 16], K_L, False)
    kvsteps(8, [17, 18], V_L, True)
    wsteps(28, 12, 60, 32*1024, 2, DN_L)
    wsteps(16, 12, 63, 32*1024, 4, WO_L)
    head, V, DN, WO = steps[:24], steps[24:40], steps[40:42], steps[42:46]
    order = [('h', f) for f in head]
    for q in range(4):
        if cfg.dnpos == q: order += [('d', f) for f in DN]
        if q == 3: order += [('w', f) for f in WO[:cfg.wopos]]
        order += [('v%d' % q, f) for f in V[4*q:4*q+4]]
    if cfg.dnpos == 4: order += [('d', f) for f in DN]
    order += [('w', f) for f in WO[cfg.wopos:]]
    steps = [f for _, f in order]
    last = {k: i + 1 for i, (k, _) in enumerate(order)}
    if not cfg.prog:
        if cfg.dnearly: miles.pop(X+42)
        for old, new in ((28, 'v0'), (32, 'v1'), (36, 'v2'), (40, 'v3')):
            miles[('n', X + last[new])] = miles.pop(X + old)
        for k in [k for k in miles if isinstance(k, tuple)]: miles[k[1]] = miles.pop(k)
        if cfg.dnearly:
            if cfg.dnpos == 4: miles[X+42] = lambda: flag(M_DN)
            else:
                bv = miles[X+last['v3']]
                miles[X+last['v3']] = lambda: (flag(M_DN), bv())
    def finish():
        assert n[0] == 46 + X and barrier_done[0]
        for k in sorted(miles):
            a(f"s_waitcnt vmcnt({46+X-k})"); miles[k]()
        miles.clear()
        a("s_waitcnt vmcnt(0)")
        flag(M_END)
        stamp(4)
        if cfg.diag:
            a("s_load_dwordx2 s[32:33], s[0:1], 88"); srd_tail(32, WS_BYTES)
            a("s_getreg_b32 s80, hwreg(HW_REG_HW_ID)")
            dump_stamps(9)
        a("s_endpgm")
    if not cfg.adapt:
        for f in steps + [None]:
            if cfg.hold and n[0] == X + cfg.hold[0] and not cfg.streamonly:
                if landed[0] < X + last['v3']:
                    a(f"s_waitcnt vmcnt({n[0] - (X + last['v3'])})"); landed[0] = X + last['v3']
                    for k in sorted(miles):
                        if k <= landed[0]: miles.pop(k)()
                if cfg.bp: a("s_barrier")
                else: spin(23, 22, 0xff0, C_PUB)
            if f: f()
        finish()
    else:
        at, levels = cfg.adapt
        for f in steps[:at - X]: f()
        a("s_memrealtime s[98:99]\ns_waitcnt lgkmcnt(0)\ns_sub_u32 s98, s98, s100")
        for li, (ticks, dep) in enumerate(levels):
            a(f"s_cmp_gt_u32 s98, {ticks}\ns_cbranch_scc1 L_late{li}")
        saved = (n[0], landed[0], dict(miles))
        for li, (ticks, dep) in enumerate([(None, None)] + list(levels)):
            n[0], landed[0] = saved[0], saved[1]; miles.clear(); miles.update(saved[2])
            if li: a(f"L_late{li-1}:")
            Dover[0] = dep
            for f in steps[at - X:]: f()
            finish()

    a("L_compute:")
    incompute[0] = True
    a("""
    s_load_dwordx2 s[32:33], s[0:1], 88
    s_load_dwordx4 s[40:43], s[0:1], 72
    v_lshlrev_b32 v7, 4, v0           ; l*16
    s_sub_u32 s55, s3, 4
    """)
    stamp(0)
    if cfg.pf == 'c':
        a("s_cmp_lg_u32 s55, 7\ns_cbranch_scc1 L_nopf")
        code_prefetch(122, 7, 112)
        a("L_nopf:")
    a("s_barrier")
    if cfg.streamonly: a("s_endpgm")
    if cfg.prio: a(f"s_setprio {cfg.prio}")
    srd_tail(36, 2048); srd_tail(32, WS_BYTES)
    a(f"""
    s_lshr_b32 s53, s50, 4        ; b
    s_and_b32 s54, s50, 15        ; split
    s_waitcnt lgkmcnt(0)
    s_mov_b64 s[24:25], s[42:43]  ; d_debug
    s_movk_i32 s26, 256
    s_mov_b32 s27, s39
    s_movk_i32 s42, 2048
    s_mov_b32 s43, s39
    s_load_dword s44, s[32:33], 0
    v_and_b32 v1, 15, v0              ; J
    v_lshrrev_b32 v2, 4, v0           ; G
    """)
    if cfg.tr: a("v_and_b32 v120, 7, v0\nv_lshrrev_b32 v119, 5, v0\nv_lshlrev_b32 v119, 10, v119\nv_lshl_add_u32 v120, v120, 1, v119     ; final stage: byte offset of this lane's output")
    else: a("v_and_b32 v120, 3, v0\nv_lshl_add_u32 v120, v120, 2, v2\nv_lshlrev_b32 v120, 1, v120")
    if cfg.tr: a("s_bfe_u32 s30, s2, 0x10006\ns_and_b32 s29, s2, 3\ns_lshl2_add_u32 s30, s30, s29\ns_bfe_u32 s29, s2, 0x30003\ns_lshl3_add_u32 s30, s30, s29     ; c: index of the 8 columns this workgroup finishes")
    elif cfg.cmap: a("s_bfe_u32 s30, s2, 0x20005\ns_and_b32 s29, s2, 3\ns_lshl2_add_u32 s30, s30, s29\ns_bfe_u32 s29, s2, 0x20003\ns_lshl2_add_u32 s30, s30, s29     ; c: index of the 16 outputs this workgroup finishes")
    else: a("s_bfe_u32 s30, s2, 0x40003\ns_and_b32 s29, s2, 3\ns_lshl2_add_u32 s30, s30, s29")
    a(f"""
    s_and_b32 s29, s2, 0x84
    s_xor_b32 s29, s29, {cfg.fin}     ; nonzero: not a finishing workgroup
    s_mov_b32 s22, s29
    s_lshr_b32 s56, s30, 1
    s_lshl_b32 s56, s56, 2
    s_and_b32 s58, s30, 1
    s_or_b32 s56, s56, s58
    s_lshl_b32 s56, s56, 12
    s_add_u32 s28, s56, {cfg.fr}
    s_cmp_lg_u32 s55, 4
    s_cbranch_scc1 L_noxr
    s_cmp_lg_u32 s29, 0
    s_cbranch_scc1 L_noxr
    """)
    if cfg.tr: a("s_lshl_b32 s31, s30, 4")
    else: a("""
    s_lshr_b32 s56, s30, 3            ; cg'
    s_lshl_b32 s56, s56, 6
    s_and_b32 s58, s30, 3
    s_lshl_b32 s58, s58, 4
    s_add_u32 s56, s56, s58
    s_bfe_u32 s58, s30, 0x10002
    s_lshl_b32 s58, s58, 9
    s_add_u32 s56, s56, s58           ; element index of first column
    s_lshl_b32 s31, s56, 1
    """)
    def outmask():
        if cfg.tr: a("s_mov_b32 exec_lo, 0xff\ns_mov_b32 exec_hi, 0xff")
        else: exmask16(0xf)
    a(f"""
    buffer_load_ushort v121, v120, s[36:39], s31 offen
    {"buffer_load_ushort v119, v120, s[40:43], s31 offen" if cfg.preout is True else ""}
    """)
    if cfg.preout == 'st':
        a("v_mov_b32 v119, 0")
        outmask()
        a("buffer_store_short v119, v120, s[40:43], s31 offen\ns_mov_b64 exec, -1")
    a(f"""
    s_add_u32 s56, s28, 8192
    v_lshlrev_b32 v118, 6, v0
    {"" if 'F' in cfg.abl or cfg.preF != 'start' else f"buffer_load_dword v119, v118, s[32:35], s28 offen {cfg.preFpol}"}
    {"" if 'F' in cfg.abl or cfg.preF != 'start' else f"buffer_load_dword v119, v118, s[32:35], s56 offen {cfg.preFpol}"}
L_noxr:
    """)
    if cfg.tlb.startswith('v'):
        a(f"""
        s_cmp_lg_u32 s55, 5
        s_cbranch_scc1 L_notlb
        s_load_dwordx4 s[4:7], s[0:1], 8
        s_load_dwordx2 s[8:9], s[0:1], 32
        s_load_dwordx2 s[10:11], s[0:1], 64
        s_lshl3_add_u32 s58, s53, s49
        s_lshl_b32 s58, s58, 23
        s_add_u32 s58, s58, {28672*256}
        v_mov_b32 v110, s58
        s_lshl2_add_u32 s58, s49, s52
        s_lshl_b32 s58, s58, 17
        v_mov_b32 v111, s58
        v_mov_b32 v112, 0
        s_mov_b64 exec, 1
        s_waitcnt lgkmcnt(0)
        {"global_load_dword v113, v110, s[4:5]" if 'k' in cfg.tlb else ""}
        global_load_dword v113, v110, s[6:7]
        global_load_dword v113, v111, s[8:9]
        global_load_dword v113, v112, s[10:11]
        s_mov_b64 exec, -1
L_notlb:
        """)
    if cfg.preF == 'split':
        a(f"""
        s_cmp_lg_u32 s55, 6
        s_cbranch_scc1 L_nosp
        s_and_b32 s56, s2, 4
        s_cbranch_scc1 L_nosp
        v_lshlrev_b32 v118, 6, v0
        s_lshr_b32 s56, s2, 7
        s_lshl_b32 s56, s56, 13
        s_add_u32 s56, s56, s28
        buffer_load_dword v119, v118, s[32:35], s56 offen {cfg.preFpol}
L_nosp:
        """)
    if cfg.preF == 'slack':

        a(f"""
        s_cmp_lg_u32 s55, 6
        s_cbranch_scc1 L_nosk
        s_and_b32 s56, s2, 0xc4
        s_cmp_lg_u32 s56, 0xc4
        s_cbranch_scc1 L_nosk
        v_lshlrev_b32 v118, 6, v0
        s_add_u32 s56, s28, 8192
        buffer_load_dword v119, v118, s[32:35], s28 offen {cfg.preFpol}
        buffer_load_dword v119, v118, s[32:35], s56 offen {cfg.preFpol}
        s_sub_u32 s58, s28, {16*16384}
        s_sub_u32 s56, s56, {16*16384}
        buffer_load_dword v119, v118, s[32:35], s58 offen {cfg.preFpol}
        buffer_load_dword v119, v118, s[32:35], s56 offen {cfg.preFpol}
L_nosk:
        """)
    a(f"""
    """)
    a(f"""
    v_lshlrev_b32 v4, 2, v1
    v_add_u32 v4, {FLAGS}, v4
    s_lshl_b32 s56, s55, 2
    s_add_u32 s56, s56, {FLAGS+16}
    v_mov_b32 v6, s56
    v_mov_b32 v3, 0xffffff00
    s_lshl_b32 s62, s49, 2
    s_add_u32 s62, s62, s52           ; 4h+rg
    s_and_b32 s56, s55, 3             ; mt
    v_lshrrev_b32 v8, 2, v1
    v_lshl_add_u32 v8, v2, 2, v8      ; r
    v_bfe_u32 v9, v8, 1, 2
    v_xor_b32 v9, s56, v9
    v_lshlrev_b32 v9, 5, v9
    v_and_b32 v10, 3, v1
    v_lshlrev_b32 v11, 3, v10         ; (i&3)*8
    v_add_u32 v9, v9, v11
    v_lshl_add_u32 v15, v8, 7, v9     ; vT
    v_and_b32 v10, 1, v1
    v_mul_u32_u24 v12, {XNS}, v10
    v_lshl_add_u32 v12, v2, 3, v12    ; (j&1)*XNS + g*8
    ; first publish slot: q partial (cw<4) or gate/up partial
    s_lshl_b32 s57, s49, 14
    s_lshl_b32 s58, s52, 11
    s_add_u32 s57, s57, s58
    s_lshl_b32 s58, s51, 8
    s_add_u32 s57, s57, s58
    s_add_u32 s57, s57, {QA}
    s_lshl_b32 s58, s62, 13
    s_lshl_b32 s59, s51, 10
    s_add_u32 s58, s58, s59
    s_add_u32 s58, s58, {GA}
    s_lshl_b32 s59, s52, 8
    s_lshl_b32 s60, s51, 7
    s_cmp_lt_u32 s55, 4
    s_cselect_b32 s57, s57, s58
    s_cselect_b32 s59, s59, s60
    s_mov_b32 s60, {WQ_L}
    s_cselect_b32 s60, s60, {G_L}
    s_cselect_b32 s61, 13, 8
    s_mov_b32 s63, 0x00030003
    s_cselect_b32 s63, s63, 0x000f000f
    s_lshl_b32 s56, s56, 6
    s_add_u32 s57, s57, s56           ; publish soffset (near)
    s_add_u32 s59, s59, {XN}
    v_add_u32 v12, s59, v12
    v_add_u32 v9, s60, v15
    v_lshlrev_b32 v13, s61, v1
    v_lshl_add_u32 v13, v2, 4, v13    ; publish voffset
    """)
    if cfg.pre1:
        a("s_mov_b32 exec_lo, s63\ns_mov_b32 exec_hi, s63\nbuffer_load_dword v125, v13, s[32:35], s57 offen\ns_mov_b64 exec, -1")
    def cflag(val):
        a(f"v_mov_b32 v5, {val}\ns_mov_b64 exec, 1\nds_write_b32 v6, v5\ns_mov_b64 exec, -1")
    def wait(mask, val, body=None): spin(5, 4, mask, val, body)
    def allreduce(x, t, op):
        for d in ("quad_perm:[1,0,3,2]", "quad_perm:[2,3,0,1]", "row_half_mirror", "row_mirror"):
            a(f"{op}_dpp v{x}, v{x}, v{x} {d} row_mask:0xf bank_mask:0xf")
        a(f"v_mov_b32 v{t}, v{x}\nv_permlane16_swap_b32 v{x}, v{t}\n{op} v{x}, v{x}, v{t}")
        a(f"v_mov_b32 v{t}, v{x}\nv_permlane32_swap_b32 v{x}, v{t}\n{op} v{x}, v{x}, v{t}")
    def unpack(src, dst, n):
        for i in range(n):
            a(f"v_lshlrev_b32 v{dst+2*i}, 16, v{src+i}\nv_and_b32 v{dst+2*i+1}, 0xffff0000, v{src+i}")
    def pack(src, dst, n):
        for i in range(n):
            a(f"v_cvt_pk_bf16_f32 v{dst+i}, v{src+2*i}, v{src+2*i+1}")
    def rbf(x, d=None):
        d = x if d is None else d
        if cfg.trim2: a(f"v_cvt_pk_bf16_f32 v{d}, 0, v{x}")
        else: a(f"v_cvt_pk_bf16_f32 v{d}, v{x}, v{x}\nv_lshlrev_b32 v{d}, 16, v{d}")
    def tag(src, dst, last=48):
        for i in range(4):
            a(f"v_and_or_b32 v{dst+i}, v{src+i}, v3, s{45+i if i < 3 else last}")
    def check(regs, last=97, masked=False, t=5):
        for k, r in enumerate(regs):
            for i in range(4): a(f"v_xor_b32 v{r+i}, s{45+i if i < 3 else last}, v{r+i}")
            if masked:
                if k == 0: a(f"v_or3_b32 v{t}, v{r}, v{r+1}, v{r+2}\nv_mov_b32 v127, v{r+3}")
                else: a(f"v_or3_b32 v{t}, v{t}, v{r}, v{r+1}\nv_or_b32 v{t}, v{t}, v{r+2}\nv_or_b32 v127, v127, v{r+3}")
            elif k == 0: a(f"v_or3_b32 v{t}, v{r}, v{r+1}, v{r+2}\nv_or_b32 v{t}, v{t}, v{r+3}")
            else: a(f"v_or3_b32 v{t}, v{t}, v{r}, v{r+1}\nv_or3_b32 v{t}, v{t}, v{r+2}, v{r+3}")
        if masked: a(f"v_and_or_b32 v{t}, v127, s101, v{t}")
        a(f"v_and_b32 v{t}, 0xff, v{t}\nv_cmp_ne_u32 vcc, 0, v{t}")
    def issue(loads, soffs, pol=None):
        pol = cfg.gpol if pol is None else pol
        if 'q' in cfg.abl and len(loads) == 4: return
        if 'h' in cfg.abl and len(loads) == 8: return
        if 'm' in cfg.abl and loads[0][0] == 80: return
        for (r, va, si, imm) in loads:
            a(f"buffer_load_dwordx4 v[{r}:{r+3}], v{va}, s[32:35], s{soffs[si]} offen offset:{imm} {pol}")
    def poll(loads, soffs, each=None, pre_issued=None, **kw):
        top, chk, done = L("p"), L("pc"), L("pd")
        a("s_mov_b32 s59, 0")
        if pre_issued is not None: a(f"s_waitcnt vmcnt({pre_issued})\ns_branch {chk}")
        a(f"{top}:\ns_add_u32 s59, s59, 1")
        if each: each()
        issue(loads, soffs)
        a(f"s_waitcnt vmcnt(0)\n{chk}:")
        check([r for (r, _, _, _) in loads], **kw)
        if 'r' in cfg.abl: a(f"{done}:")
        else: a(f"s_cbranch_vccz {done}\ns_cmp_lt_u32 s59, {cfg.NMAX}\ns_cbranch_scc1 {top}\n{done}:")
    def pm(d, w, x, c):
        A, Bm = (x, w) if cfg.tr else (w, x)
        a(f"v_mfma_f32_16x16x32_bf16 v[{d}:{d+3}], v[{A}:{A+3}], v[{Bm}:{Bm+3}], {c}")
    def mstore(r, va, so):
        f, d = L("ms"), L("md")
        a(f"s_cmp_lg_u32 s98, 0\ns_cbranch_scc1 {f}\nbuffer_store_dwordx4 v[{r}:{r+3}], v{va}, s[32:35], s{so} offen {NP}\ns_branch {d}\n{f}:\nbuffer_store_dwordx4 v[{r}:{r+3}], v{va}, s[32:35], s{so} offen sc1\n{d}:")
    def far_first():
        t = L("ff")
        a(f"s_cmp_lg_u32 s95, 0\ns_cbranch_scc1 {t}\ns_mov_b32 s95, 1\ns_mov_b32 exec_lo, s63\ns_mov_b32 exec_hi, s63\nbuffer_store_dwordx4 v[52:55], v13, s[32:35], s58 offen sc1\ns_mov_b64 exec, -1\n{t}:")

    if 'a' in cfg.abl: a("s_endpgm")
    a("s_cmp_ge_u32 s55, 2\ns_cbranch_scc1 L_noln")
    a(f"s_mul_i32 s56, s55, {XNS}\ns_add_u32 s56, s56, {XN}\nv_add_u32 v14, s56, v7")
    wait(0xf, M_X)
    a("ds_read_b128 v[16:19], v14\ns_waitcnt lgkmcnt(0)")
    stamp(1)
    unpack(16, 20, 4)
    a("""
    v_add_f32 v28, v20, v21
    v_add_f32 v29, v22, v23
    v_add_f32 v30, v24, v25
    v_add_f32 v31, v26, v27
    v_add_f32 v28, v28, v29
    v_add_f32 v30, v30, v31
    v_add_f32 v28, v28, v30
    """)
    allreduce(28, 29, "v_add_f32")
    a("v_mul_f32 v28, 0x3b000000, v28")
    for i in range(8): a(f"v_sub_f32 v{32+i}, v{20+i}, v28")
    a("v_mul_f32 v29, v32, v32\nv_mul_f32 v30, v33, v33")
    for i in range(2, 8, 2): a(f"v_fmac_f32 v29, v{32+i}, v{32+i}\nv_fmac_f32 v30, v{33+i}, v{33+i}")
    a("v_add_f32 v29, v29, v30")
    rbf(28)
    for i in range(8): a(f"v_sub_f32 v{32+i}, v{20+i}, v28")
    allreduce(29, 30, "v_add_f32")
    pack(32, 16, 4)
    a("v_mul_f32 v29, 0x3b000000, v29")
    rbf(29)
    a("v_add_f32 v29, 0x3727c5ac, v29")
    rbf(29)
    a("v_sqrt_f32 v29, v29")
    unpack(16, 32, 4)
    rbf(29)
    a("v_rcp_f32 v29, v29")
    for i in range(8): a(f"v_mul_f32 v{32+i}, v{32+i}, v29")
    pack(32, 16, 4)
    a("ds_write_b128 v14, v[16:19]")
    cflag(C_XN)
    a("L_noln:")
    a(f"""
    s_waitcnt lgkmcnt(0)
    s_add_u32 s44, s44, 0x01010101
    s_and_b32 s45, s44, 0xff
    s_bfe_u32 s46, s44, 0x80008
    s_bfe_u32 s47, s44, 0x80010
    s_lshr_b32 s48, s44, 24
    s_getreg_b32 s96, hwreg(HW_REG_XCC_ID, 0, 4)
    s_xor_b32 s96, s96, s48           ; byte 3 of the first hand-off's tag carries the die id
    s_mov_b32 s97, s96
    s_mov_b32 s98, 0
    s_mov_b32 s101, -1
    s_mov_b32 s95, 0
    s_add_u32 s58, s57, {MIR}
    v_and_b32 v10, 2, v1
    v_cmp_ne_u32 s[60:61], 0, v10
    """)
    wait(0x30, C_XN)
    a("s_cmp_ge_u32 s55, 4\ns_cbranch_scc1 L_gu")
    for k in range(4): a(f"ds_read2_b64 v[{32+4*k}:{35+4*k}], v12 offset0:{8*k} offset1:{8*k+4}")
    wait(0xf, M_WQ)
    stamp(2)
    for k in range(4):
        for t in range(2): a(f"ds_read_b64_tr_b16 v[{16+4*k+2*t}:{17+4*k+2*t}], v9 offset:{k*4096+t*2048}")
    cflag(C_TILE)
    a("s_waitcnt lgkmcnt(0)")
    for k in range(4):
        a(f"v_mfma_f32_16x16x32_bf16 v[48:51], v[{16+4*k}:{19+4*k}], v[{32+4*k}:{35+4*k}], {'0' if k==0 else 'v[48:51]'}")
    a("s_branch L_pub1")
    a("L_gu:")
    for k in range(2): a(f"ds_read2_b64 v[{32+4*k}:{35+4*k}], v12 offset0:{8*k} offset1:{8*k+4}")
    wait(0xf, M_GU)
    stamp(2)
    for m in range(2):
        for k in range(2):
            for t in range(2): a(f"ds_read_b64_tr_b16 v[{16+8*m+4*k+2*t}:{17+8*m+4*k+2*t}], v9 offset:{m*8192+k*4096+t*2048}")
    cflag(C_TILE)
    a("s_waitcnt lgkmcnt(0)")
    for k in range(2):
        a(f"v_mfma_f32_16x16x32_bf16 v[48:51], v[{16+4*k}:{19+4*k}], v[{32+4*k}:{35+4*k}], {'0' if k==0 else 'v[48:51]'}")
        a(f"v_mfma_f32_16x16x32_bf16 v[56:59], v[{24+4*k}:{27+4*k}], v[{32+4*k}:{35+4*k}], {'0' if k==0 else 'v[56:59]'}")
    for i in range(4): a(f"v_cndmask_b32 v{48+i}, v{48+i}, v{56+i}, s[60:61]")
    a("L_pub1:\ns_nop 7")
    tag(48, 52, 96)
    a("s_mov_b32 exec_lo, s63\ns_mov_b32 exec_hi, s63")
    if 'P' not in cfg.abl: a(f"buffer_store_dwordx4 v[52:55], v13, s[32:35], s57 offen {NP}")
    a("s_mov_b64 exec, -1")
    stamp(3)
    if 'x' in cfg.abl: a("s_endpgm")
    def tile_prefetch(lab):
        a(f"""
        s_cmp_lt_u32 s55, 2
        s_cbranch_scc1 {lab}
        s_load_dwordx2 s[4:5], s[0:1], 32
        s_load_dwordx2 s[8:9], s[0:1], 64
        s_sub_u32 s10, s55, 2
        s_lshl2_add_u32 s11, s49, s52
        s_lshl_b32 s11, s11, 17
        s_mul_i32 s12, s10, {cfg.spfw[1]*1024}
        s_add_u32 s12, s12, {cfg.spfw[0]*1024}
        s_min_u32 s12, s12, {(128-cfg.spfw[1])*1024}
        s_add_u32 s11, s11, s12
        s_lshl_b32 s13, s51, 7
        s_add_u32 s11, s11, s13
        s_lshl3_add_u32 s14, s52, s49
        s_min_u32 s15, s14, 27
        s_lshl_b32 s15, s15, 16
        s_mul_i32 s12, s10, {11*1024}
        s_min_u32 s12, s12, {53*1024}
        s_add_u32 s15, s15, s12
        s_add_u32 s15, s15, s13
        s_waitcnt lgkmcnt(0)
        s_add_u32 s4, s4, s11
        s_addc_u32 s5, s5, 0
        s_add_u32 s8, s8, s15
        s_addc_u32 s9, s9, 0
        """)
        ld = []
        if 'd' not in cfg.spf: ld += [(4, r*1024 + hh*64) for r in range(cfg.spfw[1]) for hh in range(cfg.spfh)]
        nw = len(ld)
        if 'w' not in cfg.spf: ld += [(8, r*1024 + hh*64) for r in range(11) for hh in range(cfg.spfh)]
        for i, (b, off) in enumerate(ld):
            if i == nw: a(f"s_cmp_ge_u32 s14, 28\ns_cbranch_scc1 {lab}x")
            if i and i % cfg.spfb == 0: a("s_waitcnt lgkmcnt(0)")
            a(f"s_load_dword s23, s[{b}:{b+1}], {off}")
        a(f"{lab}x:\ns_waitcnt lgkmcnt(0)\n{lab}:")
    def scalar_touch(sides, lab):
        a(f"""
        s_cmp_lt_u32 s55, 4
        s_cbranch_scc1 {lab}
        s_cmp_lg_u32 s22, 0
        s_cbranch_scc1 {lab}
        s_sub_u32 s4, s55, 4
        s_lshl_b32 s4, s4, 10
        s_add_u32 s4, s4, s28
        s_add_u32 s6, s32, s4
        s_addc_u32 s7, s33, 0
        """)
        for k, sd in enumerate(sides):
            if k: a("s_waitcnt lgkmcnt(0)")
            for i in range(8): a(f"s_load_dword s23, s[6:7], {sd*8192 + i*128}")
        a(f"{lab}:")
    if cfg.preF == 'scalar': scalar_touch((0, 1) if cfg.side == 'auto' and cfg.force is None else (cfg.side if cfg.side != 'auto' else cfg.force,), "L_nost")
    if cfg.side == 'auto':
        a("; one workgroup times uncached reads of two workspace blocks that differ in address bit 13 and posts in d_debug which one is")
        a("; nearer to the finishing workgroups; either answer gives the same output, it only picks where the last hand-off is placed")
        a(f"""
        s_cmp_lt_u32 s55, 4
        s_cbranch_scc1 L_noprobe
        s_cmp_lg_u32 s2, {cfg.leader}
        s_cbranch_scc1 L_noprobe
        {"s_and_b32 s4, s55, 2" if cfg.race else "s_mov_b32 s4, s55"}
        s_lshl_b32 s4, s4, {9 if cfg.race else 7}
        s_and_b32 s5, s55, 1
        s_lshl_b32 s5, s5, 13
        s_add_u32 s4, s4, s5
        s_add_u32 s4, s4, {cfg.fr + PROBE}
        s_xor_b32 s5, s4, 0x2000
        s_add_u32 s6, s32, s4
        s_addc_u32 s7, s33, 0
        s_add_u32 s8, s32, s5
        s_addc_u32 s9, s33, 0
        s_load_dword s10, s[6:7], 0 glc
        s_load_dword s11, s[8:9], 0 glc
        s_mov_b32 s16, 0
        s_waitcnt lgkmcnt(0)
        """)
        if cfg.race:
            for r in range(1, cfg.race): a(f"s_load_dword s10, s[6:7], {r*cfg.rstep} glc")
            a("s_waitcnt lgkmcnt(0)")
            a("v_mov_b32 v5, 1\ns_mov_b64 exec, 1\nds_add_u32 v4, v5 offset:60\ns_mov_b64 exec, -1")
            wait(0x8000, 4)
            for r in range(cfg.race): a(f"s_load_dword s10, s[6:7], {r*cfg.rstep} glc\ns_waitcnt lgkmcnt(0)")
            a(f"""
            v_mov_b32 v5, 16
            s_mov_b64 exec, 1
            ds_add_rtn_u32 v16, v4, v5 offset:60
            s_waitcnt lgkmcnt(0)
            v_readfirstlane_b32 s14, v16
            s_lshr_b32 s14, s14, 4
            s_cmp_lg_u32 s14, {cfg.rank}
            s_cbranch_scc1 L_noprobe2
            s_and_b32 s14, s55, 1
            {"s_xor_b32 s14, s14, 1" if inv else ""}
            s_add_u32 s14, s14, 1
            v_mov_b32 v16, s14
            v_mov_b32 v17, 0
            buffer_store_dword v16, v17, s[24:27], 0 offen sc1
L_noprobe2:
            s_mov_b64 exec, -1
L_noprobe:
            """)
        for r in range(cfg.rounds if not cfg.race else 0):
            a("""
            s_memtime s[12:13]
            s_waitcnt lgkmcnt(0)
            s_load_dword s10, s[6:7], 0 glc
            s_waitcnt lgkmcnt(0)
            s_memtime s[14:15]
            s_waitcnt lgkmcnt(0)
            s_load_dword s10, s[8:9], 0 glc
            s_waitcnt lgkmcnt(0)
            s_memtime s[18:19]
            s_waitcnt lgkmcnt(0)
            s_lshl_b32 s14, s14, 1
            s_sub_u32 s14, s14, s12
            s_sub_u32 s14, s14, s18          ; first - second
            s_add_u32 s16, s16, s14
            """)
        if not cfg.race: a(f"""
        s_sub_u32 s14, 0, s16
        s_bitcmp1_b32 s55, 0
        s_cselect_b32 s16, s14, s16
        s_min_i32 s16, s16, 2047
        s_max_i32 s16, s16, -2047
        s_add_u32 s16, s16, {(1 << 20) + 2048}
        v_mov_b32 v5, s16
        s_mov_b64 exec, 1
        ds_add_rtn_u32 v16, v4, v5 offset:60
        s_waitcnt lgkmcnt(0)
        v_readfirstlane_b32 s14, v16
        s_add_u32 s14, s14, s16
        s_lshr_b32 s15, s14, 20
        s_cmp_lg_u32 s15, 4
        s_cbranch_scc1 L_noprobe2
        s_and_b32 s14, s14, 0xfffff
        s_cmp_gt_u32 s14, {4*2048}
        s_cselect_b32 s14, {'1, 2' if inv else '2, 1'}
        v_mov_b32 v16, s14
        v_mov_b32 v17, 0
        buffer_store_dword v16, v17, s[24:27], 0 offen sc1
L_noprobe2:
        s_mov_b64 exec, -1
L_noprobe:
        """)
    if 'K' in cfg.spf:
        a(f"s_cmp_eq_u32 s2, {cfg.leader}\ns_cbranch_scc1 L_nospf")
        tile_prefetch("L_nospf")
    a(f"""
    v_and_b32 v10, 3, v1
    v_mul_u32_u24 v9, {QBS}, v10
    v_lshl_add_u32 v9, v2, 4, v9
    v_add_u32 v9, {QB}, v9
    s_lshl_b32 s56, s55, 13
    v_xor_b32 v12, v1, v2
    v_lshlrev_b32 v12, 4, v12
    v_lshl_add_u32 v12, v1, 8, v12
    v_add_u32 v12, s56, v12           ; K operand address, step 0
    v_xor_b32 v62, 64, v12
    v_xor_b32 v63, 128, v12
    v_xor_b32 v64, 192, v12
    """)
    a("s_cmp_ge_u32 s55, 2\ns_cbranch_scc1 L_noq")
    a(f"""
    s_lshl_b32 s56, s55, 10
    v_add_u32 v126, s56, v7
    s_lshl_b32 s99, s49, 14
    s_lshl_b32 s100, s53, 13
    s_add_u32 s99, s99, s100
    s_add_u32 s99, s99, {QA}
    s_add_u32 s100, s99, 4096
    s_lshl_b32 s56, s55, 1
    v_lshrrev_b32 v14, 5, v0
    v_add_u32 v14, s56, v14
    v_mul_u32_u24 v14, {QBS}, v14
    v_and_b32 v16, 31, v0
    v_lshl_add_u32 v14, v16, 3, v14
    v_add_u32 v14, {QB}, v14
    """)
    if cfg.qtrig: wait(0xf, cfg.qtrig)
    def q_each():
        t = L("qe")
        a(f"s_cmp_lt_u32 s59, {cfg.N0}\ns_cbranch_scc1 {t}")
        a("v_mov_b32 v5, 1\ns_mov_b64 exec, 1\nds_write_b32 v4, v5 offset:56\ns_mov_b64 exec, -1")
        far_first()
        a(f"s_xor_b32 s98, s98, {MIR}\ns_xor_b32 s99, s99, {MIR}\ns_xor_b32 s100, s100, {MIR}\ns_xor_b32 s101, s101, 15\n{t}:")
    poll([(16, 126, 0, 0), (20, 126, 0, 2048), (24, 126, 1, 0), (28, 126, 1, 2048)], [99, 100], each=q_each, last=96, masked=True)
    a("; all producers on this die? then the near copies are the ones to use from here on")
    a("v_and_b32 v127, 15, v127\nv_cmp_ne_u32 vcc, 0, v127\ns_cbranch_vccnz L_remote\ns_mov_b32 s98, 0\nL_remote:")
    for r in (19, 23, 27, 31): a(f"v_and_b32 v{r}, v{r}, v3")
    for i in range(4): a(f"v_add_f32 v{16+i}, v{16+i}, v{20+i}\nv_add_f32 v{24+i}, v{24+i}, v{28+i}")
    for i in range(4): a(f"v_add_f32 v{16+i}, v{16+i}, v{24+i}")
    pack(16, 20, 2)
    a("ds_write_b64 v14, v[20:21]")
    a("v_mov_b32 v5, s98\ns_mov_b64 exec, 1\nds_write_b32 v6, v5 offset:32\ns_mov_b64 exec, -1")
    cflag(C_Q)
    a("L_noq:")
    stamp(4)
    if 'y' in cfg.abl: a("s_endpgm")
    def watch():
        t = L("wt")
        a(f"v_cmp_ne_u32 vcc, 0, v5\ns_and_b64 vcc, vcc, 0x4000\ns_cbranch_vccz {t}")
        far_first()
        a(f"{t}:")
    wait(0x30, C_Q, watch)
    a(f"v_cmp_ne_u32 vcc, 0, v5\ns_and_b64 vcc, vcc, 0x3000\ns_mov_b32 s98, 0\ns_mov_b32 s101, -1\ns_cbranch_vccz L_near\ns_mov_b32 s98, {MIR}\ns_mov_b32 s97, s48\ns_mov_b32 s101, 0xfffffff0")
    far_first()
    a("L_near:")
    for st in range(4): a(f"ds_read_b128 v[{16+4*st}:{19+4*st}], v9 offset:{64*st}")
    wait(0xf, M_K)
    stamp(5)
    ka = [12, 62, 63, 64]
    for tt in range(2):
        for st in range(4):
            r = 32 + 16*tt + 4*st
            if r == 52: r = 92
            if r == 60: r = 88
            a(f"ds_read_b128 v[{r}:{r+3}], v{ka[st]} offset:{tt*4096}")
    a(f"""
    v_lshlrev_b32 v9, 5, v10
    v_add_u32 v9, {MX}, v9
    s_lshl_b32 s56, s55, 2
    v_add_u32 v12, s56, v9
    s_lshl_b32 s56, s55, 8
    v_lshlrev_b32 v13, 6, v2
    v_lshl_add_u32 v13, v10, 4, v13
    v_add_u32 v13, {PB}, v13
    v_add_u32 v14, s56, v13
    s_waitcnt lgkmcnt(0)
    """)
    for st in range(4):
        for tt in range(2):
            r = 32 + 16*tt + 4*st; d = 68 + 4*tt
            if r == 52: r = 92
            if r == 60: r = 88
            a(f"v_mfma_f32_16x16x32_bf16 v[{d}:{d+3}], v[{r}:{r+3}], v[{16+4*st}:{19+4*st}], {'0' if st==0 else f'v[{d}:{d+3}]'}")
    if cfg.trim2:
        for i in range(8): rbf(68+i, 36+i)
        for i in range(8): a(f"v_mul_f32 v{36+i}, 0x3db504f3, v{36+i}")
        for i in range(8): rbf(36+i)
    else:
        pack(68, 32, 4)
        unpack(32, 36, 4)
        for i in range(8): a(f"v_mul_f32 v{36+i}, 0x3db504f3, v{36+i}")
        pack(36, 32, 4)
        unpack(32, 36, 4)
    a("""
    v_max3_f32 v56, v36, v37, v38
    v_max3_f32 v57, v39, v40, v41
    v_max3_f32 v56, v56, v42, v43
    v_max_f32 v56, v56, v57
    v_mov_b32 v57, v56
    v_permlane16_swap_b32 v56, v57
    v_max_f32 v56, v56, v57
    v_mov_b32 v57, v56
    v_permlane32_swap_b32 v56, v57
    v_max_f32 v56, v56, v57
    s_mov_b64 exec, 15
    ds_write_b32 v12, v56
    """)
    cflag(C_MAX)
    wait(0xff0, C_MAX)
    a(f"""
    ds_read_b128 v[44:47], v9
    ds_read_b128 v[48:51], v9 offset:16
    s_mov_b32 s56, {LOG2E}
    s_waitcnt lgkmcnt(0)
    v_max3_f32 v56, v44, v45, v46
    v_max3_f32 v57, v47, v48, v49
    v_max3_f32 v56, v56, v50, v51
    v_max_f32 v56, v56, v57           ; m
    v_mul_f32 v57, s56, v56
    """)
    for i in range(8): a(f"v_fma_f32 v{36+i}, v{36+i}, s56, -v57")
    for i in range(8): a(f"v_exp_f32 v{36+i}, v{36+i}")
    pack(36, 32, 4)
    exmask16(0xf)
    a("ds_write_b128 v14, v[32:35]")
    cflag(C_P)
    a("; addresses for PV and the later stages")
    a(f"""
    v_and_b32 v9, 7, v8
    v_xor_b32 v9, s55, v9
    v_lshlrev_b32 v9, 5, v9
    v_add_u32 v9, v9, v11
    v_lshl_add_u32 v9, v8, 8, v9
    v_add_u32 v9, {V_L}, v9
    v_lshlrev_b32 v12, 14, v1
    v_lshl_add_u32 v12, v2, 4, v12    ; o publish: head*16384 + g*16
    s_lshl_b32 s56, s49, 16
    s_lshl_b32 s57, s50, 9
    s_add_u32 s56, s56, s57
    s_lshl_b32 s57, s55, 6
    s_add_u32 s56, s56, s57
    s_add_u32 s56, s56, {OA}          ; o publish soffset
    s_add_u32 s56, s56, s98
    """)
    if cfg.pretouch == 'st':
        a("s_xor_b32 s57, s45, 0xff")
        for i in range(4): a(f"v_mov_b32 v{76+i}, s57")
        exmask16(0xf)
        a("buffer_store_dwordx4 v[76:79], v12, s[32:35], s56 offen\ns_mov_b64 exec, -1")
    elif cfg.pretouch:
        exmask16(0xf)
        a("buffer_load_dword v125, v12, s[32:35], s56 offen\ns_mov_b64 exec, -1")
    if 'V' in cfg.spf: tile_prefetch("L_nospf")
    wait(0xff0, C_P)
    for kb in range(8): a(f"ds_read_b128 v[{16+4*kb}:{19+4*kb}], v13 offset:{kb*256}")
    a("s_waitcnt lgkmcnt(0)")
    stamp(6)
    if 'z' in cfg.abl: a("s_endpgm")
    a("; row sums by an MFMA with a matrix of ones; (max, sum) of this split handed on by cw 3")
    a("s_cmp_lg_u32 s55, 3\ns_cbranch_scc1 L_nol")
    for i in range(4): a(f"v_mov_b32 v{52+i}, 0x3f803f80")
    for kb in range(8):
        a(f"v_mfma_f32_16x16x32_bf16 v[60:63], v[52:55], v[{16+4*kb}:{19+4*kb}], {'0' if kb==0 else 'v[60:63]'}")
    a(f"""
    v_lshlrev_b32 v13, 9, v0
    s_lshl_b32 s57, s49, 11
    s_lshl_b32 s58, s50, 4
    s_add_u32 s57, s57, s58
    s_add_u32 s57, s57, {MA}
    s_add_u32 s57, s57, s98
    v_mov_b32 v58, 0
    v_mov_b32 v59, 0
    v_mov_b32 v57, v60
    """)
    tag(56, 60, 97)
    a("s_mov_b64 exec, 15")
    mstore(60, 13, 57)
    a("s_mov_b64 exec, -1")
    a("L_nol:")
    def wbl2(lab):
        a(f"s_cmp_lg_u32 s55, 7\ns_cbranch_scc1 {lab}\ns_cmp_lt_u32 s50, {cfg.wbj}\ns_cbranch_scc1 {lab}\nbuffer_wbl2 sc1\n{lab}:")
    if 'P' in cfg.wb: wbl2("L_nowb1")
    a("; addresses for the gather of the 16 key-split partials and for the projections")
    a(f"""
    v_lshrrev_b32 v10, 3, v0          ; ss
    v_and_b32 v14, 7, v0              ; gi
    v_lshlrev_b32 v13, 4, v10
    v_lshlrev_b32 v10, 9, v10
    v_lshl_add_u32 v10, v14, 4, v10
    s_lshr_b32 s60, s55, 2            ; b'
    s_and_b32 s61, s55, 3             ; dq
    s_lshl_b32 s58, s62, 1
    s_add_u32 s58, s58, s60           ; (4h+rg)*2 + b'
    s_lshl_b32 s57, s58, 8
    s_add_u32 s57, s57, {MA}
    s_add_u32 s57, s57, s98
    s_lshl_b32 s58, s58, 13
    s_lshl_b32 s91, s61, 7
    s_add_u32 s58, s58, s91
    s_add_u32 s58, s58, {OA}          ; o soffset
    s_add_u32 s58, s58, s98
    s_add_u32 s91, s58, 4096
    s_mul_i32 s60, s60, {OBS}
    s_lshl_b32 s61, s61, 6
    s_add_u32 s60, s60, s61
    s_add_u32 s60, s60, {OB}
    """)
    if cfg.trim: a("v_lshrrev_b32 v93, 2, v14\nv_and_b32 v14, 3, v14\nv_lshlrev_b32 v14, 4, v14\nv_lshl_add_u32 v14, v93, 3, v14")
    else: a("v_lshlrev_b32 v14, 3, v14")
    a(f"""
    v_lshl_add_u32 v14, v2, 1, v14
    v_add_u32 v14, s60, v14
    ; projection-stage addresses
    v_and_b32 v93, 1, v1
    v_mul_u32_u24 v90, {OBS}, v93
    v_lshl_add_u32 v90, v2, {4 if cfg.trim else 3}, v90
    v_add_u32 v90, {OB}, v90          ; o operand
    v_mul_u32_u24 v91, {HBS}, v93
    v_lshl_add_u32 v91, v2, 3, v91
    v_add_u32 v91, {HB}, v91          ; h operand
    v_add_u32 v15, {WO_L}, v15
    """)
    if cfg.tr: a("v_bfe_u32 v93, v0, 3, 1\nv_and_b32 v92, 7, v0\nv_lshlrev_b32 v92, 4, v92\nv_lshl_add_u32 v92, v93, 12, v92")
    else: a("v_lshlrev_b32 v92, 15, v93\nv_bfe_u32 v93, v1, 1, 1\nv_lshl_add_u32 v92, v93, 6, v92\nv_lshl_add_u32 v92, v2, 4, v92    ; b*32768 + kind*64 + g*16")
    a(f"""
    v_cmp_ne_u32 s[60:61], 0, v93
    s_lshl_b32 s92, s51, 16
    """)
    if cfg.tr: a("s_lshl_b32 s93, s55, 14")
    else: a("s_and_b32 s93, s55, 2\ns_lshl_b32 s93, s93, 1\ns_and_b32 s59, s55, 1\ns_or_b32 s93, s93, s59\ns_lshl_b32 s93, s93, 12")
    a(f"""
    s_add_u32 s92, s92, s93
    s_lshl_b32 s93, s62, 7
    s_add_u32 s92, s92, s93
    s_add_u32 s92, s92, {cfg.fr}
    """)
    if cfg.preF == 'st':
        a("s_cmp_ge_u32 s55, 4\ns_cbranch_scc1 L_nops")
        exmask16(0xf)
        a(f"v_mov_b32 v96, 0\nv_mov_b32 v97, 0\nv_mov_b32 v98, 0\nv_mov_b32 v99, 0\nbuffer_store_dwordx4 v[96:99], v92, s[32:35], s92 offen {cfg.fst}\ns_mov_b64 exec, -1\nL_nops:")
    a(f"""
    v_mov_b32 v94, 0
    s_mov_b64 exec, {'0xf' if cfg.hearly else '0x20f'}
    v_mov_b32 v94, {M_DN}             ; thresholds: down tile landed, h written (M_DN == C_H)
    s_mov_b64 exec, -1
    """)
    assert M_DN == C_H
    a('; ---- PV ----')
    def pv(m):
        for kk in range(2):
            kb = 2*m + kk
            for t in range(2):
                r = 64 + 4*kk + 2*t
                a(f"ds_read_b64_tr_b16 v[{r}:{r+1}], v9 offset:{kb*8192+t*4096}")
        for kk in range(2):
            kb = 2*m + kk
            a(f"s_waitcnt lgkmcnt({2 if kk == 0 and not cfg.diag else 0})")
            a(f"v_mfma_f32_16x16x32_bf16 v[72:75], v[{64+4*kk}:{67+4*kk}], v[{16+4*kb}:{19+4*kb}], {'0' if kb==0 else 'v[72:75]'}")
    ml = [(80, 13, 0, 0), (84, 13, 0, 128)]
    hl = [(96+4*k if k < 6 else 48+4*(k-6), 7, k//4, (k % 4)*1024) for k in range(8)]
    a(f"""
    s_cmp_lg_u32 s55, 5
    s_cbranch_scc1 L_noh0
    s_lshl_b32 s99, s62, 13
    s_add_u32 s99, s99, {GA}
    s_add_u32 s99, s99, s98
    s_add_u32 s100, s99, 4096
    """)
    hp = [hl[i*8//cfg.hsplit:(i+1)*8//cfg.hsplit] for i in range(cfg.hsplit)]
    issue(hp[0], [99, 100])
    a("L_noh0:")
    def hpiece(i):
        if i < len(hp):
            a(f"s_cmp_lg_u32 s55, 5\ns_cbranch_scc1 L_nohp{i}")
            issue(hp[i], [99, 100])
            a(f"L_nohp{i}:")
    wait(0xf, M_V1); pv(0)
    hpiece(1)
    wait(0xf, M_V2); pv(1)
    hpiece(2)
    if cfg.mlat == 'V2': issue(ml, [57])
    def side_load():
        if cfg.side == 'auto' and cfg.force is None:
            a("v_mov_b32 v123, 0\nv_mov_b32 v122, 1")
            if cfg.sidewave != 'all': a("s_cmp_ge_u32 s55, 5\ns_cbranch_scc1 L_nosl")
            a("s_mov_b64 exec, 1\nbuffer_load_dword v122, v123, s[24:27], 0 offen sc1\ns_mov_b64 exec, -1")
            if cfg.sidewave != 'all': a("L_nosl:")
    if cfg.sideat == 'V2': side_load()
    def hblock(pre):
        a("; ---- h = sigmoid(gate) * up for this workgroup's down tile (cw 5) ----")
        a("s_cmp_lg_u32 s55, 5\ns_cbranch_scc1 L_noh")
        a(f"""
        v_bfe_u32 v124, v0, 4, 1
        v_mul_u32_u24 v124, {HBS}, v124
        v_lshl_add_u32 v124, v1, 3, v124
        v_lshrrev_b32 v56, 5, v0
        v_lshl_add_u32 v124, v56, 2, v124
        v_add_u32 v124, {HB}, v124
        """)
        poll(hl, [99, 100], pre_issued=pre, last=96, masked=True)
        for (r, _, _, _) in hl: a(f"v_and_b32 v{r+3}, v{r+3}, v3")
        b = 96
        def pka(d, x, y):
            for i in (0, 2): a(f"v_pk_add_f32 v[{d+i}:{d+i+1}], v[{x+i}:{x+i+1}], v[{y+i}:{y+i+1}]")
        pka(b, b, b+4); pka(b+8, b+8, b+12); pka(b+16, b+16, b+20); pka(48, 48, 52)
        pka(b, b, b+8); pka(b+16, b+16, 48); pka(b, b, b+16)
        a(f"v_permlane32_swap_b32 v{b}, v{b+2}\nv_permlane32_swap_b32 v{b+1}, v{b+3}")
        for i in range(4): rbf(b+i)
        for i in range(2): a(f"v_mul_f32 v{b+i}, 0xbfb8aa3b, v{b+i}")
        for i in range(2): a(f"v_exp_f32 v{b+i}, v{b+i}")
        for i in range(2): a(f"v_add_f32 v{b+i}, 1.0, v{b+i}")
        for i in range(2): a(f"v_rcp_f32 v{b+i}, v{b+i}")
        for i in range(2): rbf(b+i)
        for i in range(2): a(f"v_mul_f32 v{b+i}, v{b+i}, v{b+2+i}")
        pack(b, 56, 1)
        a("ds_write_b32 v124, v56")
        if not cfg.hearly: cflag(C_H)
        else: a("s_waitcnt lgkmcnt(0)")
        a("L_noh:")
    wait(0xf, M_V3); pv(2)
    if cfg.mlat == 'V3': issue(ml, [57])
    if cfg.hearly: hblock(2)
    if cfg.sideat == 'V3': side_load()
    stamp(7)
    if 'v' in cfg.abl: a("s_endpgm")
    a("s_barrier")
    stamp(8)
    pv(3)
    if cfg.trim:
        exmask16(0xf)
        a(f"v_mov_b32 v5, {C_PUB}\ns_cmp_lg_u32 s98, 0")
        if cfg.bp == 'early': a("s_barrier")
        tag(72, 76, 97)
        a("s_cbranch_scc1 L_ofar\nbuffer_store_dwordx4 v[76:79], v12, s[32:35], s56 offen\nL_ostored:")
        if cfg.bp == 'early': a("s_mov_b64 exec, -1")
        elif cfg.bp: a("s_barrier\ns_mov_b64 exec, -1")
        else: a("s_mov_b64 exec, 1\nds_write_b32 v6, v5\ns_mov_b64 exec, -1")
    else:
        tag(72, 76, 97)
        exmask16(0xf)
        mstore(76, 12, 56)
        cflag(C_PUB)
    tstamp(1)
    if not cfg.hearly: hblock(1)
    def weights(pre):
        poll(ml, [57], pre_issued=pre)
        a(f"""
        s_mov_b32 s59, {LOG2E}
        v_max_f32 v88, v80, v84
        v_max_f32_dpp v88, v88, v88 row_ror:8 row_mask:0xf bank_mask:0xf
        v_mov_b32 v89, v88
        v_permlane16_swap_b32 v88, v89
        v_max_f32 v88, v88, v89
        v_mov_b32 v89, v88
        v_permlane32_swap_b32 v88, v89
        v_max_f32 v88, v88, v89
        v_sub_f32 v80, v80, v88
        v_sub_f32 v84, v84, v88
        v_mul_f32 v80, s59, v80
        v_mul_f32 v84, s59, v84
        v_exp_f32 v80, v80
        v_exp_f32 v84, v84
        v_mul_f32 v88, v80, v81
        v_fmac_f32 v88, v84, v85
        v_add_f32_dpp v88, v88, v88 row_ror:8 row_mask:0xf bank_mask:0xf
        v_mov_b32 v89, v88
        v_permlane16_swap_b32 v88, v89
        v_add_f32 v88, v88, v89
        v_mov_b32 v89, v88
        v_permlane32_swap_b32 v88, v89
        v_add_f32 v88, v88, v89
        v_rcp_f32 v88, v88
        v_mul_f32 v80, v80, v88
        v_mul_f32 v84, v84, v88
        """)
        if cfg.side == 'auto' and cfg.force is None:
            a(f"""
            s_mov_b32 s59, 0
    L_side:
            v_readfirstlane_b32 s29, v122
            s_add_u32 s59, s59, 1
            s_cmp_lg_u32 s29, 0
            s_cbranch_scc1 L_sideok
            s_cmp_ge_u32 s59, {cfg.NMAX}
            s_cbranch_scc1 L_sideok
            buffer_load_dword v122, v123, s[24:27], 0 offen sc1
            s_waitcnt vmcnt(0)
            s_branch L_side
    L_sideok:
            s_and_b32 s29, s29, 2
            s_lshl_b32 s29, s29, 12
            """)
        else: a(f"s_mov_b32 s29, {(cfg.side if cfg.force is None else cfg.force)*8192}")
        a("s_add_u32 s92, s92, s29\ns_add_u32 s28, s28, s29")
    if not cfg.afirst: weights(1)
    tstamp(2)
    if not cfg.bp: wait(0xff0, C_PUB)
    tstamp(3)
    oA = [(16, 10, 0, 0), (20, 10, 1, 0)]
    def reduce_scatter(r):
        a(f"""
        v_permlane32_swap_b32 v{r}, v{r+2}
        v_permlane32_swap_b32 v{r+1}, v{r+3}
        v_add_f32 v{r}, v{r}, v{r+2}
        v_add_f32 v{r+1}, v{r+1}, v{r+3}
        v_permlane16_swap_b32 v{r}, v{r+1}
        v_add_f32 v{r}, v{r}, v{r+1}
        v_add_f32_dpp v{r}, v{r}, v{r} row_ror:8 row_mask:0xf bank_mask:0xf
        """)
    if not cfg.tail2:
        poll([(16, 10, 0, 0), (20, 10, 1, 0)], [58, 91], t=95)
        stamp(9)
        a("ds_read_b32 v5, v4")
        for i in range(4): a(f"v_mul_f32 v{16+i}, v{16+i}, v80")
        for i in range(4): a(f"v_fmac_f32 v{16+i}, v{20+i}, v84")
        reduce_scatter(16)
        a("v_cvt_pk_bf16_f32 v16, v16, v16\nds_write_b16 v14, v16")
        a("s_cmp_ge_u32 s55, 4\ns_cbranch_scc1 L_final")
        a(f"s_waitcnt lgkmcnt({0 if cfg.diag else 1})\nv_cmp_gt_u32 vcc, v94, v5\ns_cbranch_vccz L_tiles")
        spin(5, 4, None, "v94")
        a("L_tiles:")
        tstamp(4)
        for k in range(2): a(f"ds_read2_b64 v[{56+4*k}:{59+4*k}], v91 offset0:{8*k} offset1:{8*k+4}")
        for k in range(2):
            for t in range(2): a(f"ds_read_b64_tr_b16 v[{32+4*k+2*t}:{33+4*k+2*t}], v15 offset:{16384+k*4096+t*2048}")
        for k in range(4):
            for t in range(2): a(f"ds_read_b64_tr_b16 v[{96+4*k+2*t}:{97+4*k+2*t}], v15 offset:{k*4096+t*2048}")
        a(f"s_waitcnt lgkmcnt({0 if cfg.diag else 14})\ns_barrier")
        stamp(10)
        a("s_waitcnt lgkmcnt(11)")
        for k in range(4): a(f"ds_read2_b64 v[{40+4*k}:{43+4*k}], v90 offset0:{8*k} offset1:{8*k+4}")
        a(f"s_waitcnt lgkmcnt({0 if cfg.diag else 12})")
        for k in range(2):
            a(f"v_mfma_f32_16x16x32_bf16 v[68:71], v[{32+4*k}:{35+4*k}], v[{56+4*k}:{59+4*k}], {'0' if k==0 else 'v[68:71]'}")
        for k in range(4):
            a(f"s_waitcnt lgkmcnt({0 if cfg.diag else 3-k})")
            a(f"v_mfma_f32_16x16x32_bf16 v[64:67], v[{96+4*k}:{99+4*k}], v[{40+4*k}:{43+4*k}], {'0' if k==0 else 'v[64:67]'}")
        exmask16(0xf)
        for i in range(4): a(f"v_cndmask_b32 v{64+i}, v{64+i}, v{68+i}, s[60:61]")
        tag(64, 68, 48)
        a(f"buffer_store_dwordx4 v[68:71], v92, s[32:35], s92 offen {cfg.fst}")
    else:
        if not cfg.atrig: issue(oA, [58, 91], cfg.apol)
        if cfg.afirst: weights(3)
        a(f"s_cmp_ge_u32 s55, 4\ns_cbranch_scc1 {'L_upA' if cfg.atrig else 'L_nopre'}")
        if cfg.tprio: a(f"s_setprio {cfg.tprio}")
        for i in range(40, 64): a(f"v_mov_b32 v{i}, 0")
        if not cfg.prog and not cfg.dnearly: wait(0xf, M_END)
        spin(5, 4, None, "v94")
        exmask16(0xc)
        for k in range(2): a(f"ds_read2_b64 v[{56+4*k}:{59+4*k}], v91 offset0:{8*k} offset1:{8*k+4}")
        a("s_mov_b64 exec, -1")
        for k in range(2):
            for t in range(2): a(f"ds_read_b64_tr_b16 v[{32+4*k+2*t}:{33+4*k+2*t}], v15 offset:{16384+k*4096+t*2048}")
        if cfg.atrig:
            wait(0xf, M_W2)
            issue(oA, [58, 91])
        if cfg.dnearly:
            wait(0xf, M_END)
            for kk in range(0 if cfg.trim2 else 2):
                pm(64, 32+4*kk, 56+4*kk, '0' if kk==0 else 'v[64:67]')
        for k in range(4):
            if cfg.prog:
                wait(0xf, M_W1 + k)
                if k == 0:
                    for kk in range(2):
                        pm(64, 32+4*kk, 56+4*kk, '0' if kk==0 else 'v[64:67]')
            if k == 3: tstamp(4)
            for t in range(2): a(f"ds_read_b64_tr_b16 v[{96+4*k+2*t}:{97+4*k+2*t}], v15 offset:{k*4096+t*2048}")
        if cfg.dnearly and cfg.trim2:
            for kk in range(2):
                pm(64, 32+4*kk, 56+4*kk, '0' if kk==0 else 'v[64:67]')
        a("L_nopre:")
        if cfg.fuse:
            a("s_mov_b32 s59, 0\ns_waitcnt vmcnt(0)")
            tstamp(5)
            a("L_ochk:")
            for k, r in enumerate((16, 20)):
                for i in range(4): a(f"v_xor_b32 v{r+i}, s{45+i if i < 3 else 97}, v{r+i}")
            a("""
L_ocomb:
            v_pk_mul_f32 v[24:25], v[16:17], v[80:81] op_sel_hi:[1,0]
            v_pk_mul_f32 v[26:27], v[18:19], v[80:81] op_sel_hi:[1,0]
            v_pk_fma_f32 v[24:25], v[20:21], v[84:85], v[24:25] op_sel_hi:[1,0,1]
            v_pk_fma_f32 v[26:27], v[22:23], v[84:85], v[26:27] op_sel_hi:[1,0,1]
            v_or3_b32 v5, v16, v17, v18
            v_or3_b32 v5, v5, v19, v20
            v_permlane32_swap_b32 v24, v26
            v_permlane32_swap_b32 v25, v27
            v_add_f32 v24, v24, v26
            v_add_f32 v25, v25, v27
            v_or3_b32 v5, v5, v21, v22
            v_or_b32 v5, v5, v23
            v_permlane16_swap_b32 v24, v25
            v_add_f32 v24, v24, v25
            v_and_b32 v5, 0xff, v5
            v_cmp_ne_u32 vcc, 0, v5
            v_add_f32_dpp v24, v24, v24 row_ror:8 row_mask:0xf bank_mask:0xf
            v_cvt_pk_bf16_f32 v24, v24, v24
            s_cbranch_vccnz L_oretry
L_ogood:
            ds_write_b16 v14, v24
            """)
            stamp(9)
            if cfg.diag == 2: a("s_mov_b32 s76, s59")
        else:
            if not cfg.omask: poll(oA, [58, 91], pre_issued=0)
            else:
                a("s_waitcnt vmcnt(0)")
                check([16, 20])
                a("s_cbranch_vccz L_ook\ns_mov_b32 s59, 0")
                for k, r in enumerate((16, 20)):
                    a(f"v_or3_b32 v5, v{r}, v{r+1}, v{r+2}\nv_or_b32 v5, v5, v{r+3}\nv_and_b32 v5, 0xff, v5\nv_cmp_ne_u32 s[{4+2*k}:{5+2*k}], 0, v5")
                a("L_om:")
                for k, (r, so) in enumerate(((16, 58), (20, 91))):
                    a(f"s_mov_b64 exec, s[{4+2*k}:{5+2*k}]\ns_cbranch_execz L_oms{k}\nbuffer_load_dwordx4 v[{r}:{r+3}], v10, s[32:35], s{so} offen sc1\nL_oms{k}:")
                a("s_add_u32 s59, s59, 1\ns_waitcnt vmcnt(0)")
                for k, r in enumerate((16, 20)):
                    a(f"s_mov_b64 exec, s[{4+2*k}:{5+2*k}]")
                    check([r])
                    a(f"s_mov_b64 s[{4+2*k}:{5+2*k}], vcc")
                a(f"s_or_b64 s[8:9], s[4:5], s[6:7]\ns_cbranch_scc0 L_omd\ns_cmp_lt_u32 s59, {cfg.NMAX}\ns_cbranch_scc1 L_om\nL_omd:\ns_mov_b64 exec, -1\nL_ook:")
            stamp(9)
            for i in range(0, 4, 2): a(f"v_pk_mul_f32 v[{16+i}:{17+i}], v[{16+i}:{17+i}], v[80:81] op_sel_hi:[1,0]")
            for i in range(0, 4, 2): a(f"v_pk_fma_f32 v[{16+i}:{17+i}], v[{20+i}:{21+i}], v[84:85], v[{16+i}:{17+i}] op_sel_hi:[1,0,1]")
            reduce_scatter(16)
            a("v_cvt_pk_bf16_f32 v16, v16, v16\nds_write_b16 v14, v16")
        a("s_cmp_ge_u32 s55, 4\ns_cbranch_scc1 L_final")
        if not cfg.prog and not cfg.dnearly:
            a("s_waitcnt lgkmcnt(9)")
            for k in range(2):
                a(f"v_mfma_f32_16x16x32_bf16 v[64:67], v[{32+4*k}:{35+4*k}], v[{56+4*k}:{59+4*k}], {'0' if k==0 else 'v[64:67]'}")
        exmask16(0x3)
        a("s_waitcnt lgkmcnt(0)\ns_barrier")
        stamp(10)
        for k in range(4):
            if cfg.trim: a(f"ds_read_b128 v[{40+4*k}:{43+4*k}], v90 offset:{64*k}")
            else: a(f"ds_read2_b64 v[{40+4*k}:{43+4*k}], v90 offset0:{8*k} offset1:{8*k+4}")
        a("s_mov_b64 exec, -1")
        for k in range(4):
            a(f"s_waitcnt lgkmcnt({0 if cfg.diag else 3-k})")
            pm(64, 96+4*k, 40+4*k, 'v[64:67]')
        if cfg.tr: a("s_mov_b64 exec, 0xffff")
        else: exmask16(0xf)
        tag(64, 68, 48)
        a(f"buffer_store_dwordx4 v[68:71], v92, s[32:35], s92 offen {cfg.fst}")
        if cfg.fwait: a("v_mov_b32 v5, 9\ns_mov_b64 exec, 1\nds_write_b32 v6, v5")
    stamp(11)
    dump_stamps(12)
    a("s_endpgm")
    if cfg.atrig:
        a("L_upA:")
        wait(0xf, M_W2)
        issue(oA, [58, 91])
        a("s_branch L_nopre")
    if cfg.trim: a("L_ofar:\nbuffer_store_dwordx4 v[76:79], v12, s[32:35], s56 offen sc1\ns_branch L_ostored")
    if cfg.fuse and cfg.omask:
        a(f"L_oretry:\ns_cmp_ge_u32 s59, {cfg.NMAX}\ns_cbranch_scc1 L_ogood")
        for k, r in enumerate((16, 20)):
            a(f"v_or3_b32 v5, v{r}, v{r+1}, v{r+2}\nv_or_b32 v5, v5, v{r+3}\nv_and_b32 v5, 0xff, v5\nv_cmp_ne_u32 s[{4+2*k}:{5+2*k}], 0, v5")
        a("L_om:")
        for k, (r, so) in enumerate(((16, 58), (20, 91))):
            a(f"s_mov_b64 exec, s[{4+2*k}:{5+2*k}]\ns_cbranch_execz L_oms{k}\nbuffer_load_dwordx4 v[{r}:{r+3}], v10, s[32:35], s{so} offen sc1\nL_oms{k}:")
        a("s_add_u32 s59, s59, 1\ns_waitcnt vmcnt(0)")
        for k, r in enumerate((16, 20)):
            a(f"s_mov_b64 exec, s[{4+2*k}:{5+2*k}]")
            check([r])
            a(f"s_mov_b64 s[{4+2*k}:{5+2*k}], vcc")
        a(f"s_or_b64 s[8:9], s[4:5], s[6:7]\ns_mov_b64 exec, -1\ns_cbranch_scc0 L_ocomb\ns_cmp_lt_u32 s59, {cfg.NMAX}\ns_cbranch_scc1 L_om\ns_branch L_ocomb")
    elif cfg.fuse:
        a(f"L_oretry:\ns_add_u32 s59, s59, 1\ns_cmp_ge_u32 s59, {cfg.NMAX}\ns_cbranch_scc1 L_ogood")
        issue(oA, [58, 91], cfg.rpol)
        a("s_waitcnt vmcnt(0)\ns_branch L_ochk")
    a("L_final:\ns_waitcnt lgkmcnt(0)\ns_barrier")
    stamp(10)
    if 'O' in cfg.wb: wbl2("L_nowb2")
    a("s_cmp_lg_u32 s55, 4\ns_cbranch_scc1 L_fin_exit\ns_cmp_lg_u32 s22, 0\ns_cbranch_scc1 L_fin_exit")
    a("s_mov_b32 s57, s28\ns_mov_b32 s59, 0")
    if cfg.fwait: wait(0xf0, 9)
    def fsum(b, d):
        if cfg.pkadd:
            for i in (0, 2): a(f"v_pk_add_f32 v[{b+i}:{b+i+1}], v[{b+i}:{b+i+1}], v[{b+4+i}:{b+5+i}]\nv_pk_add_f32 v[{b+8+i}:{b+9+i}], v[{b+8+i}:{b+9+i}], v[{b+12+i}:{b+13+i}]")
            for i in (0, 2): a(f"v_pk_add_f32 v[{d+i}:{d+i+1}], v[{b+i}:{b+i+1}], v[{b+8+i}:{b+9+i}]")
        else:
            for i in range(4): a(f"v_add_f32 v{b+i}, v{b+i}, v{b+4+i}\nv_add_f32 v{b+8+i}, v{b+8+i}, v{b+12+i}")
            for i in range(4): a(f"v_add_f32 v{d+i}, v{b+i}, v{b+8+i}")
    def fissue(base):
        for k in range(4): a(f"buffer_load_dwordx4 v[{base+4*k}:{base+3+4*k}], v7, s[32:35], s57 offen offset:{k*1024} {cfg.fld}")
    if cfg.fmode == 'plain':
        a("L_fp:")
        fissue(16)
        a("s_add_u32 s59, s59, 1\ns_waitcnt vmcnt(0)")
        if cfg.diag == 2:
            a("s_cmp_lg_u32 s59, 1\ns_cbranch_scc1 L_nf1")
            tstamp(5)
            a("L_nf1:")
        check([16, 20, 24, 28], 48)
        a(f"s_cbranch_vccz L_fok\ns_cmp_lt_u32 s59, {cfg.NMAX}\ns_cbranch_scc1 L_fp\nL_fok:")
        if cfg.diag == 2: a("s_mov_b32 s76, s59")
    elif cfg.fmode == 'pipe' and cfg.trim:
        def fcheck(b):
            for k in range(4):
                for i in range(4): a(f"v_xor_b32 v{b+4*k+i}, s{45+i}, v{b+4*k+i}")
            for i in (0, 2): a(f"v_pk_add_f32 v[{52+i}:{53+i}], v[{b+i}:{b+i+1}], v[{b+4+i}:{b+5+i}]\nv_pk_add_f32 v[{56+i}:{57+i}], v[{b+8+i}:{b+9+i}], v[{b+12+i}:{b+13+i}]")
            a(f"""
            v_or3_b32 v5, v{b}, v{b+1}, v{b+2}
            v_pk_add_f32 v[48:49], v[52:53], v[56:57]
            v_pk_add_f32 v[50:51], v[54:55], v[58:59]
            v_or3_b32 v5, v5, v{b+3}, v{b+4}
            v_or3_b32 v5, v5, v{b+5}, v{b+6}
            v_permlane32_swap_b32 v48, v{49 if cfg.tr else 50}
            v_permlane32_swap_b32 v{50 if cfg.tr else 49}, v51
            v_add_f32 v48, v48, v{49 if cfg.tr else 50}
            v_add_f32 v49, v{50 if cfg.tr else 49}, v51
            v_or3_b32 v5, v5, v{b+7}, v{b+8}
            v_or3_b32 v5, v5, v{b+9}, v{b+10}
            v_permlane16_swap_b32 v48, v49
            v_add_f32 v48, v48, v49
            v_or3_b32 v5, v5, v{b+11}, v{b+12}
            v_or3_b32 v5, v5, v{b+13}, v{b+14}
            v_add_f32_dpp v48, v48, v48 row_ror:8 row_mask:0xf bank_mask:0xf
            v_or_b32 v5, v5, v{b+15}
            v_and_b32 v5, 0xff, v5
            v_cmp_ne_u32 vcc, 0, v5
            {"v_mov_b32 v49, v48" if cfg.tr else "v_mov_b32_dpp v49, v48 row_ror:4 row_mask:0xf bank_mask:0xf"}
            """)
        a("v_lshlrev_b32 v121, 16, v121")
        sets = [16, 32, 64, 80][:cfg.nsets]
        for b in sets[:-1]: fissue(b)
        a("L_fp:")
        for i, b in enumerate(sets):
            fissue(sets[i-1])
            if i == 0: a("s_add_u32 s59, s59, 1")
            a(f"s_waitcnt vmcnt({4*(len(sets)-1)})")
            fcheck(b)
            a("s_cbranch_vccz L_fok")
        a(f"s_cmp_lt_u32 s59, {cfg.NMAX}\ns_cbranch_scc1 L_fp\nL_fok:")
    elif cfg.fmode == 'pipe':
        fissue(16)
        a("L_fp:")
        fissue(32)
        a("s_add_u32 s59, s59, 1\ns_waitcnt vmcnt(4)")
        check([16, 20, 24, 28], 48)
        a("s_cbranch_vccz L_fok")
        fissue(16)
        a("s_waitcnt vmcnt(4)")
        check([32, 36, 40, 44], 48)
        a(f"s_cbranch_vccz L_fok2\ns_cmp_lt_u32 s59, {cfg.NMAX}\ns_cbranch_scc1 L_fp\nL_fok2:")
        stamp(11)
        fsum(32, 48)
        a("s_branch L_fmath\nL_fok:")
    elif cfg.fmode == 'mask':
        for k in range(4): a(f"s_mov_b64 s[{4+2*k}:{5+2*k}], -1")
        a("L_fp:")
        for k in range(4):
            a(f"s_mov_b64 exec, s[{4+2*k}:{5+2*k}]\ns_cbranch_execz L_fs{k}\nbuffer_load_dwordx4 v[{16+4*k}:{19+4*k}], v7, s[32:35], s57 offen offset:{k*1024} {cfg.fld}\nL_fs{k}:")
        a("s_add_u32 s59, s59, 1\ns_waitcnt vmcnt(0)")
        for k in range(4):
            a(f"s_mov_b64 exec, s[{4+2*k}:{5+2*k}]")
            check([16+4*k], 48)
            a(f"s_mov_b64 s[{4+2*k}:{5+2*k}], vcc")
        a(f"s_or_b64 s[12:13], s[4:5], s[6:7]\ns_or_b64 s[14:15], s[8:9], s[10:11]\ns_or_b64 s[12:13], s[12:13], s[14:15]\ns_cbranch_scc0 L_fok\ns_cmp_lt_u32 s59, {cfg.NMAX}\ns_cbranch_scc1 L_fp\nL_fok:\ns_mov_b64 exec, -1")
    stamp(11)
    if not cfg.trim:
        fsum(16, 48)
        a("L_fmath:")
        reduce_scatter(48)
        a("v_mov_b32_dpp v49, v48 row_ror:4 row_mask:0xf bank_mask:0xf\nv_lshlrev_b32 v121, 16, v121")
    if cfg.trim2:
        if cfg.tr: a("s_nop 0\nv_permlane16_swap_b32 v48, v49")
        a("v_cvt_pk_bf16_f32 v49, 0, v49\nv_cvt_pk_bf16_f32 v48, 0, v48")
        outmask()
    else: a("v_cvt_pk_bf16_f32 v48, v48, v49\nv_and_b32 v49, 0xffff0000, v48\nv_lshlrev_b32 v48, 16, v48")
    a(f"""
    v_mul_f32 v50, 0xbfb8aa3b, v49
    v_exp_f32 v50, v50
    v_add_f32 v50, 1.0, v50
    v_rcp_f32 v50, v50
    v_mul_f32 v49, v49, v50
    """)
    rbf(49)
    a("v_mul_f32 v48, v48, v49")
    rbf(48)
    a("v_add_f32 v48, v121, v48\nv_cvt_pk_bf16_f32 v48, v48, v48")
    if not cfg.trim2: exmask16(0xf)
    a(f"buffer_store_short v48, v120, s[40:43], s31 offen {cfg.outpol}")
    a("s_cmp_lg_u32 s30, 0\ns_cbranch_scc1 L_fin_exit\nv_mov_b32 v52, s44\nv_mov_b32 v53, 0\ns_mov_b64 exec, 1\nbuffer_store_dword v52, v53, s[32:35], 0 offen " + cfg.epol)
    if cfg.amp:
        a("s_memrealtime s[88:89]\ns_waitcnt lgkmcnt(0)")
        i, k = cfg.amp
        if i is None: a(f"s_add_u32 s90, s64, {k}")
        else: a(f"s_sub_u32 s90, s{64+2*i}, s64\ns_mul_i32 s90, s90, {k}\ns_add_u32 s90, s90, s64")
        a("L_amp:\ns_memrealtime s[92:93]\ns_waitcnt lgkmcnt(0)\ns_sub_u32 s91, s92, s90\ns_cmp_lt_i32 s91, 0\ns_cbranch_scc1 L_amp")
    a("L_fin_exit:")
    stamp(12)
    dump_stamps(13)
    a("L_exit:\ns_endpgm\nL_codeend:")
    body = a.text()
    head = f"""; Fused decode step, one launch:  out = x + (attention(LN(x)) @ wo) * silu(GLU(LN(x)))
; 256 workgroups (one per CU, all resident) of 12 waves.  id = 8*j + h:  h = kv head, j = (b, key split) for attention,
;  - waves 0-3 stream everything the workgroup needs into LDS once (x, wq/gate/up tiles, 256 keys of K and V, down/wo tiles);
;    progress is published in LDS words, waves 4-11 compute as the data lands (MFMA 16x16x32 bf16, transposing LDS reads).
;  - q / gate-up / (max,sum) / o partials go to the 31 other workgroups of the same h.  These are plain stores that stay in the
;    die's L2 when the group shares a die; the q tag carries the writer's die id, and if any writer sits elsewhere the group
;  - projection partials go write-through to 64 finishing workgroups (8 columns x 2 batch rows each).
;  - roundings to bf16 follow the reference (layernorm steps, q, scores, scaled scores, o, gate/up, h, s, d, silu, product, sum).
; @launch grid=(256,1,1) block=(768,1,1) lds=163840
.amdgcn_target "amdgcn-amd-amdhsa--gfx950"
.text
.globl {NAME}
.p2align 8
.type {NAME},@function
{NAME}:
"""
    tail = f"""
.section .rodata,"a"
.p2align 6
.amdhsa_kernel {NAME}
  .amdhsa_next_free_vgpr 128
  .amdhsa_next_free_sgpr 102
  .amdhsa_accum_offset 128
  .amdhsa_group_segment_fixed_size 0
  .amdhsa_kernarg_size 96
  .amdhsa_user_sgpr_count 2
  .amdhsa_user_sgpr_kernarg_segment_ptr 1
  .amdhsa_system_sgpr_workgroup_id_x 1
  .amdhsa_float_denorm_mode_32 3
.end_amdhsa_kernel
"""
    return head + body + tail

if __name__ == "__main__":
    kw = {}
    out = "recurrent_scan__sliding_block_cached__glu_gated_glu__decode.s"
    for arg in sys.argv[1:]:
        if arg.startswith("out="): out = arg[4:]; continue
        k, v = arg.split("=")
        try: v = eval(v)
        except Exception: pass
        kw[k] = v
    open(out, "w").write(gen(Cfg(**kw)))
    print("wrote", out)
```
